```python
import torch

def _softmax(x, axis=-1):
    return torch.softmax(x, dim=axis)
def _gelu(x):
    return torch.nn.functional.gelu(x, approximate="tanh")
def _silu(x):
    return torch.nn.functional.silu(x)
def _sigmoid(x):
    return torch.sigmoid(x)
def _layernorm(x, axis=-1, eps=1e-5):
    m = x.mean(dim=axis, keepdim=True)
    v = x.var(dim=axis, keepdim=True, unbiased=False)
    return (x - m) / torch.sqrt(v + eps)
def _scatter_add(tgt, idx, src, axis=0):
    return tgt.clone().index_add_(axis, idx, src)
def _segment_sum(src, seg, n):
    out = torch.zeros((n,) + src.shape[1:], dtype=src.dtype)
    return out.index_add_(0, seg, src)
def _pad(x, pw):
    flat = tuple(v for pair in reversed(pw) for v in pair)
    return torch.nn.functional.pad(x, flat)

kernel_name = 'sequential_preLN__sliding_block_cached__glu_gated_swiglu__decode'

def setup_inputs():

    _w = (lambda a: (lambda t: t.to(torch.bfloat16) if t.is_floating_point() else t)(torch.as_tensor(a)))
    def _A_setup():
        B, Sq, D = 2, 1, 576
        Hq, Hkv, Sk, Dh = 32, 16, 8192, 128
        assert Hq % Hkv == 0, (Hq, Hkv)
        return {
            "x": _w((lambda *s: torch.randn(*s, dtype=torch.bfloat16) * 0.05)(B, Sq, D)),
            "k_cache": _w((lambda *s: torch.randn(*s, dtype=torch.bfloat16) * 1.6)(B, Hkv, Sk, Dh)),
            "v_cache": _w((lambda *s: torch.randn(*s, dtype=torch.bfloat16) * 0.8)(B, Hkv, Sk, Dh)),
            "wq": _w((lambda *s: torch.randn(*s, dtype=torch.bfloat16) * 1.6)(D, Hq * Dh) * (D ** -0.5)),
            "wo": _w((lambda *s: torch.randn(*s, dtype=torch.bfloat16) * 0.8)(Hq * Dh, D) * ((Hq * Dh) ** -0.5)),
        }
    _A_in = _A_setup()

    def _B_setup():
        B, S, D, F = 2, 1, 576, 4608
        return {
            "x": _w((lambda *s: torch.randn(*s, dtype=torch.bfloat16) * 0.05)(B, S, D)),
            "w1": _w((lambda *s: torch.randn(*s, dtype=torch.bfloat16) * 0.4)(D, F) * (2.0 / D) ** 0.5),
            "w3": _w((lambda *s: torch.randn(*s, dtype=torch.bfloat16) * 0.4)(D, F) * (2.0 / D) ** 0.5),
            "w2": _w((lambda *s: torch.randn(*s, dtype=torch.bfloat16) * 0.4)(F, D) * (2.0 / F) ** 0.5),
        }
    _B_in = _B_setup()

    return {
        "A_x": _A_in["x"],
        "A_k_cache": _A_in["k_cache"],
        "A_v_cache": _A_in["v_cache"],
        "A_wq": _A_in["wq"],
        "A_wo": _A_in["wo"],
        "B_x": _B_in["x"],
        "B_w1": _B_in["w1"],
        "B_w3": _B_in["w3"],
        "B_w2": _B_in["w2"],
    }

def reference(A_x, A_k_cache, A_v_cache, A_wq, A_wo, B_x, B_w1, B_w3, B_w2):
    def _A_ref(x, k_cache, v_cache, wq, wo):
        B, Sq, D = x.shape
        Hq, Dh = 32, 128
        Hkv, Sk = k_cache.shape[1], k_cache.shape[2]
        W = min(4096, max(256, Sk // 4))
        rep = Hq // Hkv
        q = (lambda x, *d: x.permute(*d))((x @ wq).reshape(B, Sq, Hq, Dh), 0, 2, 1, 3)
        k = (lambda x, n, axis: torch.repeat_interleave(x, n, dim=axis))(k_cache[:, :, Sk - W:, :], rep, axis=1)
        v = (lambda x, n, axis: torch.repeat_interleave(x, n, dim=axis))(v_cache[:, :, Sk - W:, :], rep, axis=1)
        scores = torch.einsum("bhqd,bhkd->bhqk", q, k) * (Dh ** -0.5)
        p = _softmax(scores, axis=-1)
        o = torch.einsum("bhqk,bhkd->bhqd", p, v)
        return (lambda x, *d: x.permute(*d))(o, 0, 2, 1, 3).reshape(B, Sq, Hq * Dh) @ wo

    def _B_ref(x, w1, w3, w2):
        gate = torch.einsum("bsd,df->bsf", x, w1)
        up = torch.einsum("bsd,df->bsf", x, w3)
        h = _silu(gate) * up
        out = torch.einsum("bsf,fd->bsd", h, w2)
        return out

    x = A_x
    h = x + _A_ref(_layernorm(x, axis=-1), A_k_cache, A_v_cache, A_wq, A_wo)
    h2 = h + _B_ref(_layernorm(h, axis=-1), B_w1, B_w3, B_w2)
    return h2
```

```python
NAME = "sequential_preLN__sliding_block_cached__glu_gated_swiglu__decode"
HEADER = open("cdna_kernels/%s.s.ref" % NAME).read().split("; Override launch geometry")[0]

class Asm:
    def __init__(self):
        self.L = []
        self.nlab = 0
    def __call__(self, s):
        for line in s.strip("\n").split("\n"):
            line = line.strip()
            if line:
                self.L.append("    " + line)
    def label(self, l):
        self.L.append(l + ":")
    def newlabel(self, p="L"):
        self.nlab += 1
        return f"{p}_{self.nlab}"
    def c(self, s):
        self.L.append("    ; " + s)
    def text(self):
        return "\n".join(self.L) + "\n"

def wrap(body, grid, block, lds, nvgpr, nsgpr=102, accum=None):
    if accum is None:
        accum = (nvgpr + 3) // 4 * 4
    return HEADER + f"""; @launch grid=({grid},1,1) block=({block},1,1) lds={lds}
.amdgcn_target "amdgcn-amd-amdhsa--gfx950"
.text
.globl {NAME}_kernel
.p2align 8
.type {NAME}_kernel,@function
{NAME}_kernel:
{body}
.section .rodata,"a"
.p2align 6
.amdhsa_kernel {NAME}_kernel
  .amdhsa_next_free_vgpr {nvgpr}
  .amdhsa_next_free_sgpr {nsgpr}
  .amdhsa_accum_offset {accum}
  .amdhsa_group_segment_fixed_size 0
  .amdhsa_kernarg_size 96
  .amdhsa_user_sgpr_count 2
  .amdhsa_user_sgpr_kernarg_segment_ptr 1
  .amdhsa_system_sgpr_workgroup_id_x 1
.end_amdhsa_kernel
"""
```

```python
import re
REG = re.compile(r'\b([vas])(\d+)\b|\b([vas])\[(\d+):(\d+)\]|\b(vcc|exec|m0|scc)\b')
TRANS = ("v_exp_f32", "v_log_f32", "v_rcp_f32", "v_rsq_f32", "v_sqrt_f32", "v_sin_f32", "v_cos_f32", "v_rcp_iflag_f32")
def regs(tok):
    out = []
    for m in REG.finditer(tok):
        if m.group(1): out.append((m.group(1), int(m.group(2))))
        elif m.group(3): out += [(m.group(3), i) for i in range(int(m.group(4)), int(m.group(5)) + 1)]
        else: out.append((m.group(6), 0))
    return out
def split_ops(s):
    ops, cur, d = [], "", 0
    for ch in s:
        if ch == '[': d += 1
        if ch == ']': d -= 1
        if ch == ',' and d == 0: ops.append(cur.strip()); cur = ""
        else: cur += ch
    if cur.strip(): ops.append(cur.strip())
    return ops
class I:
    pass
def parse(line):
    t = line.split(";")[0].strip()
    if not t or t.endswith(":") or t.startswith("."): return None
    p = t.split(None, 1)
    i = I(); i.op = p[0]; rest = p[1] if len(p) > 1 else ""
    ops = split_ops(rest)
    i.mods = ""
    if ops:
        q = ops[-1].split(None, 1)
        if len(q) > 1 and not q[0].endswith("("):
            ops[-1] = q[0]; i.mods = q[1]
    op = i.op
    i.w, i.r = [], []
    i.valu = op.startswith("v_") and not op.startswith("v_mfma")
    i.mfma = op.startswith("v_mfma")
    i.vmem = op.startswith(("buffer_", "global_", "flat_"))
    i.ds = op.startswith("ds_")
    i.salu = op.startswith("s_")
    i.dpp = "_dpp" in op or "row_" in i.mods or "quad_perm" in i.mods
    i.trans = op.replace("_e32", "").replace("_e64", "") in TRANS
    i.perm = op.startswith("v_permlane")
    i.lane = op.startswith(("v_readlane", "v_readfirstlane", "v_writelane"))
    i.store = False
    i.ldsdma = i.vmem and (" lds" in " " + i.mods or "_lds_" in op)
    R = [regs(o) for o in ops]
    flat = [x for r in R for x in r]
    if op.startswith(("buffer_store", "global_store", "ds_write", "ds_add", "s_cmp", "s_cbranch", "s_branch", "s_waitcnt", "s_nop", "s_barrier", "s_sleep", "s_endpgm", "s_setprio", "s_bitcmp", "buffer_inv", "buffer_wbl2", "global_atomic", "buffer_atomic", "ds_max", "ds_min")) or i.ldsdma:
        i.r = flat
        i.store = op.startswith(("buffer_store", "global_store"))
        if i.store:
            i.sdata = R[0] if op.startswith("buffer_store") else R[1]
            i.wide = op.endswith(("x3", "x4"))
    elif op.startswith(("v_swap", "v_permlane16_swap", "v_permlane32_swap")):
        i.w = flat; i.r = flat
    elif op.startswith(("v_add_co", "v_sub_co", "v_addc_co", "v_subb_co", "v_div_scale")):
        i.w = R[0] + R[1]; i.r = [x for r in R[2:] for x in r]
    else:
        i.w = R[0] if R else []
        i.r = [x for r in R[1:] for x in r]
        if op.startswith(("v_fmac", "v_dot2c", "v_writelane", "v_pk_fmac")) or i.dpp: i.r += i.w
        if op.startswith("v_cndmask") and len(ops) == 3: i.r.append(("vcc", 0))
        if op.startswith("v_cmpx"): i.w.append(("exec", 0))
        if "saveexec" in op: i.w.append(("exec", 0))
    if i.mfma:
        i.c = R[3] if len(R) > 3 else []
        i.ab = R[1] + R[2]
        i.passes = 8 if "32x32" in op else 4
    if op == "s_nop": i.ws = int(ops[0], 0) + 1
    else: i.ws = 1
    return i
def issgpr(x): return x[0] in ("s", "vcc")
def isvec(x): return x[0] in ("v", "a")
def need(prev, cur):
    n = 0
    pw = set(prev.w); cr = set(cur.r); cw = set(cur.w)
    if prev.valu:
        vw = {x for x in pw if isvec(x)}; sw = {x for x in pw if issgpr(x)}
        if cur.mfma and vw & cr: n = max(n, 2)
        if cur.dpp and vw & cr: n = max(n, 2)
        if cur.perm and vw & cr: n = max(n, 2)
        if cur.op.startswith(("v_readlane", "v_readfirstlane")) and vw & cr: n = max(n, 1)
        if prev.trans and cur.valu and not cur.trans and vw & cr: n = max(n, 1)
        if prev.trans and (cur.valu or cur.mfma) and vw & cr: n = max(n, 1)
        if sw & cr:
            if cur.lane: n = max(n, 4)
            elif cur.valu: n = max(n, 2)
            elif cur.vmem: n = max(n, 5)
            elif cur.salu: n = max(n, 1)
        if ("exec", 0) in pw:
            if cur.dpp: n = max(n, 5)
            if cur.lane or cur.perm or cur.mfma: n = max(n, 4)
        if "sdwa" in prev.op or "op_sel" in prev.mods:
            if cur.valu and vw & (cr | cw): n = max(n, 1)
    if prev.mfma:
        d = pw
        big = {4: 8, 8: 12}[prev.passes]
        if cur.mfma:
            if d & set(cur.ab): n = max(n, big)
            c = set(cur.c)
            if d & c and (c != d or cur.passes != prev.passes): n = max(n, {4: 6, 8: 10}[prev.passes])
        elif d & (cr | cw): n = max(n, big)
        if cur.valu and set(prev.c) & cw: n = max(n, {4: 3, 8: 7}[prev.passes])
    if prev.salu and ("m0", 0) in pw and (cur.ldsdma or "addtid" in cur.op): n = max(n, 1)
    if prev.store and getattr(prev, "wide", False) and set(prev.sdata) & cw:
        n = max(n, 2 if cur.valu else 1)
    return n
def fix(lines, label_pad=True):
    out = []; hist = []
    pos = 0; nins = 0
    for line in lines:
        i = parse(line)
        if i is None:
            out.append(line)
            if line.strip().endswith(":"):
                hist = [(p, pos - 1) for (p, _) in hist[-24:]]
            continue
        req = 0
        for (p, ppos) in hist[-24:]:
            k = need(p, i)
            if k:
                have = pos - ppos - 1
                req = max(req, k - have)
        if req > 0:
            r = req
            while r > 0:
                k = min(r, 16)
                out.append(f"    s_nop {k-1}"); pos += k; r -= k; nins += 1
        out.append(line)
        hist.append((i, pos + i.ws - 1))
        pos += i.ws
    return out, nins
```

```python
import sys, copy
from asmlib import *
import hazard

WS_EPOCH = 0
WS_QP = 0x1000
WS_ML = WS_QP + 32 * 8 * 1024
WS_OPART = WS_ML + 4096
WS_Y = WS_OPART + 256 * 1024
WS_YS = WS_Y + 8 * 32 * 576
WS_GP = WS_YS + 4096
WS_ST = WS_GP + 36 * 16384
WS_OP = WS_ST + 4096
WS_END = WS_OP + 8 * 36 * 576
WS_STAMP = 0x8000000

L_K = 0
L_RED = 0
L_RED2 = 65536
L_XN = L_RED2 + 4096
L_QB = L_XN + 4 * 768
L_PT = L_QB + 512
L_MX = L_PT + 2048
L_XT = L_MX + 128
L_WT = L_XT + 4 * 640
L_H = L_WT + 256
L_YS = L_H + 576
L_END = L_YS + 64

TAGMASK = 0x3FF
POLL_MAX = 400000

class Tracker:
    def __init__(self, a):
        self.a = a; self.ops = []; self.n = 0
    def issue(self, ins, cond=False, window=None):
        if window is not None:
            cnt = sum(1 for (_, c) in self.ops if not c)
            if cnt >= window:
                self.a(f"s_waitcnt vmcnt({window-1})")
                self._retire_to(window - 1)
        self.a(ins)
        self.n += 1
        self.ops.append((self.n, cond))
        return self.n
    def _retire_to(self, k):
        keep = []; c = 0
        for op in reversed(self.ops):
            if c >= k: break
            keep.append(op)
            if not op[1]: c += 1
        self.ops = list(reversed(keep))
    def wait(self, opid):
        ids = [o for (o, _) in self.ops]
        if opid not in ids: return
        after = sum(1 for (o, c) in self.ops if o > opid and not c)
        self.a(f"s_waitcnt vmcnt({min(after, 63)})")
        self.ops = [(o, c) for (o, c) in self.ops if o > opid]
    def drain(self):
        self.a("s_waitcnt vmcnt(0)"); self.ops = []
    def fork(self):
        t = Tracker(self.a); t.ops = list(self.ops); t.n = self.n; return t

def gen(W=6, WE=12, WF0=2, NF0=4, WF=10, WE2=4, stamps=False, lds_force=0, codepf=True):
    a = Asm()
    T = Tracker(a)
    nst = [0]
    def stamp(i):
        if stamps:
            a(f"s_memrealtime s[90:91]\ns_waitcnt lgkmcnt(0)\nv_writelane_b32 v31, s90, {i}")
    def srd(d, p, size):
        a(f"s_mov_b32 s{d}, s{p}\ns_and_b32 s{d+1}, s{p+1}, 0xffff\ns_mov_b32 s{d+2}, {size}\ns_mov_b32 s{d+3}, 0x00020000")
    def row_allreduce(op, regs, tmp=None, steps=(8, 4, 2, 1)):
        for st in steps:
            for r in regs:
                a(f"{op}_dpp v{r}, v{r}, v{r} row_ror:{st} row_mask:0xf bank_mask:0xf")
    def swap_reduce(op, regs, tmps, which):
        for r, t in zip(regs, tmps):
            a(f"v_mov_b32 v{t}, v{r}")
        for r, t in zip(regs, tmps):
            a(f"v_permlane{which}_swap_b32 v{r}, v{t}")
        for r, t in zip(regs, tmps):
            a(f"{op} v{r}, v{r}, v{t}")
    def bf16r(dst, src):
        a(f"v_cvt_pk_bf16_f32 v{dst}, v{src}, v{src}\nv_and_b32 v{dst}, 0xffff0000, v{dst}")
    def tag(regs):
        for r in regs:
            a(f"v_bfi_b32 v{r}, s77, v30, v{r}")
    def untag(regs, acc, first=True):
        for r in regs:
            a(f"v_xor_b32 v{r}, v30, v{r}")
        rs = list(regs)
        if first:
            if len(rs) >= 2:
                a(f"v_or_b32 v{acc}, v{rs[0]}, v{rs[1]}"); rs = rs[2:]
            else:
                a(f"v_mov_b32 v{acc}, v{rs[0]}"); rs = rs[1:]
        while len(rs) >= 2:
            a(f"v_or3_b32 v{acc}, v{acc}, v{rs[0]}, v{rs[1]}"); rs = rs[2:]
        if rs:
            a(f"v_or_b32 v{acc}, v{acc}, v{rs[0]}")
    def check_retry(acc, retry_label, code):
        ok = a.newlabel("L_ok")
        a(f"v_and_b32 v{acc}, s77, v{acc}\nv_cmp_ne_u32 vcc, 0, v{acc}")
        a(f"s_cbranch_vccz {ok}")
        a(f"s_add_u32 s79, s79, 1\ns_cmp_lt_u32 s79, {POLL_MAX}\ns_cbranch_scc1 {retry_label}")
        a.label(ok)

    a("s_cmp_ge_u32 s2, 256\ns_cbranch_scc1 L_end")
    a("s_load_dwordx16 s[16:31], s[0:1], 0\ns_load_dwordx8 s[32:39], s[0:1], 64")
    if stamps:
        a("s_memrealtime s[90:91]\nv_mov_b32 v31, 0")
    a("v_lshrrev_b32 v1, 6, v0\nv_and_b32 v0, 63, v0")
    a("v_readfirstlane_b32 s3, v1")
    if codepf:
        a("s_getpc_b64 s[98:99]")
        a("v_lshlrev_b32 v3, 7, v0")
        a("s_lshl_b32 s8, s3, 13\ns_add_u32 s98, s98, s8\ns_addc_u32 s99, s99, 0")
        a(".CODEPF_GUARD")
    a("s_and_b32 s4, s2, 7\ns_lshr_b32 s5, s2, 3")
    a("s_lshr_b32 s6, s5, 4\ns_lshl_b32 s7, s4, 1\ns_add_u32 s6, s6, s7")
    a("s_and_b32 s7, s5, 15")
    a("v_and_b32 v1, 15, v0\nv_lshrrev_b32 v2, 4, v0")
    a("v_lshrrev_b32 v4, 5, v0\nv_and_b32 v5, 31, v0")
    a("v_mul_u32_u24 v6, 36, v5\nv_mul_u32_u24 v7, 1152, v4\nv_add_u32 v6, v6, v7")
    a("v_lshl_add_u32 v7, v5, 1, v7")
    a("v_mul_u32_u24 v8, 8192, v2\nv_lshl_add_u32 v8, v1, 4, v8")
    a("s_mov_b32 s77, 0x3ff\ns_mov_b32 s79, 0")
    a("s_waitcnt lgkmcnt(0)")
    if stamps:
        a("v_writelane_b32 v31, s90, 0")
    a("s_load_dword s78, s[38:39], 0")
    srd(68, 16, 2304)
    srd(48, 22, 576 * 4096 * 2)
    x0 = T.issue("buffer_load_dwordx4 v[60:63], v6, s[68:71], 0 offen")
    x1 = T.issue("buffer_load_dwordx4 v[64:67], v6, s[68:71], 0 offen offset:16")
    x2 = T.issue("buffer_load_dword v68, v6, s[68:71], 0 offen offset:32")
    a("s_lshr_b32 s9, s7, 1\ns_mul_i32 s10, s9, 144")
    xr = []
    for k in range(3):
        xr.append(T.issue(f"buffer_load_ushort v{69+k}, v7, s[68:71], s10 offen offset:{64*k}"))
    a("s_and_b32 s8, s7, 1\ns_lshl_b32 s11, s6, 1\ns_add_u32 s11, s8, s11")
    a("s_lshl_b32 s8, s11, 8")
    a("s_mul_i32 s12, s9, 72\ns_lshl_b32 s10, s3, 2\ns_add_u32 s12, s12, s10\ns_lshl_b32 s12, s12, 13\ns_add_u32 s8, s8, s12")
    wq = []
    for i in range(5):
        if i == 4:
            a("s_cmp_ge_u32 s3, 2\ns_cselect_b32 s8, 0x7fffffff, s8")
        wq.append(T.issue(f"buffer_load_dwordx4 v[{40+4*i}:{43+4*i}], v8, s[48:51], s8 offen nt"))
        if i < 4: a(f"s_add_u32 s8, s8, {16*8192}")
    a(f"s_lshl_b32 s13, s11, 3\ns_add_u32 s13, s13, s9\ns_lshl_b32 s13, s13, 10\ns_add_u32 s13, s13, {WS_QP}")
    srd(40, 18, 64 << 20); srd(44, 20, 64 << 20); srd(64, 38, 256 << 20)
    a("s_lshr_b32 s8, s7, 3\ns_lshl_b32 s14, s8, 25\ns_lshl_b32 s9, s6, 21\ns_add_u32 s14, s14, s9")
    a("s_and_b32 s9, s7, 7\ns_lshl_b32 s9, s9, 14\ns_add_u32 s14, s14, s9\ns_lshl_b32 s9, s3, 12\ns_add_u32 s14, s14, s9")
    a(f"s_add_u32 s14, s14, {6144*256}\ns_mov_b32 s15, s14")
    for k in range(4):
        a(f"v_add_u32 v{10+k}, {4*k}, v2\nv_xor_b32 v{10+k}, v{10+k}, v1\nv_lshlrev_b32 v{10+k}, 4, v{10+k}\nv_lshl_add_u32 v{10+k}, v2, 8, v{10+k}")
    a("s_lshl_b32 s100, s3, 14")
    kops = []
    def kload(i, window):
        if i % 4 == 0:
            a(f"s_add_u32 s101, s100, {(i//4)*4096}\ns_mov_b32 m0, s101")
        kops.append(T.issue(f"buffer_load_dwordx4 v{10+i%4}, s[40:43], s14 offen offset:{(i%4)*1024} nt lds", window=window))
        if i % 4 == 3:
            a("s_add_u32 s14, s14, 131072")
    NK0 = 4
    for i in range(NK0):
        kload(i, None)
    a("v_and_b32 v14, 1, v1\nv_cmp_eq_u32 vcc, 1, v14\nv_mov_b32 v15, 0xffff\nv_mov_b32 v16, 0xffff0000\nv_cndmask_b32 v14, v15, v16, vcc")
    a("v_bfe_u32 v15, v1, 1, 2")
    for j in range(4):
        a(f"v_cmp_eq_u32 vcc, {j}, v15\nv_cndmask_b32 v{32+j}, 0, v14, vcc")
    a("v_and_b32 v15, 1, v15")
    a("v_cmp_eq_u32 vcc, 0, v15\nv_cndmask_b32 v36, 0, v14, vcc\nv_cmp_eq_u32 vcc, 1, v15\nv_cndmask_b32 v37, 0, v14, vcc")
    a("v_cmp_eq_u32 s[92:93], 1, v2\nv_cmp_eq_u32 s[94:95], 2, v2\nv_cmp_eq_u32 s[96:97], 3, v2")
    a("v_lshrrev_b32 v14, 1, v2\nv_lshlrev_b32 v38, 9, v14\nv_lshl_add_u32 v38, v1, 5, v38\nv_and_b32 v14, 1, v2\nv_lshl_add_u32 v38, v14, 4, v38")
    a("v_lshlrev_b32 v39, 4, v0")
    a("v_lshlrev_b32 v9, 2, v0")
    T.wait(x2)
    for k in range(9):
        a(f"v_and_b32 v{73+2*k}, 0xffff0000, v{60+k}\nv_lshlrev_b32 v{72+2*k}, 16, v{60+k}")
    a("v_add_f32 v14, v72, v73")
    a("v_add_f32 v15, v74, v75")
    for k in range(4, 18, 2):
        a(f"v_add_f32 v14, v14, v{72+k}\nv_add_f32 v15, v15, v{73+k}")
    a("v_add_f32 v14, v14, v15")
    row_allreduce("v_add_f32", [14])
    swap_reduce("v_add_f32", [14], [15], 16)
    a("v_mov_b32 v29, v14")
    a(f"v_mul_f32 v14, {float_lit(1/576)}, v14")
    a("v_mov_b32 v15, 0\nv_mov_b32 v16, 0")
    for k in range(0, 18, 2):
        a(f"v_sub_f32 v{72+k}, v{72+k}, v14\nv_sub_f32 v{73+k}, v{73+k}, v14")
        a(f"v_fmac_f32 v15, v{72+k}, v{72+k}\nv_fmac_f32 v16, v{73+k}, v{73+k}")
    a("v_add_f32 v15, v15, v16")
    row_allreduce("v_add_f32", [15])
    swap_reduce("v_add_f32", [15], [16], 16)
    a(f"v_mul_f32 v15, {float_lit(1/576)}, v15")
    bf16r(15, 15)
    a(f"v_add_f32 v15, {float_lit(1e-5)}, v15")
    bf16r(15, 15)
    a("v_sqrt_f32 v15, v15")
    bf16r(15, 15)
    a("v_rcp_f32 v15, v15")
    bf16r(14, 14)
    for i in range(NK0, NK0 + 2):
        kload(i, None)
    T.wait(xr[2])
    a(f"s_mul_i32 s8, s3, 768\ns_add_u32 s8, s8, {L_XN}")
    a("v_mul_u32_u24 v16, 384, v4\nv_lshl_add_u32 v16, v5, 2, v16\nv_add_u32 v16, s8, v16")
    for k in range(3):
        r = 69 + k
        a(f"v_lshlrev_b32 v{r}, 16, v{r}\nv_sub_f32 v{r}, v{r}, v14")
        bf16r(r, r)
        a(f"v_mul_f32 v{r}, v{r}, v15\nv_cvt_pk_bf16_f32 v{r}, v{r}, v{r}")
        a(f"ds_write_b32 v16, v{r} offset:{128*k}")
    a("v_lshrrev_b32 v17, 3, v1\nv_mul_u32_u24 v17, 384, v17\nv_lshl_add_u32 v17, v2, 2, v17\ns_lshl_b32 s9, s3, 4\ns_add_u32 s8, s8, s9\nv_add_u32 v17, s8, v17")
    a("s_waitcnt lgkmcnt(0)")
    a("s_add_u32 s78, s78, 1\ns_and_b32 s76, s78, 0x3ff\nv_mov_b32 v30, s76")
    for i in range(5):
        a(f"ds_read_b32 v{60+i}, v17 offset:{64*i}")
    a("s_waitcnt lgkmcnt(0)")
    stamp(1)
    for i in range(5):
        for j in range(4):
            a(f"v_and_b32 v{72+4*i+j}, v{60+i}, v{32+j}")
    for i in range(5):
        T.wait(wq[i])
        c = "0" if i == 0 else "v[96:99]"
        a(f"v_mfma_f32_16x16x32_bf16 v[96:99], v[{72+4*i}:{75+4*i}], v[{40+4*i}:{43+4*i}], {c}")
    for i in range(NK0 + 2, NK0 + 4):
        kload(i, W)
    a(f"s_lshl_b32 s8, s3, 10\ns_add_u32 s8, s8, {L_RED2}\nv_add_u32 v18, s8, v39")
    a(f"v_add_u32 v19, {L_RED2}, v39")
    a("ds_write_b128 v18, v[96:99]")
    a("s_waitcnt lgkmcnt(0)\ns_barrier")
    a("s_cmp_lg_u32 s3, 3\ns_cbranch_scc1 L_noq")
    for k in range(4):
        a(f"ds_read_b128 v[{72+4*k}:{75+4*k}], v19 offset:{1024*k}")
    a("s_waitcnt lgkmcnt(0)")
    for r in range(4):
        a(f"v_add_f32 v{72+r}, v{72+r}, v{76+r}\nv_add_f32 v{80+r}, v{80+r}, v{84+r}")
    for r in range(4):
        a(f"v_add_f32 v{72+r}, v{72+r}, v{80+r}")
    tag([72, 73, 74, 75])
    T.issue("buffer_store_dwordx4 v[72:75], v38, s[64:67], s13 offen sc1", cond=True)
    a.label("L_noq")
    stamp(2)
    for i in range(NK0 + 4, 16):
        kload(i, W)
    a("s_lshr_b32 s8, s3, 1\ns_lshl_b32 s9, s6, 1\ns_add_u32 s8, s8, s9\ns_lshl_b32 s8, s8, 13")
    a("s_lshr_b32 s9, s7, 3\ns_lshl_b32 s9, s9, 9\ns_add_u32 s8, s8, s9\ns_and_b32 s9, s3, 1\ns_lshl_b32 s9, s9, 8\ns_add_u32 s8, s8, s9")
    a(f"s_add_u32 s8, s8, {WS_QP}\ns_add_u32 s9, s8, 4096")
    def qgather(Tk, window=None):
        ids = []
        for r in range(8):
            ids.append(Tk.issue(f"buffer_load_dword v{40+r}, v9, s[64:67], {'s8' if r < 4 else 's9'} offen offset:{(r%4)*1024} sc1"))
        return ids
    qg = qgather(T)
    vops = []
    def vload(i, window):
        vops.append(T.issue(f"buffer_load_dwordx4 v[{104+4*i}:{107+4*i}], v39, s[44:47], s15 offen offset:{(i%4)*1024} nt", window=window))
        if i % 4 == 3:
            a("s_add_u32 s15, s15, 131072")
    NV0 = W
    for i in range(NV0):
        vload(i, W + 8)
    T.wait(qg[-1])
    a("s_branch L_qchk")
    a.label("L_qretry")
    a("s_sleep 1")
    Tr = T.fork(); qgather(Tr); a("s_waitcnt vmcnt(0)")
    a.label("L_qchk")
    untag(list(range(40, 48)), 48)
    check_retry(48, "L_qretry", 1)
    for r in range(0, 8, 2):
        a(f"v_add_f32 v{40+r}, v{40+r}, v{41+r}")
    a("v_add_f32 v40, v40, v42\nv_add_f32 v44, v44, v46\nv_add_f32 v40, v40, v44")
    a("v_cvt_pk_bf16_f32 v40, v40, v40")
    a(f"s_lshl_b32 s8, s3, 7\ns_add_u32 s8, s8, {L_QB}\nv_lshlrev_b32 v14, 1, v0\nv_add_u32 v14, s8, v14")
    a("ds_write_b16 v14, v40")
    a(f"v_and_b32 v14, 1, v1\nv_lshlrev_b32 v14, 8, v14\nv_lshl_add_u32 v14, v2, 4, v14\nv_add_u32 v14, {L_QB}, v14")
    for j in range(4):
        a(f"v_add_u32 v{20+j}, {4*j}, v2\nv_xor_b32 v{20+j}, v{20+j}, v1\nv_lshlrev_b32 v{20+j}, 4, v{20+j}\nv_lshl_add_u32 v{20+j}, v1, 8, v{20+j}\nv_add_u32 v{20+j}, s100, v{20+j}")
    a("s_waitcnt lgkmcnt(0)\ns_barrier")
    stamp(3)
    for j in range(4):
        a(f"ds_read_b128 v[{40+4*j}:{43+4*j}], v14 offset:{64*j}")
    def kread(t):
        base = 56 + 16 * (t % 2)
        for j in range(4):
            a(f"ds_read_b128 v[{base+4*j}:{base+4*j+3}], v{20+j} offset:{4096*t}")
    kread(0); kread(1)
    nv = NV0
    for t in range(4):
        base = 56 + 16 * (t % 2)
        a(f"s_waitcnt lgkmcnt({4 if t < 3 else 0})")
        for j in range(4):
            c = "0" if j == 0 else f"v[{88+4*t}:{91+4*t}]"
            a(f"v_mfma_f32_16x16x32_bf16 v[{88+4*t}:{91+4*t}], v[{40+4*j}:{43+4*j}], v[{base+4*j}:{base+4*j+3}], {c}")
        if t + 2 < 4:
            a("s_nop 1")
            kread(t + 2)
        vload(nv, W); nv += 1
    for h in range(2):
        a(f"v_cndmask_b32 v{24+h}, v{88+h}, v{92+h}, s[92:93]")
    for h in range(2):
        a(f"v_cndmask_b32 v{24+h}, v{24+h}, v{96+h}, s[94:95]")
    for h in range(2):
        a(f"v_cndmask_b32 v{24+h}, v{24+h}, v{100+h}, s[96:97]")
    a("v_cvt_pk_bf16_f32 v26, v24, v25\nv_lshlrev_b32 v24, 16, v26\nv_and_b32 v25, 0xffff0000, v26")
    sc = float_lit(128 ** -0.5)
    a(f"v_mul_f32 v24, {sc}, v24\nv_mul_f32 v25, {sc}, v25")
    a("v_cvt_pk_bf16_f32 v26, v24, v25\nv_lshlrev_b32 v24, 16, v26\nv_and_b32 v25, 0xffff0000, v26")
    a("v_mov_b32 v26, v24\nv_mov_b32 v27, v25")
    row_allreduce("v_max_f32", [26, 27])
    swap_reduce("v_max_f32", [26, 27], [14, 15], 16)
    swap_reduce("v_max_f32", [26, 27], [14, 15], 32)
    a(f"s_lshl_b32 s8, s3, 3\ns_add_u32 s8, s8, {L_MX}\nv_mov_b32 v14, s8\nv_mov_b32 v16, {L_MX}")
    a("ds_write_b64 v14, v[26:27]")
    vload(nv, W); nv += 1
    a("s_waitcnt lgkmcnt(0)\ns_barrier")
    a("ds_read_b128 v[40:43], v16\nds_read_b128 v[44:47], v16 offset:16")
    a("s_waitcnt lgkmcnt(0)")
    a("v_max3_f32 v26, v40, v42, v44\nv_max3_f32 v27, v41, v43, v45\nv_max_f32 v26, v26, v46\nv_max_f32 v27, v27, v47")
    l2e = float_lit(1.4426950408889634)
    a("v_sub_f32 v24, v24, v26\nv_sub_f32 v25, v25, v27")
    a(f"v_mul_f32 v24, {l2e}, v24\nv_mul_f32 v25, {l2e}, v25")
    a("v_exp_f32 v24, v24\nv_exp_f32 v25, v25")
    a(f"s_lshl_b32 s8, s3, 9\ns_add_u32 s8, s8, {L_PT}")
    a("v_and_b32 v15, 3, v0\nv_lshlrev_b32 v15, 6, v15\nv_lshrrev_b32 v17, 2, v0\nv_lshl_add_u32 v15, v17, 2, v15\nv_add_u32 v15, s8, v15")
    a("v_cvt_pk_bf16_f32 v40, v24, v24\nv_cvt_pk_bf16_f32 v41, v25, v25")
    a("ds_write_b32 v15, v40\nds_write_b32 v15, v41 offset:256")
    a("v_lshrrev_b32 v17, 3, v1\nv_lshlrev_b32 v17, 8, v17\nv_lshl_add_u32 v17, v2, 6, v17\nv_add_u32 v17, s8, v17")
    row_allreduce("v_add_f32", [24, 25])
    swap_reduce("v_add_f32", [24, 25], [42, 43], 16)
    swap_reduce("v_add_f32", [24, 25], [42, 43], 32)
    a("ds_write_b64 v14, v[24:25] offset:32")
    a("s_waitcnt lgkmcnt(0)")
    for q in range(4):
        a(f"ds_read_b128 v[{240+4*q}:{243+4*q}], v17 offset:{16*q}")
    vload(nv, W); nv += 1
    a("s_waitcnt lgkmcnt(0)")
    for u in range(16):
        for j in range(4):
            a(f"v_and_b32 v{40+4*u+j}, v{240+u}, v{32+j}")
        if u % 4 == 3 and nv < 16:
            vload(nv, W); nv += 1
    a("s_barrier")
    a("s_cmp_lg_u32 s3, 1\ns_cbranch_scc1 L_noml")
    a("ds_read_b128 v[240:243], v16 offset:32\nds_read_b128 v[244:247], v16 offset:48")
    a("s_waitcnt lgkmcnt(0)")
    a("v_add_f32 v240, v240, v242\nv_add_f32 v244, v244, v246\nv_add_f32 v241, v241, v243\nv_add_f32 v245, v245, v247")
    a("v_add_f32 v249, v240, v244\nv_add_f32 v251, v241, v245\nv_mov_b32 v248, v26\nv_mov_b32 v250, v27")
    tag([248, 249, 250, 251])
    a(f"s_lshl_b32 s8, s6, 8\ns_lshl_b32 s9, s7, 4\ns_add_u32 s8, s8, s9\ns_add_u32 s8, s8, {WS_ML}")
    a("s_mov_b64 exec, 1\nv_mov_b32 v14, 0")
    T.issue("buffer_store_dwordx4 v[248:251], v14, s[64:67], s8 offen sc1", cond=True)
    a("s_mov_b64 exec, -1")
    a.label("L_noml")
    stamp(4)
    while nv < 16:
        vload(nv, W); nv += 1
    a(f"s_lshl_b32 s13, s6, 14\ns_lshl_b32 s9, s7, 9\ns_add_u32 s13, s13, s9\ns_add_u32 s13, s13, {WS_OPART}")
    a("v_lshrrev_b32 v14, 1, v2\nv_mul_u32_u24 v14, 7680, v14\nv_add_u32 v28, v14, v38")
    a("s_cmp_lt_u32 s5, 18\ns_cbranch_scc1 L_F")
    Tbr = T.fork()

    def pv_and_publish(Tk, between, lab):
        for u in range(16):
            between(u)
            Tk.wait(vops[u])
            c = "0" if u == 0 else "v[240:243]"
            a(f"v_mfma_f32_16x16x32_bf16 v[240:243], v[{40+4*u}:{43+4*u}], v[{104+4*u}:{107+4*u}], {c}")
        stamp(5)
        a("ds_write_b128 v18, v[240:243]")
        a("s_waitcnt lgkmcnt(0)\ns_barrier")
        a(f"s_cmp_lg_u32 s3, 0\ns_cbranch_scc1 {lab}")
        for k in range(1, 4):
            a(f"ds_read_b128 v[{240+4*k}:{243+4*k}], v19 offset:{1024*k}")
        a("s_waitcnt lgkmcnt(0)")
        for r in range(4):
            a(f"v_add_f32 v{240+r}, v{240+r}, v{244+r}\nv_add_f32 v{248+r}, v{248+r}, v{252+r}")
        for r in range(4):
            a(f"v_add_f32 v{240+r}, v{240+r}, v{248+r}")
        tag([240, 241, 242, 243])
        Tk.issue("buffer_store_dwordx4 v[240:243], v28, s[64:67], s13 offen sc1", cond=True)
        a.label(lab)
        stamp(6)

    def tile_loads(base, srdn, soff):
        L = []
        for st in range(2):
            for cb in range(3):
                for rr in range(2):
                    r = base + 24 * st + 8 * cb + 4 * rr
                    L.append(f"buffer_load_dwordx4 v[{r}:{r+3}], v20, s[{srdn}:{srdn+3}], {soff[st]} offen offset:{rr*1152+cb*128} nt")
        return L
    def tile_swap(base):
        for k in range(6):
            r = base + 8 * k
            a(f"v_swap_b32 v{r+2}, v{r+4}\nv_swap_b32 v{r+3}, v{r+5}")
    def tile_mfma(Tk, base, sout, with_ys):
        a("s_waitcnt lgkmcnt(0)")
        a("ds_read_b64 v[64:65], v21\nds_read_b64 v[66:67], v21 offset:64")
        a("s_waitcnt lgkmcnt(0)")
        for st in range(2):
            a(f"v_and_b32 v{68+4*st}, v{64+2*st}, v36\nv_and_b32 v{69+4*st}, v{64+2*st}, v37\nv_and_b32 v{70+4*st}, v{65+2*st}, v36\nv_and_b32 v{71+4*st}, v{65+2*st}, v37")
        for st in range(2):
            for k in range(6):
                r = base + 24 * st + 4 * k
                c = "0" if st == 0 else f"v[{40+4*k}:{43+4*k}]"
                a(f"v_mfma_f32_16x16x32_bf16 v[{40+4*k}:{43+4*k}], v[{68+4*st}:{71+4*st}], v[{r}:{r+3}], {c}")
        a("s_mov_b32 exec_lo, 0x00ff00ff\ns_mov_b32 exec_hi, 0xff00ff00")
        for k in range(6):
            a(f"ds_write_b128 v22, v[{40+4*k}:{43+4*k}] offset:{((k//2)*16 + (k%2))*16}")
        a("s_mov_b64 exec, -1")
        a("s_waitcnt lgkmcnt(0)\ns_barrier")
        a("s_mov_b64 exec, 0xffffff")
        for p in range(8):
            a(f"ds_read_b128 v[{64+4*p}:{67+4*p}], v23 offset:{1536*p}")
        for p in range(0, 8, 2):
            a(f"s_waitcnt lgkmcnt({6-p})")
            a(f"v_pk_add_f32 v[{64+4*p}:{65+4*p}], v[{64+4*p}:{65+4*p}], v[{68+4*p}:{69+4*p}]\nv_pk_add_f32 v[{66+4*p}:{67+4*p}], v[{66+4*p}:{67+4*p}], v[{70+4*p}:{71+4*p}]")
        for p in (0, 4):
            a(f"v_pk_add_f32 v[{64+4*p}:{65+4*p}], v[{64+4*p}:{65+4*p}], v[{72+4*p}:{73+4*p}]\nv_pk_add_f32 v[{66+4*p}:{67+4*p}], v[{66+4*p}:{67+4*p}], v[{74+4*p}:{75+4*p}]")
        a("v_pk_add_f32 v[64:65], v[64:65], v[80:81]\nv_pk_add_f32 v[66:67], v[66:67], v[82:83]")
        if with_ys:
            a("v_add_f32 v68, v64, v65\nv_add_f32 v69, v66, v67")
        tag([64, 65, 66, 67])
        Tk.issue(f"buffer_store_dwordx4 v[64:67], v24, s[64:67], {sout} offen sc1")
        if with_ys:
            a("v_add_f32 v70, v68, v69")
            a("s_mov_b64 exec, -1")
            a("v_cndmask_b32 v70, 0, v70, s[88:89]")
            row_allreduce("v_add_f32", [70])
            swap_reduce("v_add_f32", [70], [71], 16)
            tag([70])
            a("v_mov_b32 v71, s78\nv_mov_b32 v72, 0\ns_mov_b64 exec, 1")
            Tk.issue("buffer_store_dwordx2 v[70:71], v72, s[64:67], s12 offen sc1")
        a("s_mov_b64 exec, -1")
    def out_voffset(scol, nprod):
        a("s_lshr_b32 s8, s3, 1\ns_mul_i32 s8, s8, 288")
        a(f"s_and_b32 s9, s3, 1\ns_mul_i32 s9, s9, 96\ns_add_u32 s9, s9, {scol}")
        a("v_lshlrev_b32 v14, 2, v0\nv_add_u32 v14, s9, v14")
        a("v_mul_u32_u24 v15, 911, v14\nv_lshrrev_b32 v15, 16, v15")
        a("v_mul_u32_u24 v16, 72, v15\nv_sub_u32 v14, v14, v16")
        a(f"v_mul_u32_u24 v15, {nprod*576}, v15\nv_lshl_add_u32 v24, v14, 2, v15\nv_add_u32 v24, s8, v24")

    T = Tbr.fork()
    a("s_sub_u32 s10, s5, 18")
    srd(52, 24, 4096 * 576 * 2); srd(60, 32, 4608 * 576 * 2)
    a("v_lshrrev_b32 v20, 3, v1\nv_lshlrev_b32 v20, 3, v20\nv_lshl_add_u32 v20, v2, 1, v20\nv_mul_u32_u24 v20, 1152, v20\nv_and_b32 v14, 7, v1\nv_lshl_add_u32 v20, v14, 4, v20")
    a("s_mul_i32 s11, s10, 11\ns_lshr_b32 s11, s11, 5")
    a("s_mul_i32 s8, s11, 3\ns_sub_u32 s80, s10, s8")
    a("s_lshl_b32 s8, s4, 2\ns_add_u32 s11, s11, s8")
    a("s_lshl_b32 s8, s11, 7\ns_lshl_b32 s9, s3, 5\ns_add_u32 s8, s8, s9\ns_mul_i32 s8, s8, 1152\ns_mul_i32 s9, s80, 384\ns_add_u32 s81, s8, s9")
    a("s_cmp_ge_u32 s10, 12\ns_cselect_b32 s81, 0x7fff0000, s81")
    a(f"s_add_u32 s82, s81, {16*1152}")
    wol = tile_loads(168, 52, ["s81", "s82"])
    woo = []
    def betweenE(u):
        if u == 0:
            for k in range(len(wol)):
                woo.append(T.issue(wol[k], window=WE + W))
    pv_and_publish(T, betweenE, "L_noopE")
    a(f"s_mul_i32 s83, s3, 640\ns_add_u32 s83, s83, {L_XT}")
    a("v_bfe_u32 v14, v1, 2, 1\nv_lshlrev_b32 v21, 5, v14\nv_lshrrev_b32 v14, 3, v1\nv_lshl_add_u32 v21, v14, 3, v21\nv_lshl_add_u32 v21, v2, 1, v21\nv_lshlrev_b32 v21, 2, v21\nv_add_u32 v21, s83, v21")
    a("s_mul_i32 s8, s3, 3072")
    a("v_lshrrev_b32 v14, 3, v1\nv_mul_u32_u24 v22, 1536, v14\nv_and_b32 v14, 1, v2\nv_mul_u32_u24 v14, 768, v14\nv_add_u32 v22, v22, v14\nv_and_b32 v14, 7, v1\nv_lshl_add_u32 v22, v14, 5, v22")
    a(f"v_add_u32 v22, s8, v22")
    a("s_mul_i32 s8, s3, 384\nv_add_u32 v23, s8, v39")
    a("v_cmp_gt_u32 s[88:89], 24, v0")
    a("s_cmp_ge_u32 s10, 12\ns_cbranch_scc1 L_E_D")
    a("s_mul_i32 s84, s80, 192")
    out_voffset("s84", 32)
    a(f"s_mul_i32 s85, s11, 576\ns_add_u32 s85, s85, {WS_Y}")
    a(f"s_mul_i32 s12, s11, 3\ns_add_u32 s12, s12, s80\ns_lshl_b32 s12, s12, 5\ns_lshl_b32 s8, s3, 3\ns_add_u32 s12, s12, s8\ns_add_u32 s12, s12, {WS_YS}")
    a(f"s_lshr_b32 s8, s11, 1\ns_lshl_b32 s8, s8, 8\ns_add_u32 s86, s8, {WS_ML}")
    a("v_lshlrev_b32 v25, 4, v1")
    a.label("L_mlretry")
    a("buffer_load_dwordx4 v[64:67], v25, s[64:67], s86 offen sc1")
    T.drain()
    untag([64, 65, 66, 67], 68)
    check_retry(68, "L_mlretry", 2)
    a("s_bitcmp1_b32 s11, 0\ns_cselect_b64 vcc, -1, 0")
    a("v_cndmask_b32 v64, v64, v66, vcc\nv_cndmask_b32 v65, v65, v67, vcc")
    a("v_mov_b32 v66, v64")
    def half8(op, r, t):
        a(f"{op}_dpp v{r}, v{r}, v{r} quad_perm:[1,0,3,2] row_mask:0xf bank_mask:0xf")
        a(f"{op}_dpp v{r}, v{r}, v{r} quad_perm:[2,3,0,1] row_mask:0xf bank_mask:0xf")
        a(f"{op}_dpp v{r}, v{r}, v{r} row_half_mirror row_mask:0xf bank_mask:0xf")
    half8("v_max_f32", 66, None)
    a(f"v_sub_f32 v64, v64, v66\nv_mul_f32 v64, {l2e}, v64\nv_exp_f32 v64, v64")
    a("v_mul_f32 v65, v65, v64")
    half8("v_add_f32", 65, None)
    a("v_rcp_f32 v65, v65")
    a("v_mul_f32 v64, v64, v65")
    a(f"s_lshl_b32 s8, s3, 6\ns_add_u32 s8, s8, {L_WT}\nv_lshlrev_b32 v14, 2, v1\nv_add_u32 v14, s8, v14")
    a("ds_write_b32 v14, v64")
    a("v_lshlrev_b32 v14, 5, v4\nv_add_u32 v14, s8, v14")
    a("s_waitcnt lgkmcnt(0)")
    a("ds_read_b128 v[88:91], v14\nds_read_b128 v[92:95], v14 offset:16")
    tile_swap(168)
    a(f"s_lshl_b32 s86, s11, 13\ns_lshl_b32 s8, s3, 7\ns_add_u32 s86, s86, s8\ns_add_u32 s86, s86, {WS_OPART}")
    a("v_lshlrev_b32 v25, 12, v4\nv_lshl_add_u32 v25, v5, 2, v25")
    a("v_lshlrev_b32 v26, 7, v4\nv_lshl_add_u32 v26, v5, 2, v26\nv_add_u32 v26, s83, v26")
    stamp(7)
    a.label("L_o1retry")
    for s_ in range(8):
        a(f"buffer_load_dword v{64+s_}, v25, s[64:67], s86 offen offset:{512*s_} sc1")
    a("s_waitcnt vmcnt(0)")
    untag(list(range(64, 72)), 72)
    check_retry(72, "L_o1retry", 3)
    stamp(8)
    a("s_waitcnt lgkmcnt(0)")
    a("v_mul_f32 v64, v64, v88\nv_mul_f32 v65, v65, v89")
    for s_ in range(2, 8, 2):
        a(f"v_fmac_f32 v64, v{64+s_}, v{88+s_}\nv_fmac_f32 v65, v{65+s_}, v{89+s_}")
    a("v_add_f32 v64, v64, v65\nv_cvt_pk_bf16_f32 v64, v64, v64")
    a("ds_write_b32 v26, v64")
    tile_mfma(T, 168, "s85", True)
    stamp(9)
    a("s_barrier")
    a.label("L_E_D")
    T.ops = [(o, True) for (o, _) in T.ops]
    a("s_mul_i32 s11, s4, 14\ns_add_u32 s11, s11, s10")
    a("s_cmp_ge_u32 s11, 108\ns_cbranch_scc1 L_fin")
    a("s_mul_i32 s8, s11, 171\ns_lshr_b32 s87, s8, 9")
    a("s_mul_i32 s8, s87, 3\ns_sub_u32 s80, s11, s8")
    a("s_lshl_b32 s8, s87, 7\ns_lshl_b32 s9, s3, 5\ns_add_u32 s8, s8, s9\ns_mul_i32 s8, s8, 1152\ns_mul_i32 s9, s80, 384\ns_add_u32 s81, s8, s9")
    a(f"s_add_u32 s82, s81, {16*1152}")
    w2l = tile_loads(104, 60, ["s81", "s82"])
    for k in range(12):
        T.issue(w2l[k], window=WE2)
    a("s_mul_i32 s84, s80, 192")
    out_voffset("s84", 36)
    a(f"s_mul_i32 s85, s87, 576\ns_add_u32 s85, s85, {WS_OP}")
    T.drain()
    stamp(10)
    tile_swap(104)
    a(f"v_and_b32 v25, 7, v0\nv_lshlrev_b32 v25, 4, v25\ns_mov_b32 s86, {WS_ST}")
    a.label("L_stretry")
    a("buffer_load_dwordx4 v[64:67], v25, s[64:67], s86 offen sc1\ns_waitcnt vmcnt(0)")
    untag([64, 65, 66, 67], 68)
    check_retry(68, "L_stretry", 4)
    row_allreduce("v_add_f32", [64, 65, 66, 67], steps=(4, 2, 1))
    a("v_and_b32 v14, 1, v2\nv_cmp_eq_u32 vcc, 1, v14")
    a("v_cndmask_b32 v64, v64, v66, vcc\nv_cndmask_b32 v65, v65, v67, vcc")
    a(f"v_mul_f32 v64, {float_lit(1/576)}, v64\nv_mul_f32 v65, {float_lit(1/576)}, v65")
    a("v_fma_f32 v65, -v64, v64, v65\nv_max_f32 v65, 0, v65")
    bf16r(65, 65)
    a(f"v_add_f32 v65, {float_lit(1e-5)}, v65")
    bf16r(65, 65)
    a("v_sqrt_f32 v65, v65")
    bf16r(65, 65)
    a("v_rcp_f32 v27, v65")
    a(f"s_lshl_b32 s8, s87, 14\ns_lshl_b32 s9, s3, 7\ns_add_u32 s8, s8, s9\ns_add_u32 s8, s8, {WS_GP}")
    a("s_add_u32 s9, s8, 4096\ns_add_u32 s11, s8, 8192\ns_add_u32 s86, s8, 12288")
    a("v_lshlrev_b32 v25, 9, v2\nv_lshl_add_u32 v25, v1, 3, v25")
    a("v_and_b32 v14, 1, v2\nv_lshlrev_b32 v26, 7, v14\nv_lshl_add_u32 v26, v1, 3, v26\nv_lshl_add_u32 v26, v4, 2, v26\nv_add_u32 v26, s83, v26")
    stamp(11)
    a.label("L_gretry")
    for rg in range(8):
        so = ["s8", "s9", "s11", "s86"][rg // 2]
        a(f"buffer_load_dwordx2 v[{64+2*rg}:{65+2*rg}], v25, s[64:67], {so} offen offset:{2048*(rg%2)} sc1")
    a("s_waitcnt vmcnt(0)")
    untag(list(range(64, 80)), 80)
    check_retry(80, "L_gretry", 5)
    stamp(12)
    for k in range(0, 16, 4):
        a(f"v_pk_add_f32 v[{64+k}:{65+k}], v[{64+k}:{65+k}], v[{66+k}:{67+k}]")
    a("v_pk_add_f32 v[64:65], v[64:65], v[68:69]\nv_pk_add_f32 v[72:73], v[72:73], v[76:77]")
    a("v_pk_add_f32 v[64:65], v[64:65], v[72:73]")
    a("v_permlane32_swap_b32 v64, v65")
    a("v_mul_f32 v64, v64, v27\nv_mul_f32 v65, v65, v27")
    a("v_cvt_pk_bf16_f32 v66, v64, v65\nv_lshlrev_b32 v64, 16, v66\nv_and_b32 v65, 0xffff0000, v66")
    a(f"v_mul_f32 v66, {float_lit(-1.4426950408889634)}, v64\nv_exp_f32 v66, v66")
    a("v_add_f32 v66, 1.0, v66\nv_rcp_f32 v66, v66")
    a("v_mul_f32 v64, v64, v66")
    bf16r(64, 64)
    a("v_mul_f32 v64, v64, v65\nv_cvt_pk_bf16_f32 v64, v64, v64")
    a("ds_write_b32 v26, v64")
    tile_mfma(T, 104, "s85", False)
    stamp(13)
    a("s_branch L_fin")

    a.label("L_F")
    T = Tbr.fork()
    a("s_cmp_ge_u32 s3, 2\ns_cselect_b32 s56, s30, s28\ns_cselect_b32 s57, s31, s29\ns_and_b32 s57, s57, 0xffff")
    a(f"s_mov_b32 s58, {576*4608*2}\ns_mov_b32 s59, 0x00020000")
    a("v_mul_u32_u24 v20, 9216, v2\nv_lshl_add_u32 v20, v1, 4, v20")
    a(f"s_mul_i32 s81, s4, {72*9216}\ns_lshl_b32 s9, s5, 9\ns_add_u32 s81, s81, s9\ns_and_b32 s9, s3, 1\ns_lshl_b32 s9, s9, 8\ns_add_u32 s81, s81, s9")
    gl = []
    def gload(t, window):
        gl.append(T.issue(f"buffer_load_dwordx4 v[{168+4*t}:{171+4*t}], v20, s[56:59], s81 offen nt", window=window))
        a(f"s_add_u32 s81, s81, {4*9216}")
    a("v_mul_u32_u24 v21, 1152, v4\nv_lshl_add_u32 v21, v5, 3, v21\ns_mul_i32 s8, s4, 144")
    xres = T.issue("buffer_load_dwordx2 v[26:27], v21, s[68:71], s8 offen")
    ng = [0]
    def betweenF(u):
        if u >= 16 - WF0 and ng[0] < WF0:
            gload(ng[0], None); ng[0] += 1
    pv_and_publish(T, betweenF, "L_noopF")
    while ng[0] < 18:
        gload(ng[0], WF0 if ng[0] < NF0 + WF0 else WF); ng[0] += 1
    a(f"s_lshl_b32 s8, s4, 5\ns_lshl_b32 s9, s3, 3\ns_add_u32 s8, s8, s9\ns_mul_i32 s82, s8, 576\ns_add_u32 s82, s82, {WS_Y}")
    a("v_mul_u32_u24 v21, 288, v4\nv_lshl_add_u32 v21, v5, 4, v21")
    a(f"s_mul_i32 s83, s3, 768\ns_add_u32 s83, s83, {WS_YS}")
    a("s_lshl_b32 s8, s3, 10\nv_add_u32 v22, s8, v39")
    a(f"s_mul_i32 s84, s3, 640\ns_add_u32 s84, s84, {L_XT}")
    a("v_mul_u32_u24 v23, 320, v4\nv_lshl_add_u32 v23, v5, 2, v23\nv_add_u32 v23, s84, v23")
    a("v_lshrrev_b32 v14, 3, v1\nv_mul_u32_u24 v24, 320, v14\nv_mul_u32_u24 v14, 80, v2\nv_add3_u32 v24, v24, v14, s84")
    a(f"v_add_u32 v25, {L_H}, v21")
    a(f"s_lshl_b32 s8, s3, 3\ns_add_u32 s8, s8, {L_YS}\nv_and_b32 v14, 1, v0\nv_lshlrev_b32 v16, 2, v14\nv_add_u32 v16, s8, v16")
    a(f"v_lshlrev_b32 v17, 2, v4\nv_add_u32 v17, {L_YS}, v17")
    stamp(7)
    a.label("L_yretry")
    a("s_mov_b32 exec_lo, 0x3ffff\ns_mov_b32 exec_hi, 0x3ffff")
    for k in range(8):
        a(f"buffer_load_dwordx4 v[{40+4*k}:{43+4*k}], v21, s[64:67], s82 offen offset:{576*k} sc1")
    a("s_mov_b32 exec_lo, -1\ns_mov_b32 exec_hi, 0xffff")
    a("buffer_load_dwordx4 v[72:75], v39, s[64:67], s83 offen sc1")
    a("s_mov_b64 exec, -1\nv_mov_b32 v76, 0\nv_mov_b32 v77, 0")
    T.drain()
    a("s_mov_b32 exec_lo, -1\ns_mov_b32 exec_hi, 0xffff")
    a("v_xor_b32 v72, v30, v72\nv_xor_b32 v74, v30, v74\nv_xor_b32 v73, s78, v73\nv_xor_b32 v75, s78, v75")
    a("v_or_b32 v73, v73, v75\nv_cmp_ne_u32 vcc, 0, v73\nv_cndmask_b32 v73, 0, 1, vcc")
    a("v_or3_b32 v76, v72, v74, v73\nv_add_f32 v77, v72, v74")
    a("s_mov_b32 exec_lo, 0x3ffff\ns_mov_b32 exec_hi, 0x3ffff")
    untag(list(range(40, 72)), 76, first=False)
    a("s_mov_b64 exec, -1")
    check_retry(76, "L_yretry", 6)
    stamp(8)
    for k in range(0, 8, 2):
        a(f"v_pk_add_f32 v[{40+4*k}:{41+4*k}], v[{40+4*k}:{41+4*k}], v[{44+4*k}:{45+4*k}]\nv_pk_add_f32 v[{42+4*k}:{43+4*k}], v[{42+4*k}:{43+4*k}], v[{46+4*k}:{47+4*k}]")
    for k in (0, 4):
        a(f"v_pk_add_f32 v[{40+4*k}:{41+4*k}], v[{40+4*k}:{41+4*k}], v[{48+4*k}:{49+4*k}]\nv_pk_add_f32 v[{42+4*k}:{43+4*k}], v[{42+4*k}:{43+4*k}], v[{50+4*k}:{51+4*k}]")
    a("v_pk_add_f32 v[40:41], v[40:41], v[56:57]\nv_pk_add_f32 v[42:43], v[42:43], v[58:59]")
    a("ds_write_b128 v22, v[40:43]")
    row_allreduce("v_add_f32", [77], steps=(8, 4, 2))
    swap_reduce("v_add_f32", [77], [78], 16)
    swap_reduce("v_add_f32", [77], [78], 32)
    a("ds_write_b32 v16, v77")
    a("s_waitcnt lgkmcnt(0)\ns_barrier")
    for k in range(4):
        a(f"ds_read_b128 v[{40+4*k}:{43+4*k}], v39 offset:{1024*k}")
    for k in range(4):
        a(f"ds_read_b32 v{56+k}, v17 offset:{8*k}")
    a("v_lshlrev_b32 v60, 16, v26\nv_and_b32 v61, 0xffff0000, v26\nv_lshlrev_b32 v62, 16, v27\nv_and_b32 v63, 0xffff0000, v27")
    a("s_waitcnt lgkmcnt(0)")
    a("v_pk_add_f32 v[40:41], v[40:41], v[44:45]\nv_pk_add_f32 v[42:43], v[42:43], v[46:47]\nv_pk_add_f32 v[48:49], v[48:49], v[52:53]\nv_pk_add_f32 v[50:51], v[50:51], v[54:55]")
    a("v_add_f32 v56, v56, v57\nv_add_f32 v58, v58, v59")
    a("v_pk_add_f32 v[40:41], v[40:41], v[48:49]\nv_pk_add_f32 v[42:43], v[42:43], v[50:51]")
    a("v_add_f32 v56, v56, v58\nv_add_f32 v56, v56, v29")
    a(f"v_mul_f32 v56, {float_lit(1/576)}, v56")
    bf16r(56, 56)
    a("v_cvt_pk_bf16_f32 v44, v40, v41\nv_cvt_pk_bf16_f32 v45, v42, v43")
    a("v_lshlrev_b32 v40, 16, v44\nv_and_b32 v41, 0xffff0000, v44\nv_lshlrev_b32 v42, 16, v45\nv_and_b32 v43, 0xffff0000, v45")
    a("v_pk_add_f32 v[40:41], v[40:41], v[60:61]\nv_pk_add_f32 v[42:43], v[42:43], v[62:63]")
    a("v_cvt_pk_bf16_f32 v44, v40, v41\nv_cvt_pk_bf16_f32 v45, v42, v43")
    a("v_lshlrev_b32 v40, 16, v44\nv_and_b32 v41, 0xffff0000, v44\nv_lshlrev_b32 v42, 16, v45\nv_and_b32 v43, 0xffff0000, v45")
    for r in range(4):
        a(f"v_sub_f32 v{44+r}, v{40+r}, v56")
    a("s_mov_b32 exec_lo, 0x3ffff\ns_mov_b32 exec_hi, 0x3ffff")
    for r in range(4):
        a(f"v_cvt_pk_bf16_f32 v{48+r}, v{44+r}, v{44+r}\nds_write_b32 v23, v{48+r} offset:{80*r}")
    a("ds_write_b128 v25, v[40:43]")
    a("s_mov_b64 exec, -1")
    a("s_waitcnt lgkmcnt(0)")
    for q in range(5):
        a(f"ds_read_b128 v[{64+4*q}:{67+4*q}], v24 offset:{16*q}")
    a("s_waitcnt lgkmcnt(0)")
    for t in range(18):
        s0 = 84 + 4 * (t % 4)
        for j in range(4):
            a(f"v_and_b32 v{s0+j}, v{64+t}, v{32+j}")
        c = "0" if t == 0 else "v[240:243]"
        a(f"v_mfma_f32_16x16x32_bf16 v[240:243], v[{s0}:{s0+3}], v[{168+4*t}:{171+4*t}], {c}")
        if t == 1:
            a("s_cmp_lg_u32 s5, 0\ns_cbranch_scc1 L_nost\ns_cmp_lg_u32 s3, 3\ns_cbranch_scc1 L_nost")
            a("v_add_f32 v52, v44, v45\nv_add_f32 v53, v46, v47\nv_mul_f32 v54, v44, v44\nv_mul_f32 v55, v45, v45")
            a("v_fmac_f32 v54, v46, v46\nv_fmac_f32 v55, v47, v47\nv_add_f32 v52, v52, v53\nv_add_f32 v53, v54, v55")
            a("v_cmp_gt_u32 vcc, 18, v5\nv_cndmask_b32 v52, 0, v52, vcc\nv_cndmask_b32 v53, 0, v53, vcc")
            row_allreduce("v_add_f32", [52, 53])
            swap_reduce("v_add_f32", [52, 53], [54, 55], 16)
            a("v_mov_b32 v54, v52\nv_mov_b32 v55, v53")
            a("v_permlane32_swap_b32 v52, v54\nv_permlane32_swap_b32 v53, v55")
            tag([52, 53, 54, 55])
            a(f"s_lshl_b32 s8, s4, 4\ns_add_u32 s8, s8, {WS_ST}\nv_mov_b32 v14, 0\ns_mov_b64 exec, 1")
            T.issue("buffer_store_dwordx4 v[52:55], v14, s[64:67], s8 offen sc1", cond=True)
            a("s_mov_b64 exec, -1")
            a.label("L_nost")
    a("s_lshl_b32 s8, s5, 1\ns_and_b32 s9, s3, 1\ns_add_u32 s8, s8, s9\ns_lshl_b32 s8, s8, 3\ns_add_u32 s8, s8, s4\ns_lshl_b32 s8, s8, 1\ns_lshr_b32 s9, s3, 1\ns_add_u32 s8, s8, s9")
    a(f"s_lshl_b32 s8, s8, 10\ns_add_u32 s8, s8, {WS_GP}")
    tag([240, 241, 242, 243])
    T.issue("buffer_store_dwordx4 v[240:243], v38, s[64:67], s8 offen sc1")
    stamp(9)
    a("s_cmp_lg_u32 s3, 0\ns_cbranch_scc1 L_fin")
    srd(72, 34, 2304)
    a(f"s_mul_i32 s8, s4, {36*576}\ns_lshl_b32 s9, s5, 5\ns_add_u32 s8, s8, s9\ns_add_u32 s8, s8, {WS_OP}")
    a("v_lshrrev_b32 v14, 3, v0\nv_mul_u32_u24 v21, 576, v14\nv_and_b32 v14, 7, v0\nv_lshl_add_u32 v21, v14, 2, v21")
    a(f"s_add_u32 s10, s9, {L_H}\nv_lshlrev_b32 v15, 2, v14\nv_add_u32 v15, s10, v15\nds_read_b32 v60, v15")
    for i in range(1, 5):
        a(f"s_add_u32 s{80+i}, s8, {8*576*i}")
    a("s_cmp_ge_u32 s5, 9\ns_cselect_b32 s10, 504, 0\ns_mul_i32 s11, s4, 72\ns_add_u32 s10, s10, s11\ns_lshl_b32 s11, s5, 3\ns_add_u32 s10, s10, s11\ns_lshl_b32 s10, s10, 1")
    a("v_lshlrev_b32 v22, 1, v14")
    a.label("L_rretry")
    a("buffer_load_dword v40, v21, s[64:67], s8 offen sc1")
    for i in range(1, 4):
        a(f"buffer_load_dword v{40+i}, v21, s[64:67], s{80+i} offen sc1")
    a("v_mov_b32 v44, v30\ns_mov_b32 exec_hi, 0")
    a("buffer_load_dword v44, v21, s[64:67], s84 offen sc1")
    a("s_mov_b64 exec, -1\ns_waitcnt vmcnt(0)")
    untag([40, 41, 42, 43, 44], 45)
    check_retry(45, "L_rretry", 7)
    stamp(12)
    a("v_add_f32 v40, v40, v41\nv_add_f32 v42, v42, v43\nv_add_f32 v40, v40, v44\nv_add_f32 v40, v40, v42")
    row_allreduce("v_add_f32", [40], steps=(8,))
    swap_reduce("v_add_f32", [40], [41], 16)
    swap_reduce("v_add_f32", [40], [41], 32)
    bf16r(40, 40)
    a("s_waitcnt lgkmcnt(0)")
    a("v_add_f32 v40, v40, v60\nv_cvt_pk_bf16_f32 v40, v40, v40")
    a("s_mov_b64 exec, 0xff")
    a("buffer_store_short v40, v22, s[72:75], s10 offen")
    a("s_cmp_lg_u32 s2, 0\ns_cbranch_scc1 L_fin")
    a("s_mov_b64 exec, 1\nv_mov_b32 v41, s78\nv_mov_b32 v42, 0")
    a("buffer_store_dword v41, v42, s[64:67], 0 offen sc1")
    a.label("L_fin")
    if stamps:
        a("s_mov_b64 exec, -1")
        stamp(14)
        a(f"v_writelane_b32 v31, s79, 15")
        a(f"s_lshl_b32 s8, s2, 2\ns_add_u32 s8, s8, s3\ns_lshl_b32 s8, s8, 8\ns_add_u32 s8, s8, {WS_STAMP}")
        a("buffer_store_dword v31, v9, s[64:67], s8 offen")
    a.label("L_end")
    a("s_endpgm")
    L, n = hazard.fix(a.L)
    body = "\n".join(L) + "\n"
    if codepf:
        body = body.replace("    .CODEPF_GUARD\n",
            "    s_cmp_ge_u32 s8, (L_end - " + NAME + "_kernel)\n    s_cbranch_scc1 L_nopf\n"
            "    v_add_u32 v31, s8, v3\n" if False else
            "    v_add_u32 v4, s8, v3\n"
            "    v_cmp_gt_u32 vcc, (L_end - " + NAME + "_kernel - 64), v4\n"
            "    s_and_saveexec_b64 s[100:101], vcc\n"
            "    s_cbranch_execz L_nopf\n"
            "    global_load_dword v255, v3, s[98:99]\n"
            "L_nopf:\n"
            "    s_mov_b64 exec, -1\n")
    lds = max(L_END, lds_force)
    return wrap(body, 256, 256, lds, 256)

import struct
def float_lit(x):
    return "0x%08x" % struct.unpack("<I", struct.pack("<f", x))[0]

if __name__ == "__main__":
    out = sys.argv[1] if len(sys.argv) > 1 else "k.s"
    kw = {}
    for arg in sys.argv[2:]:
        k, v = arg.split("=")
        kw[k] = int(v)
    open(out, "w").write(gen(**kw))
    print("wrote", out, "LDS", L_END, "WS_END", hex(WS_END))
```

```python
import sys, copy
from asmlib import *
import hazard

WS_EPOCH = 0
WS0 = 0x40000
XR = 0x40000
WS_QP = WS0
WS_OPART = WS0 + 0x8000
WS_ML = WS0 + 0x10000
WS_Y = WS0 + 0x11000
WS_OP = WS0 + 0x17000
WS_GA = WS0 + 0x1E000
WS_END = WS0 + 8 * XR
WS_STAMP = 0x8000000

L_K = 0
L_RED = 0
L_RED2 = 65536
L_XN = L_RED2 + 4096
L_QB = L_XN + 4 * 768
L_PT = L_QB + 512
L_MX = L_PT + 2048
L_XT = L_MX + 128
L_WT = L_XT + 4 * 640
L_H = L_WT + 256
L_YS = L_H + 576
L_END = L_YS + 64

TAGMASK = 0x3FF
POLL_MAX = 400000

class Tracker:
    def __init__(self, a):
        self.a = a; self.ops = []; self.n = 0
    def issue(self, ins, cond=False, window=None):
        if window is not None:
            cnt = sum(1 for (_, c) in self.ops if not c)
            if cnt >= window:
                self.a(f"s_waitcnt vmcnt({window-1})")
                self._retire_to(window - 1)
        self.a(ins)
        self.n += 1
        self.ops.append((self.n, cond))
        return self.n
    def _retire_to(self, k):
        keep = []; c = 0
        for op in reversed(self.ops):
            if c >= k: break
            keep.append(op)
            if not op[1]: c += 1
        self.ops = list(reversed(keep))
    def wait(self, opid):
        ids = [o for (o, _) in self.ops]
        if opid not in ids: return
        after = sum(1 for (o, c) in self.ops if o > opid and not c)
        self.a(f"s_waitcnt vmcnt({min(after, 63)})")
        self.ops = [(o, c) for (o, c) in self.ops if o > opid]
    def drain(self):
        self.a("s_waitcnt vmcnt(0)"); self.ops = []
    def fork(self):
        t = Tracker(self.a); t.ops = list(self.ops); t.n = self.n; return t

def gen(W=6, WE=12, WF=6, WFP=2, WE2=10, NK0=6, NKQ=0, NV0=6, WVT=10, dual=1, mlearly=0, woearly=0, pretouch=0, psleep=0, stsleep=0, stamps=False, lds_force=0, codepf=True):
    a = Asm()
    T = Tracker(a)
    nst = [0]
    def stamp(i):
        if stamps:
            a(f"s_memrealtime s[90:91]\ns_waitcnt lgkmcnt(0)\nv_writelane_b32 v31, s90, {i}")
    def srd(d, p, size):
        a(f"s_mov_b32 s{d}, s{p}\ns_and_b32 s{d+1}, s{p+1}, 0xffff\ns_mov_b32 s{d+2}, {size}\ns_mov_b32 s{d+3}, 0x00020000")
    def row_allreduce(op, regs, tmp=None, steps=(8, 4, 2, 1)):
        for st in steps:
            for r in regs:
                a(f"{op}_dpp v{r}, v{r}, v{r} row_ror:{st} row_mask:0xf bank_mask:0xf")
    def swap_reduce(op, regs, tmps, which):
        for r, t in zip(regs, tmps):
            a(f"v_mov_b32 v{t}, v{r}")
        for r, t in zip(regs, tmps):
            a(f"v_permlane{which}_swap_b32 v{r}, v{t}")
        for r, t in zip(regs, tmps):
            a(f"{op} v{r}, v{r}, v{t}")
    def bf16r(dst, src):
        a(f"v_cvt_pk_bf16_f32 v{dst}, v{src}, v{src}\nv_and_b32 v{dst}, 0xffff0000, v{dst}")
    def tag(regs, q=False):
        for r in regs:
            a(f"v_bfi_b32 v{r}, {'63' if q else 's77'}, v30, v{r}")
    def untag(regs, acc, first=True, q=False):
        for r in regs:
            a(f"v_xor_b32 v{r}, {'s75' if q else 'v30'}, v{r}")
        rs = list(regs)
        if first:
            if len(rs) >= 2:
                a(f"v_or_b32 v{acc}, v{rs[0]}, v{rs[1]}"); rs = rs[2:]
            else:
                a(f"v_mov_b32 v{acc}, v{rs[0]}"); rs = rs[1:]
        while len(rs) >= 2:
            a(f"v_or3_b32 v{acc}, v{acc}, v{rs[0]}, v{rs[1]}"); rs = rs[2:]
        if rs:
            a(f"v_or_b32 v{acc}, v{acc}, v{rs[0]}")
    def check_retry(acc, retry_label, code, q=False):
        ok = a.newlabel("L_ok")
        a(f"v_and_b32 v{acc}, {'63' if q else 's77'}, v{acc}\nv_cmp_ne_u32 vcc, 0, v{acc}")
        a(f"s_cbranch_vccz {ok}")
        a(f"s_add_u32 s79, s79, 1\ns_cmp_lt_u32 s79, {POLL_MAX}\ns_cbranch_scc1 {retry_label}")
        a.label(ok)

    def publish(Tk, ins, cond=False, local=False):
        Tk.issue(ins + " sc1", cond=cond)
        if local and dual:
            Tk.issue(ins, cond=cond)
    class Gather:
        def __init__(g, loads, masks=None, base=None, tmp=None, q=False):
            g.loads = loads; g.tmp = tmp; g.q = q
            g.base = base or [(-1, -1)] * len(loads)
        def issue(g, Tk=None):
            cur = (-1, -1); ids = []
            for (ins, _), b in zip(g.loads, g.base):
                if b != cur:
                    a(f"s_mov_b32 exec_lo, {b[0]}\ns_mov_b32 exec_hi, {b[1]}"); cur = b
                if Tk: ids.append(Tk.issue(ins))
                else: a(ins)
            if cur != (-1, -1): a("s_mov_b64 exec, -1")
            return ids
        def check(g):
            mk = '63' if g.q else 's77'
            groups = []
            for (ins, regs), b in zip(g.loads, g.base):
                if groups and groups[-1][0] == b: groups[-1][1].extend(regs)
                else: groups.append((b, list(regs)))
            first = True
            if groups[0][0] != (-1, -1):
                a(f"v_mov_b32 v{g.tmp}, 0")
            for b, regs in groups:
                if b != (-1, -1): a(f"s_mov_b32 exec_lo, {b[0]}\ns_mov_b32 exec_hi, {b[1]}")
                untag(regs, g.tmp, first=first, q=g.q); first = False
                if b != (-1, -1): a("s_mov_b64 exec, -1")
            a(f"v_and_b32 v{g.tmp}, {mk}, v{g.tmp}\nv_cmp_ne_u32 vcc, 0, v{g.tmp}")
        def loop(g, sleep=0):
            lc = a.newlabel("L_gc"); ld = a.newlabel("L_gd"); lr = a.newlabel("L_gr")
            a(f"s_branch {lc}")
            a.label(lr)
            if sleep or psleep: a(f"s_sleep {max(sleep, psleep)}")
            g.issue()
            a("s_waitcnt vmcnt(0)")
            a.label(lc)
            g.check()
            a(f"s_cbranch_vccz {ld}")
            a(f"s_add_u32 s79, s79, 1\ns_cmp_lt_u32 s79, {POLL_MAX}\ns_cbranch_scc1 {lr}")
            a.label(ld)
    MK = [16, 18, 20, 22, 24, 26, 28, 30]
    MK2 = [32, 34, 36, 38, 44, 46, 92, 94]
    def blkbase(dst, sblk):
        a(f"s_mul_i32 s8, {sblk}, 441\ns_lshr_b32 s8, s8, 11")
        a(f"s_mul_i32 s9, s8, 14\ns_add_u32 s9, s9, 2\ns_mul_i32 s9, s9, 171\ns_lshr_b32 s9, s9, 9")
        a(f"s_sub_u32 s9, {sblk}, s9\ns_mul_i32 s9, s9, 0x6400\ns_lshl_b32 s8, s8, 18\ns_add_u32 {dst}, s8, s9\ns_add_u32 {dst}, {dst}, {WS_GA}")
    a("s_cmp_ge_u32 s2, 256\ns_cbranch_scc1 L_end")
    a("s_load_dwordx16 s[16:31], s[0:1], 0\ns_load_dwordx8 s[32:39], s[0:1], 64")
    if stamps:
        a("s_memrealtime s[90:91]\nv_mov_b32 v31, 0")
    a("v_lshrrev_b32 v1, 6, v0\nv_and_b32 v0, 63, v0")
    a("v_readfirstlane_b32 s3, v1")
    if codepf:
        a("s_getpc_b64 s[98:99]")
        a("v_lshlrev_b32 v3, 7, v0")
        a("s_lshl_b32 s8, s3, 13\ns_add_u32 s98, s98, s8\ns_addc_u32 s99, s99, 0")
        a(".CODEPF_GUARD")
    a("s_and_b32 s4, s2, 7\ns_lshr_b32 s5, s2, 3")
    a("s_lshr_b32 s6, s5, 4\ns_lshl_b32 s7, s4, 1\ns_add_u32 s6, s6, s7")
    a("s_and_b32 s7, s5, 15")
    a(f"s_lshl_b32 s99, s4, 18\ns_mul_i32 s98, s4, {0x40000-0x8000}")
    a("v_and_b32 v1, 15, v0\nv_lshrrev_b32 v2, 4, v0")
    a("v_lshrrev_b32 v4, 5, v0\nv_and_b32 v5, 31, v0")
    a("v_mul_u32_u24 v6, 36, v5\nv_mul_u32_u24 v7, 1152, v4\nv_add_u32 v6, v6, v7")
    a("v_lshl_add_u32 v7, v5, 1, v7")
    a("v_mul_u32_u24 v8, 8192, v2\nv_lshl_add_u32 v8, v1, 4, v8")
    a("s_mov_b32 s77, 0x3ff\ns_mov_b32 s79, 0")
    a("s_waitcnt lgkmcnt(0)")
    if stamps:
        a("v_writelane_b32 v31, s90, 0")
    a("s_load_dword s78, s[38:39], 0")
    srd(68, 16, 2304)
    srd(48, 22, 576 * 4096 * 2)
    srd(64, 38, 256 << 20)
    x0 = T.issue("buffer_load_dwordx4 v[60:63], v6, s[68:71], 0 offen")
    x1 = T.issue("buffer_load_dwordx4 v[64:67], v6, s[68:71], 0 offen offset:16")
    x2 = T.issue("buffer_load_dword v68, v6, s[68:71], 0 offen offset:32")
    a("s_lshr_b32 s9, s7, 1\ns_mul_i32 s10, s9, 144")
    xr = []
    for k in range(3):
        xr.append(T.issue(f"buffer_load_ushort v{69+k}, v7, s[68:71], s10 offen offset:{64*k}"))
    a("s_and_b32 s8, s7, 1\ns_lshl_b32 s11, s6, 1\ns_add_u32 s11, s8, s11")
    a("s_lshl_b32 s8, s11, 8")
    a("s_mul_i32 s12, s9, 72\ns_lshl_b32 s10, s3, 2\ns_add_u32 s12, s12, s10\ns_lshl_b32 s12, s12, 13\ns_add_u32 s8, s8, s12")
    wq = []
    for i in range(5):
        if i == 4:
            a("s_cmp_ge_u32 s3, 2\ns_cselect_b32 s8, 0x7fffffff, s8")
        wq.append(T.issue(f"buffer_load_dwordx4 v[{40+4*i}:{43+4*i}], v8, s[48:51], s8 offen nt"))
        if i < 4: a(f"s_add_u32 s8, s8, {16*8192}")
    a(f"s_lshl_b32 s13, s11, 3\ns_add_u32 s13, s13, s9\ns_lshl_b32 s13, s13, 10\ns_add_u32 s13, s13, {WS_QP}\ns_add_u32 s13, s13, s98")
    srd(40, 18, 64 << 20); srd(44, 20, 64 << 20)
    if pretouch:
        a("s_cmp_lg_u32 s3, 2\ns_cbranch_scc1 L_nopt")
        a(f"s_lshl_b32 s8, s5, 13\ns_add_u32 s8, s8, s99\ns_add_u32 s8, s8, {WS0}\nv_lshlrev_b32 v14, 7, v0")
        T.issue("buffer_load_dword v254, v14, s[64:67], s8 offen sc1", cond=True)
        a.label("L_nopt")
    a("s_lshr_b32 s8, s7, 3\ns_lshl_b32 s14, s8, 25\ns_lshl_b32 s9, s6, 21\ns_add_u32 s14, s14, s9")
    a("s_and_b32 s9, s7, 7\ns_lshl_b32 s9, s9, 14\ns_add_u32 s14, s14, s9\ns_lshl_b32 s9, s3, 12\ns_add_u32 s14, s14, s9")
    a(f"s_add_u32 s14, s14, {6144*256}\ns_mov_b32 s15, s14")
    for k in range(4):
        a(f"v_add_u32 v{10+k}, {4*k}, v2\nv_xor_b32 v{10+k}, v{10+k}, v1\nv_lshlrev_b32 v{10+k}, 4, v{10+k}\nv_lshl_add_u32 v{10+k}, v2, 8, v{10+k}")
    a("s_lshl_b32 s100, s3, 14")
    kops = []
    def kload(i, window):
        if i % 4 == 0:
            a(f"s_add_u32 s101, s100, {(i//4)*4096}\ns_mov_b32 m0, s101")
        kops.append(T.issue(f"buffer_load_dwordx4 v{10+i%4}, s[40:43], s14 offen offset:{(i%4)*1024} nt lds", window=window))
        if i % 4 == 3:
            a("s_add_u32 s14, s14, 131072")
    for i in range(NK0):
        kload(i, None)
    a("v_and_b32 v14, 1, v1\nv_cmp_eq_u32 vcc, 1, v14\nv_mov_b32 v15, 0xffff\nv_mov_b32 v16, 0xffff0000\nv_cndmask_b32 v14, v15, v16, vcc")
    a("v_bfe_u32 v15, v1, 1, 2")
    for j in range(4):
        a(f"v_cmp_eq_u32 vcc, {j}, v15\nv_cndmask_b32 v{32+j}, 0, v14, vcc")
    a("v_and_b32 v15, 1, v15")
    a("v_cmp_eq_u32 vcc, 0, v15\nv_cndmask_b32 v36, 0, v14, vcc\nv_cmp_eq_u32 vcc, 1, v15\nv_cndmask_b32 v37, 0, v14, vcc")
    a("v_cmp_eq_u32 s[92:93], 1, v2\nv_cmp_eq_u32 s[94:95], 2, v2\nv_cmp_eq_u32 s[96:97], 3, v2")
    a("v_lshrrev_b32 v14, 1, v2\nv_lshlrev_b32 v38, 9, v14\nv_lshl_add_u32 v38, v1, 5, v38\nv_and_b32 v14, 1, v2\nv_lshl_add_u32 v38, v14, 4, v38")
    a("v_lshlrev_b32 v39, 4, v0")
    a("v_lshlrev_b32 v9, 2, v0")
    T.wait(x2)
    for k in range(9):
        a(f"v_and_b32 v{73+2*k}, 0xffff0000, v{60+k}\nv_lshlrev_b32 v{72+2*k}, 16, v{60+k}")
    a("v_add_f32 v14, v72, v73")
    a("v_add_f32 v15, v74, v75")
    for k in range(4, 18, 2):
        a(f"v_add_f32 v14, v14, v{72+k}\nv_add_f32 v15, v15, v{73+k}")
    a("v_add_f32 v14, v14, v15")
    row_allreduce("v_add_f32", [14])
    swap_reduce("v_add_f32", [14], [15], 16)
    a(f"v_mul_f32 v14, {float_lit(1/576)}, v14")
    a("v_mov_b32 v29, v14")
    a("v_mov_b32 v15, 0\nv_mov_b32 v16, 0")
    for k in range(0, 18, 2):
        a(f"v_sub_f32 v{72+k}, v{72+k}, v14\nv_sub_f32 v{73+k}, v{73+k}, v14")
        a(f"v_fmac_f32 v15, v{72+k}, v{72+k}\nv_fmac_f32 v16, v{73+k}, v{73+k}")
    a("v_add_f32 v15, v15, v16")
    row_allreduce("v_add_f32", [15])
    swap_reduce("v_add_f32", [15], [16], 16)
    a(f"v_mul_f32 v15, {float_lit(1/576)}, v15")
    bf16r(15, 15)
    a(f"v_add_f32 v15, {float_lit(1e-5)}, v15")
    bf16r(15, 15)
    a("v_sqrt_f32 v15, v15")
    bf16r(15, 15)
    a("v_rcp_f32 v15, v15")
    bf16r(14, 14)
    T.wait(xr[2])
    a(f"s_mul_i32 s8, s3, 768\ns_add_u32 s8, s8, {L_XN}")
    a("v_mul_u32_u24 v16, 384, v4\nv_lshl_add_u32 v16, v5, 2, v16\nv_add_u32 v16, s8, v16")
    for k in range(3):
        r = 69 + k
        a(f"v_lshlrev_b32 v{r}, 16, v{r}\nv_sub_f32 v{r}, v{r}, v14")
        bf16r(r, r)
        a(f"v_mul_f32 v{r}, v{r}, v15\nv_cvt_pk_bf16_f32 v{r}, v{r}, v{r}")
        a(f"ds_write_b32 v16, v{r} offset:{128*k}")
    a("v_lshrrev_b32 v17, 3, v1\nv_mul_u32_u24 v17, 384, v17\nv_lshl_add_u32 v17, v2, 2, v17\ns_lshl_b32 s9, s3, 4\ns_add_u32 s8, s8, s9\nv_add_u32 v17, s8, v17")
    a("s_waitcnt lgkmcnt(0)")
    a("s_add_u32 s78, s78, 1\ns_and_b32 s76, s78, 0x3ff\nv_mov_b32 v30, s76\ns_and_b32 s75, s78, 63")
    for i in range(5):
        a(f"ds_read_b32 v{60+i}, v17 offset:{64*i}")
    a("s_waitcnt lgkmcnt(0)")
    stamp(1)
    for i in range(5):
        for j in range(4):
            a(f"v_and_b32 v{72+4*i+j}, v{60+i}, v{32+j}")
    for i in range(5):
        T.wait(wq[i])
        c = "0" if i == 0 else "v[96:99]"
        a(f"v_mfma_f32_16x16x32_bf16 v[96:99], v[{72+4*i}:{75+4*i}], v[{40+4*i}:{43+4*i}], {c}")
    for i in range(NK0, NK0 + NKQ):
        kload(i, None)
    a(f"s_lshl_b32 s8, s3, 10\ns_add_u32 s8, s8, {L_RED2}\nv_add_u32 v18, s8, v39")
    a(f"v_add_u32 v19, {L_RED2}, v39")
    a("ds_write_b128 v18, v[96:99]")
    a("s_waitcnt lgkmcnt(0)\ns_barrier")
    a("s_cmp_lg_u32 s3, 3\ns_cbranch_scc1 L_noq")
    for k in range(4):
        a(f"ds_read_b128 v[{72+4*k}:{75+4*k}], v19 offset:{1024*k}")
    a("s_waitcnt lgkmcnt(0)")
    for r in range(4):
        a(f"v_add_f32 v{72+r}, v{72+r}, v{76+r}\nv_add_f32 v{80+r}, v{80+r}, v{84+r}")
    for r in range(4):
        a(f"v_add_f32 v{72+r}, v{72+r}, v{80+r}")
    tag([72, 73, 74, 75], q=True)
    publish(T, "buffer_store_dwordx4 v[72:75], v38, s[64:67], s13 offen", cond=True, local=True)
    a.label("L_noq")
    stamp(2)
    for i in range(NK0 + NKQ, 16):
        kload(i, W)
    a("s_lshr_b32 s8, s3, 1\ns_lshl_b32 s9, s6, 1\ns_add_u32 s8, s8, s9\ns_lshl_b32 s8, s8, 13")
    a("s_lshr_b32 s9, s7, 3\ns_lshl_b32 s9, s9, 9\ns_add_u32 s8, s8, s9\ns_and_b32 s9, s3, 1\ns_lshl_b32 s9, s9, 8\ns_add_u32 s8, s8, s9")
    a(f"s_add_u32 s8, s8, {WS_QP}\ns_add_u32 s8, s8, s98\ns_add_u32 s9, s8, 4096")
    def qgather(Tk, window=None):
        ids = []
        for r in range(8):
            ids.append(Tk.issue(f"buffer_load_dword v{40+r}, v9, s[64:67], {'s8' if r < 4 else 's9'} offen offset:{(r%4)*1024} sc1"))
        return ids
    qg = qgather(T)
    vops = []
    def vload(i, window):
        if i >= 16: return
        vops.append(T.issue(f"buffer_load_dwordx4 v[{104+4*i}:{107+4*i}], v39, s[44:47], s15 offen offset:{(i%4)*1024} nt", window=window))
        if i % 4 == 3:
            a("s_add_u32 s15, s15, 131072")
    for i in range(NV0):
        vload(i, max(W, NV0) + 8 if i >= W else W + 8)
    T.wait(qg[-1])
    a("s_branch L_qchk")
    a.label("L_qretry")
    a("s_sleep 1")
    Tr = T.fork(); qgather(Tr); a("s_waitcnt vmcnt(0)")
    a.label("L_qchk")
    untag(list(range(40, 48)), 48, q=True)
    check_retry(48, "L_qretry", 1, q=True)
    for r in range(0, 8, 2):
        a(f"v_add_f32 v{40+r}, v{40+r}, v{41+r}")
    a("v_add_f32 v40, v40, v42\nv_add_f32 v44, v44, v46\nv_add_f32 v40, v40, v44")
    a("v_cvt_pk_bf16_f32 v40, v40, v40")
    a(f"s_lshl_b32 s8, s3, 7\ns_add_u32 s8, s8, {L_QB}\nv_lshlrev_b32 v14, 1, v0\nv_add_u32 v14, s8, v14")
    a("ds_write_b16 v14, v40")
    a(f"v_and_b32 v14, 1, v1\nv_lshlrev_b32 v14, 8, v14\nv_lshl_add_u32 v14, v2, 4, v14\nv_add_u32 v14, {L_QB}, v14")
    for j in range(4):
        a(f"v_add_u32 v{20+j}, {4*j}, v2\nv_xor_b32 v{20+j}, v{20+j}, v1\nv_lshlrev_b32 v{20+j}, 4, v{20+j}\nv_lshl_add_u32 v{20+j}, v1, 8, v{20+j}\nv_add_u32 v{20+j}, s100, v{20+j}")
    a("s_waitcnt lgkmcnt(0)\ns_barrier")
    stamp(3)
    for j in range(4):
        a(f"ds_read_b128 v[{40+4*j}:{43+4*j}], v14 offset:{64*j}")
    def kread(t):
        base = 56 + 16 * (t % 2)
        for j in range(4):
            a(f"ds_read_b128 v[{base+4*j}:{base+4*j+3}], v{20+j} offset:{4096*t}")
    kread(0); kread(1)
    nv = NV0
    for t in range(4):
        base = 56 + 16 * (t % 2)
        a(f"s_waitcnt lgkmcnt({4 if t < 3 else 0})")
        for j in range(4):
            c = "0" if j == 0 else f"v[{88+4*t}:{91+4*t}]"
            a(f"v_mfma_f32_16x16x32_bf16 v[{88+4*t}:{91+4*t}], v[{40+4*j}:{43+4*j}], v[{base+4*j}:{base+4*j+3}], {c}")
        if t + 2 < 4:
            a("s_nop 1")
            kread(t + 2)
        vload(nv, W); nv += 1
    for h in range(2):
        a(f"v_cndmask_b32 v{24+h}, v{88+h}, v{92+h}, s[92:93]")
    for h in range(2):
        a(f"v_cndmask_b32 v{24+h}, v{24+h}, v{96+h}, s[94:95]")
    for h in range(2):
        a(f"v_cndmask_b32 v{24+h}, v{24+h}, v{100+h}, s[96:97]")
    a("v_cvt_pk_bf16_f32 v26, v24, v25\nv_lshlrev_b32 v24, 16, v26\nv_and_b32 v25, 0xffff0000, v26")
    sc = float_lit(128 ** -0.5)
    a(f"v_mul_f32 v24, {sc}, v24\nv_mul_f32 v25, {sc}, v25")
    a("v_cvt_pk_bf16_f32 v26, v24, v25\nv_lshlrev_b32 v24, 16, v26\nv_and_b32 v25, 0xffff0000, v26")
    a("v_mov_b32 v26, v24\nv_mov_b32 v27, v25")
    row_allreduce("v_max_f32", [26, 27])
    swap_reduce("v_max_f32", [26, 27], [14, 15], 16)
    swap_reduce("v_max_f32", [26, 27], [14, 15], 32)
    a(f"s_lshl_b32 s8, s3, 3\ns_add_u32 s8, s8, {L_MX}\nv_mov_b32 v14, s8\nv_mov_b32 v16, {L_MX}")
    a("ds_write_b64 v14, v[26:27]")
    vload(nv, W); nv += 1
    a("s_waitcnt lgkmcnt(0)\ns_barrier")
    a("ds_read_b128 v[40:43], v16\nds_read_b128 v[44:47], v16 offset:16")
    a("s_waitcnt lgkmcnt(0)")
    a("v_max3_f32 v26, v40, v42, v44\nv_max3_f32 v27, v41, v43, v45\nv_max_f32 v26, v26, v46\nv_max_f32 v27, v27, v47")
    l2e = float_lit(1.4426950408889634)
    a("v_sub_f32 v24, v24, v26\nv_sub_f32 v25, v25, v27")
    a(f"v_mul_f32 v24, {l2e}, v24\nv_mul_f32 v25, {l2e}, v25")
    a("v_exp_f32 v24, v24\nv_exp_f32 v25, v25")
    a(f"s_lshl_b32 s8, s3, 9\ns_add_u32 s8, s8, {L_PT}")
    a("v_and_b32 v15, 3, v0\nv_lshlrev_b32 v15, 6, v15\nv_lshrrev_b32 v17, 2, v0\nv_lshl_add_u32 v15, v17, 2, v15\nv_add_u32 v15, s8, v15")
    a("v_cvt_pk_bf16_f32 v40, v24, v24\nv_cvt_pk_bf16_f32 v41, v25, v25")
    a("ds_write_b32 v15, v40\nds_write_b32 v15, v41 offset:256")
    a("v_lshrrev_b32 v17, 3, v1\nv_lshlrev_b32 v17, 8, v17\nv_lshl_add_u32 v17, v2, 6, v17\nv_add_u32 v17, s8, v17")
    row_allreduce("v_add_f32", [24, 25])
    swap_reduce("v_add_f32", [24, 25], [42, 43], 16)
    swap_reduce("v_add_f32", [24, 25], [42, 43], 32)
    a("ds_write_b64 v14, v[24:25] offset:32")
    a("s_waitcnt lgkmcnt(0)")
    for q in range(4):
        a(f"ds_read_b128 v[{240+4*q}:{243+4*q}], v17 offset:{16*q}")
    vload(nv, W); nv += 1
    a("s_waitcnt lgkmcnt(0)")
    for u in range(16):
        for j in range(4):
            a(f"v_and_b32 v{40+4*u+j}, v{240+u}, v{32+j}")
        if u % 4 == 3 and nv < 16:
            vload(nv, W); nv += 1
    a("s_barrier")
    a("s_cmp_lg_u32 s3, 1\ns_cbranch_scc1 L_noml")
    a("ds_read_b128 v[240:243], v16 offset:32\nds_read_b128 v[244:247], v16 offset:48")
    a("s_waitcnt lgkmcnt(0)")
    a("v_add_f32 v240, v240, v242\nv_add_f32 v244, v244, v246\nv_add_f32 v241, v241, v243\nv_add_f32 v245, v245, v247")
    a("v_add_f32 v249, v240, v244\nv_add_f32 v251, v241, v245\nv_mov_b32 v248, v26\nv_mov_b32 v250, v27")
    tag([248, 249, 250, 251])
    a(f"s_and_b32 s8, s6, 1\ns_lshl_b32 s8, s8, 11\ns_lshl_b32 s9, s7, 7\ns_add_u32 s8, s8, s9\ns_add_u32 s8, s8, {WS_ML}\ns_add_u32 s8, s8, s99")
    a("s_mov_b64 exec, 1\nv_mov_b32 v14, 0")
    publish(T, "buffer_store_dwordx4 v[248:251], v14, s[64:67], s8 offen", cond=True, local=True)
    a("s_mov_b64 exec, -1")
    a.label("L_noml")
    stamp(4)
    while nv < 16:
        vload(nv, WVT); nv += 1
    a(f"s_lshl_b32 s13, s6, 14\ns_lshl_b32 s9, s7, 9\ns_add_u32 s13, s13, s9\ns_add_u32 s13, s13, {WS_OPART}\ns_add_u32 s13, s13, s98")
    a("v_lshrrev_b32 v14, 1, v2\nv_mul_u32_u24 v14, 7680, v14\nv_add_u32 v28, v14, v38")
    a("s_cmp_lt_u32 s5, 18\ns_cbranch_scc1 L_F")
    Tbr = T.fork()

    def pv_and_publish(Tk, between, lab):
        for u in range(16):
            between(u)
            Tk.wait(vops[u])
            c = "0" if u == 0 else "v[240:243]"
            a(f"v_mfma_f32_16x16x32_bf16 v[240:243], v[{40+4*u}:{43+4*u}], v[{104+4*u}:{107+4*u}], {c}")
        stamp(5)
        a("ds_write_b128 v18, v[240:243]")
        a("s_waitcnt lgkmcnt(0)\ns_barrier")
        a(f"s_cmp_lg_u32 s3, 0\ns_cbranch_scc1 {lab}")
        for k in range(1, 4):
            a(f"ds_read_b128 v[{240+4*k}:{243+4*k}], v19 offset:{1024*k}")
        a("s_waitcnt lgkmcnt(0)")
        for r in range(4):
            a(f"v_add_f32 v{240+r}, v{240+r}, v{244+r}\nv_add_f32 v{248+r}, v{248+r}, v{252+r}")
        for r in range(4):
            a(f"v_add_f32 v{240+r}, v{240+r}, v{248+r}")
        tag([240, 241, 242, 243])
        publish(Tk, "buffer_store_dwordx4 v[240:243], v28, s[64:67], s13 offen", cond=True, local=True)
        a.label(lab)
        stamp(6)

    def tile_loads(base, srdn, soff):
        L = []
        for st in range(2):
            for cb in range(3):
                for rr in range(2):
                    r = base + 24 * st + 8 * cb + 4 * rr
                    L.append(f"buffer_load_dwordx4 v[{r}:{r+3}], v20, s[{srdn}:{srdn+3}], {soff[st]} offen offset:{rr*1152+cb*128} nt")
        return L
    def tile_swap(base):
        for k in range(6):
            r = base + 8 * k
            a(f"v_swap_b32 v{r+2}, v{r+4}\nv_swap_b32 v{r+3}, v{r+5}")
    def tile_mfma(Tk, base, sout, with_ys, vbp, bpoffs, vout):
        for k in range(4):
            a(f"ds_bpermute_b32 v{96+k}, v{vbp}, v64 offset:{bpoffs[k]}")
        for st in range(2):
            a(f"s_waitcnt lgkmcnt({2-2*st})")
            a(f"v_and_b32 v{68+4*st}, v{96+2*st}, v36\nv_and_b32 v{69+4*st}, v{96+2*st}, v37\nv_and_b32 v{70+4*st}, v{97+2*st}, v36\nv_and_b32 v{71+4*st}, v{97+2*st}, v37")
        for k in range(6):
            for st in range(2):
                r = base + 24 * st + 4 * k
                c = "0" if st == 0 else f"v[{40+4*k}:{43+4*k}]"
                a(f"v_mfma_f32_16x16x32_bf16 v[{40+4*k}:{43+4*k}], v[{68+4*st}:{71+4*st}], v[{r}:{r+3}], {c}")
            if k >= 2:
                kk = k - 2
                a(f"ds_write_b128 v22, v[{40+4*kk}:{43+4*kk}] offset:{((kk//2)*16 + (kk%2))*16}")
        for kk in (4, 5):
            a(f"ds_write_b128 v22, v[{40+4*kk}:{43+4*kk}] offset:{((kk//2)*16 + (kk%2))*16}")
        a("s_mov_b64 exec, 0xffffff")
        a("s_waitcnt lgkmcnt(0)\ns_barrier")
        for p in range(8):
            a(f"ds_read_b128 v[{64+4*p}:{67+4*p}], v23 offset:{1536*p}")
        for p in range(0, 8, 2):
            a(f"s_waitcnt lgkmcnt({6-p})")
            a(f"v_pk_add_f32 v[{64+4*p}:{65+4*p}], v[{64+4*p}:{65+4*p}], v[{68+4*p}:{69+4*p}]\nv_pk_add_f32 v[{66+4*p}:{67+4*p}], v[{66+4*p}:{67+4*p}], v[{70+4*p}:{71+4*p}]")
            if p == 2 or p == 6:
                q = p - 2
                a(f"v_pk_add_f32 v[{64+4*q}:{65+4*q}], v[{64+4*q}:{65+4*q}], v[{72+4*q}:{73+4*q}]\nv_pk_add_f32 v[{66+4*q}:{67+4*q}], v[{66+4*q}:{67+4*q}], v[{74+4*q}:{75+4*q}]")
        a("v_pk_add_f32 v[64:65], v[64:65], v[80:81]\nv_pk_add_f32 v[66:67], v[66:67], v[82:83]")
        tag([64, 65, 66, 67])
        Tk.issue(f"buffer_store_dwordx4 v[64:67], v{vout}, s[64:67], {sout} offen sc1")
        a("s_mov_b64 exec, -1")
    def out_voffset(scol, nprod, dst):
        a("s_lshr_b32 s8, s3, 1\ns_mul_i32 s8, s8, 384")
        a(f"s_and_b32 s9, s3, 1\ns_mul_i32 s9, s9, 96\ns_add_u32 s9, s9, {scol}")
        a("v_lshlrev_b32 v14, 2, v0\nv_add_u32 v14, s9, v14")
        a("v_mul_u32_u24 v15, 911, v14\nv_lshrrev_b32 v15, 16, v15")
        a("v_mul_u32_u24 v16, 72, v15\nv_sub_u32 v14, v14, v16")
        a(f"v_lshlrev_b32 v15, 18, v15\nv_lshl_add_u32 v{dst}, v14, 2, v15\nv_add_u32 v{dst}, s8, v{dst}")
    def half8(op, r):
        a(f"{op}_dpp v{r}, v{r}, v{r} quad_perm:[1,0,3,2] row_mask:0xf bank_mask:0xf")
        a(f"{op}_dpp v{r}, v{r}, v{r} quad_perm:[2,3,0,1] row_mask:0xf bank_mask:0xf")
        a(f"{op}_dpp v{r}, v{r}, v{r} row_half_mirror row_mask:0xf bank_mask:0xf")

    T = Tbr.fork()
    a("s_sub_u32 s10, s5, 18")
    srd(52, 24, 4096 * 576 * 2); srd(60, 32, 4608 * 576 * 2)
    a("v_lshrrev_b32 v20, 3, v1\nv_lshlrev_b32 v20, 3, v20\nv_lshl_add_u32 v20, v2, 1, v20\nv_mul_u32_u24 v20, 1152, v20\nv_and_b32 v14, 7, v1\nv_lshl_add_u32 v20, v14, 4, v20")
    a("s_mul_i32 s11, s10, 11\ns_lshr_b32 s11, s11, 5")
    a("s_mul_i32 s8, s11, 3\ns_sub_u32 s80, s10, s8")
    a("s_lshl_b32 s8, s4, 2\ns_add_u32 s11, s11, s8")
    a("s_lshl_b32 s8, s11, 7\ns_lshl_b32 s9, s3, 5\ns_add_u32 s8, s8, s9\ns_mul_i32 s8, s8, 1152\ns_mul_i32 s9, s80, 384\ns_add_u32 s81, s8, s9")
    a(f"s_bfe_u32 s8, s11, 0x10001\ns_lshl_b32 s8, s8, 11\ns_add_u32 s86, s8, {WS_ML}\ns_add_u32 s86, s86, s99")
    a("s_cmp_ge_u32 s10, 12\ns_cselect_b32 s81, 0x7fff0000, s81\ns_cselect_b32 s86, 0x7fff0000, s86")
    a(f"s_add_u32 s82, s81, {16*1152}")
    a("v_lshlrev_b32 v25, 7, v1")
    if mlearly == 1:
        mlg = T.issue("buffer_load_dwordx4 v[232:235], v25, s[64:67], s86 offen sc1")
    wol = tile_loads(168, 52, ["s81", "s82"])
    woo = [T.issue(wol[k], window=WE + W) for k in range(12)]
    if mlearly == 2:
        mlg = T.issue("buffer_load_dwordx4 v[232:235], v25, s[64:67], s86 offen sc1")
    a("v_bfe_u32 v14, v1, 2, 1\nv_lshlrev_b32 v3, 4, v14\nv_lshrrev_b32 v14, 3, v1\nv_lshl_add_u32 v3, v14, 2, v3\nv_add_u32 v3, v3, v2\nv_lshlrev_b32 v21, 3, v3\nv_lshlrev_b32 v3, 2, v3")
    a("s_mul_i32 s8, s3, 3072")
    a("v_lshrrev_b32 v14, 3, v1\nv_mul_u32_u24 v22, 1536, v14\nv_and_b32 v14, 1, v2\nv_mul_u32_u24 v14, 768, v14\nv_add_u32 v22, v22, v14\nv_and_b32 v14, 7, v1\nv_lshl_add_u32 v22, v14, 5, v22")
    a(f"v_add_u32 v22, s8, v22")
    a("v_lshrrev_b32 v14, 3, v1\nv_lshrrev_b32 v15, 1, v2\nv_cmp_eq_u32 vcc, v14, v15\nv_add_u32 v14, 16384, v39\nv_cndmask_b32 v22, v14, v22, vcc")
    a("s_mul_i32 s8, s3, 384\nv_add_u32 v23, s8, v39")
    a("s_mul_i32 s84, s80, 192")
    out_voffset("s84", 32, 24)
    a(f"s_mul_i32 s85, s11, 768\ns_add_u32 s85, s85, {WS_Y}")
    a(f"s_lshl_b32 s8, s3, 6\ns_add_u32 s8, s8, {L_WT}\nv_lshlrev_b32 v6, 2, v1\nv_add_u32 v6, s8, v6")
    a("v_lshlrev_b32 v7, 5, v4\nv_add_u32 v7, s8, v7")
    a(f"s_lshl_b32 s83, s11, 13\ns_lshl_b32 s8, s3, 7\ns_add_u32 s83, s83, s8\ns_add_u32 s83, s83, {WS_OPART}\ns_add_u32 s83, s83, s98")
    a("v_lshlrev_b32 v26, 12, v4\nv_lshl_add_u32 v26, v5, 2, v26")
    a("s_mul_i32 s48, s4, 14\ns_add_u32 s48, s48, s10")
    a("s_mul_i32 s8, s48, 171\ns_lshr_b32 s87, s8, 9")
    a("s_mul_i32 s8, s87, 3\ns_sub_u32 s49, s48, s8")
    a("s_lshl_b32 s8, s87, 7\ns_lshl_b32 s9, s3, 5\ns_add_u32 s8, s8, s9\ns_mul_i32 s8, s8, 1152\ns_mul_i32 s9, s49, 384\ns_add_u32 s50, s8, s9")
    a(f"s_add_u32 s51, s50, {16*1152}")
    a("s_mul_i32 s84, s49, 192")
    out_voffset("s84", 36, 8)
    a(f"s_mul_i32 s40, s87, 768\ns_add_u32 s40, s40, {WS_OP}")
    blkbase("s12", "s87")
    a("s_add_u32 s41, s12, 0x6000")
    a("v_and_b32 v10, 7, v0\nv_lshlrev_b32 v10, 7, v10")
    a("s_lshl_b32 s9, s3, 7\ns_add_u32 s56, s12, s9\ns_add_u32 s88, s56, 0x4000\ns_add_u32 s89, s88, 4096")
    a("v_lshlrev_b32 v12, 9, v4\nv_lshl_add_u32 v12, v1, 3, v12")
    a("s_add_u32 s57, s56, 4096\ns_add_u32 s58, s56, 8192\ns_add_u32 s59, s56, 12288")
    a("v_lshlrev_b32 v11, 9, v2\nv_lshl_add_u32 v11, v1, 3, v11")
    a("v_and_b32 v14, 1, v2\nv_cmp_eq_u32 s[42:43], 1, v14")
    a("v_readlane_b32 s8, v29, 0\nv_readlane_b32 s9, v29, 32\nv_mov_b32 v13, s8\nv_mov_b32 v14, s9\nv_cndmask_b32 v13, v13, v14, s[42:43]")
    pv_and_publish(T, lambda u: None, "L_noopE")
    a("s_cmp_ge_u32 s10, 12\ns_cbranch_scc1 L_E_D")
    gML = Gather([("buffer_load_dwordx4 v[232:235], v25, s[64:67], s86 offen sc1", [232, 233, 234, 235])], [96], tmp=76)
    gO = Gather([(f"buffer_load_dword v{64+s_}, v26, s[64:67], s83 offen offset:{512*s_} sc1", [64+s_]) for s_ in range(8)], MK, tmp=76)
    gML.issue(); gO.issue()
    stamp(16)
    a("s_waitcnt vmcnt(9)")
    stamp(17)
    tile_swap(168)
    a("s_waitcnt vmcnt(8)")
    stamp(18)
    gML.loop()
    stamp(19)
    a("s_bitcmp1_b32 s11, 0\ns_cselect_b64 vcc, -1, 0")
    a("v_cndmask_b32 v72, v232, v234, vcc\nv_cndmask_b32 v73, v233, v235, vcc")
    a("v_mov_b32 v74, v72")
    half8("v_max_f32", 74)
    a(f"v_sub_f32 v72, v72, v74\nv_mul_f32 v72, {l2e}, v72\nv_exp_f32 v72, v72")
    a("v_mul_f32 v73, v73, v72")
    half8("v_add_f32", 73)
    a("v_rcp_f32 v73, v73")
    a("v_mul_f32 v72, v72, v73")
    a("ds_write_b32 v6, v72")
    a("s_waitcnt lgkmcnt(0)")
    a("ds_read_b128 v[88:91], v7\nds_read_b128 v[92:95], v7 offset:16")
    stamp(7)
    T.drain()
    stamp(20)
    gO.loop()
    stamp(8)
    a("s_waitcnt lgkmcnt(0)")
    a("v_mul_f32 v64, v64, v88\nv_mul_f32 v65, v65, v89")
    for s_ in range(2, 8, 2):
        a(f"v_fmac_f32 v64, v{64+s_}, v{88+s_}\nv_fmac_f32 v65, v{65+s_}, v{89+s_}")
    a("v_add_f32 v64, v64, v65\nv_cvt_pk_bf16_f32 v64, v64, v64")
    tile_mfma(T, 168, "s85", True, 21, [0, 4, 64, 68], 24)
    stamp(9)
    a.label("L_E_D")
    T.ops = [(o, True) for (o, _) in T.ops]
    a("s_cmp_ge_u32 s48, 108\ns_cbranch_scc1 L_fin")
    w2l = tile_loads(104, 60, ["s50", "s51"])
    for k in range(12):
        T.issue(w2l[k], window=WE2)
    gST = Gather([("buffer_load_dwordx4 v[64:67], v10, s[64:67], s41 offen sc1", [64, 65, 66, 67])], [96], tmp=76)
    gS = Gather([(f"buffer_load_dwordx2 v[{184+2*rg}:{185+2*rg}], v12, s[64:67], s{88+rg//4} offen offset:{1024*(rg%4)} sc1", [184+2*rg, 185+2*rg]) for rg in range(8)], MK2, tmp=76)
    gG = Gather([(f"buffer_load_dwordx2 v[{168+2*rg}:{169+2*rg}], v11, s[64:67], s{56+rg//2} offen offset:{2048*(rg%2)} sc1", [168+2*rg, 169+2*rg]) for rg in range(8)], MK, tmp=76)
    gST.issue()
    a("s_waitcnt vmcnt(1)")
    a("s_barrier")
    stamp(10)
    tile_swap(104)
    T.drain()
    gST.loop(sleep=stsleep)
    gS.issue(); gG.issue()
    row_allreduce("v_add_f32", [64, 65, 66, 67], steps=(4, 2, 1))
    a("v_cndmask_b32 v64, v64, v66, s[42:43]\nv_cndmask_b32 v65, v65, v67, s[42:43]")
    a(f"v_mul_f32 v64, {float_lit(1/576)}, v64\nv_mul_f32 v65, {float_lit(1/576)}, v65")
    a("v_fma_f32 v65, -v64, v64, v65\nv_max_f32 v65, 0, v65")
    a("v_add_f32 v64, v64, v13")
    bf16r(65, 65)
    bf16r(64, 64)
    a(f"v_add_f32 v65, {float_lit(1e-5)}, v65")
    bf16r(65, 65)
    a("v_sqrt_f32 v65, v65")
    bf16r(65, 65)
    a("v_rcp_f32 v27, v65")
    stamp(11)
    a("s_waitcnt vmcnt(8)")
    gS.loop()
    for k in range(0, 16, 4):
        a(f"v_pk_add_f32 v[{184+k}:{185+k}], v[{184+k}:{185+k}], v[{186+k}:{187+k}]")
    a("v_pk_add_f32 v[184:185], v[184:185], v[188:189]\nv_pk_add_f32 v[192:193], v[192:193], v[196:197]")
    a("v_pk_add_f32 v[24:25], v[184:185], v[192:193]")
    a("v_permlane32_swap_b32 v24, v25")
    a("v_mul_f32 v24, v24, v64\nv_mul_f32 v25, v25, v64")
    a("s_waitcnt vmcnt(0)")
    gG.loop()
    stamp(12)
    for k in range(0, 16, 4):
        a(f"v_pk_add_f32 v[{168+k}:{169+k}], v[{168+k}:{169+k}], v[{170+k}:{171+k}]")
    a("v_pk_add_f32 v[168:169], v[168:169], v[172:173]\nv_pk_add_f32 v[176:177], v[176:177], v[180:181]")
    a("v_pk_add_f32 v[64:65], v[168:169], v[176:177]")
    a("v_permlane32_swap_b32 v64, v65")
    a("v_sub_f32 v64, v64, v24\nv_sub_f32 v65, v65, v25")
    a("v_mul_f32 v64, v64, v27\nv_mul_f32 v65, v65, v27")
    a("v_cvt_pk_bf16_f32 v66, v64, v65\nv_lshlrev_b32 v64, 16, v66\nv_and_b32 v65, 0xffff0000, v66")
    a(f"v_mul_f32 v66, {float_lit(-1.4426950408889634)}, v64\nv_exp_f32 v66, v66")
    a("v_add_f32 v66, 1.0, v66\nv_rcp_f32 v66, v66")
    a("v_mul_f32 v64, v64, v66")
    bf16r(64, 64)
    a("v_mul_f32 v64, v64, v65\nv_cvt_pk_bf16_f32 v64, v64, v64")
    tile_mfma(T, 104, "s40", False, 3, [0, 128, 32, 160], 8)
    stamp(13)
    a("s_branch L_fin")

    a.label("L_F")
    T = Tbr.fork()
    a("s_cmp_ge_u32 s3, 2\ns_cselect_b32 s56, s30, s28\ns_cselect_b32 s57, s31, s29\ns_and_b32 s57, s57, 0xffff")
    a(f"s_mov_b32 s58, {576*4608*2}\ns_mov_b32 s59, 0x00020000")
    a("v_mul_u32_u24 v20, 9216, v2\nv_lshl_add_u32 v20, v1, 4, v20")
    a(f"s_mul_i32 s81, s4, {72*9216}\ns_lshl_b32 s9, s5, 9\ns_add_u32 s81, s81, s9\ns_and_b32 s9, s3, 1\ns_lshl_b32 s9, s9, 8\ns_add_u32 s81, s81, s9")
    gl = []
    def gload(t, window):
        gl.append(T.issue(f"buffer_load_dwordx4 v[{168+4*t}:{171+4*t}], v20, s[56:59], s81 offen nt", window=window))
        a(f"s_add_u32 s81, s81, {4*9216}")
    a("v_mul_u32_u24 v21, 1152, v4\nv_lshl_add_u32 v21, v5, 3, v21\ns_mul_i32 s8, s4, 144")
    xres = T.issue("buffer_load_dwordx2 v[26:27], v21, s[68:71], s8 offen")
    a(f"s_mul_i32 s82, s3, {8*768}\ns_add_u32 s82, s82, s99\ns_add_u32 s82, s82, {WS_Y}\ns_add_u32 s83, s82, 3072")
    a("v_mul_u32_u24 v21, 384, v4\nv_lshl_add_u32 v21, v5, 4, v21")
    a("s_lshl_b32 s8, s3, 10\nv_add_u32 v22, s8, v39")
    a(f"s_mul_i32 s84, s3, 640\ns_add_u32 s84, s84, {L_XT}")
    a("v_mul_u32_u24 v23, 320, v4\nv_lshl_add_u32 v23, v5, 2, v23\nv_add_u32 v23, s84, v23")
    a("v_lshrrev_b32 v14, 3, v1\nv_mul_u32_u24 v24, 320, v14\nv_mul_u32_u24 v14, 80, v2\nv_add3_u32 v24, v24, v14, s84")
    a(f"v_mul_u32_u24 v25, 288, v4\nv_lshl_add_u32 v25, v5, 4, v25\nv_add_u32 v25, {L_H}, v25")
    a("s_lshl_b32 s10, s5, 1")
    blkbase("s11", "s10")
    a("s_add_u32 s10, s10, 1")
    blkbase("s12", "s10")
    a("s_bitcmp1_b32 s3, 0\ns_cselect_b32 s10, s12, s11")
    a("s_lshl_b32 s8, s4, 1\ns_lshr_b32 s9, s3, 1\ns_add_u32 s8, s8, s9")
    a("s_lshl_b32 s85, s8, 10\ns_add_u32 s85, s85, s10\ns_lshl_b32 s87, s8, 9\ns_add_u32 s87, s87, s10\ns_add_u32 s87, s87, 0x4000")
    a("s_lshl_b32 s9, s4, 7\ns_add_u32 s86, s11, s9\ns_add_u32 s86, s86, 0x6000\ns_sub_u32 s12, s12, s11")
    a("v_mul_lo_u32 v6, s12, v0")
    for j in range(4):
        a(f"v_and_b32 v{10+j}, 0x3f803f80, v{32+j}")
    srd(72, 34, 2304)
    a("s_cmp_ge_u32 s5, 9\ns_cselect_b32 s11, 96, 0\ns_lshl_b32 s9, s5, 5\ns_add_u32 s11, s11, s9")
    a(f"s_add_u32 s40, s99, s11\ns_add_u32 s40, s40, {WS_OP}")
    a("v_lshrrev_b32 v14, 3, v0\nv_mul_u32_u24 v7, 768, v14\nv_and_b32 v14, 7, v0\nv_lshl_add_u32 v7, v14, 2, v7")
    a(f"s_add_u32 s10, s9, {L_H}\nv_lshlrev_b32 v8, 2, v14\nv_add_u32 v8, s10, v8")
    for i in range(1, 4):
        a(f"s_add_u32 s{40+i}, s40, {8*768*i}")
    a(f"s_add_u32 s48, s40, {8*768*4}")
    a("s_cmp_ge_u32 s5, 9\ns_cselect_b32 s10, 504, 0\ns_mul_i32 s11, s4, 72\ns_add_u32 s10, s10, s11\ns_lshl_b32 s11, s5, 3\ns_add_u32 s10, s10, s11\ns_lshl_b32 s10, s10, 1")
    a("v_lshlrev_b32 v3, 1, v14")
    ng = [0]
    def betweenF(u):
        if u >= 16 - WFP and ng[0] < 18:
            gload(ng[0], None); ng[0] += 1
    pv_and_publish(T, betweenF, "L_noopF")
    ns = [0]
    def smfma():
        t = ns[0]; ns[0] += 1
        T.wait(gl[t])
        c = "0" if t == 0 else "v[244:247]"
        a(f"v_mfma_f32_16x16x32_bf16 v[244:247], v[10:13], v[{168+4*t}:{171+4*t}], {c}")
    while ng[0] < 18:
        if ng[0] >= WF:
            smfma()
        gload(ng[0], WF); ng[0] += 1
    stamp(7)
    gY = Gather([(f"buffer_load_dwordx4 v[{40+4*k}:{43+4*k}], v21, s[64:67], {'s82' if k < 4 else 's83'} offen offset:{768*(k%4)} sc1", list(range(40+4*k, 44+4*k))) for k in range(8)],
                MK, base=[(0x3ffff, 0x3ffff)] * 8, tmp=76)
    gY.issue(T)
    a("v_lshlrev_b32 v100, 16, v26\nv_and_b32 v101, 0xffff0000, v26\nv_lshlrev_b32 v102, 16, v27\nv_and_b32 v103, 0xffff0000, v27")
    while ns[0] < 18:
        smfma()
    tag([244, 245, 246, 247])
    a("s_mov_b32 exec_hi, 0")
    T.issue("buffer_store_dwordx4 v[244:247], v38, s[64:67], s87 offen sc1")
    a("s_mov_b64 exec, -1")
    stamp(16)
    a("s_waitcnt vmcnt(1)")
    stamp(17)
    T.ops = [(o, True) for (o, _) in T.ops[-1:]]
    gY.loop()
    stamp(8)
    for k in range(0, 8, 2):
        a(f"v_pk_add_f32 v[{40+4*k}:{41+4*k}], v[{40+4*k}:{41+4*k}], v[{44+4*k}:{45+4*k}]\nv_pk_add_f32 v[{42+4*k}:{43+4*k}], v[{42+4*k}:{43+4*k}], v[{46+4*k}:{47+4*k}]")
    for k in (0, 4):
        a(f"v_pk_add_f32 v[{40+4*k}:{41+4*k}], v[{40+4*k}:{41+4*k}], v[{48+4*k}:{49+4*k}]\nv_pk_add_f32 v[{42+4*k}:{43+4*k}], v[{42+4*k}:{43+4*k}], v[{50+4*k}:{51+4*k}]")
    a("v_pk_add_f32 v[40:41], v[40:41], v[56:57]\nv_pk_add_f32 v[42:43], v[42:43], v[58:59]")
    a("ds_write_b128 v22, v[40:43]")
    a("s_waitcnt lgkmcnt(0)\ns_barrier")
    stamp(18)
    for k in range(4):
        a(f"ds_read_b128 v[{40+4*k}:{43+4*k}], v39 offset:{1024*k}")
    a("s_waitcnt lgkmcnt(2)")
    a("v_pk_add_f32 v[40:41], v[40:41], v[44:45]\nv_pk_add_f32 v[42:43], v[42:43], v[46:47]")
    a("s_waitcnt lgkmcnt(0)")
    a("v_pk_add_f32 v[48:49], v[48:49], v[52:53]\nv_pk_add_f32 v[50:51], v[50:51], v[54:55]")
    a("v_pk_add_f32 v[40:41], v[40:41], v[48:49]\nv_pk_add_f32 v[42:43], v[42:43], v[50:51]")
    a("v_cvt_pk_bf16_f32 v44, v40, v41\nv_cvt_pk_bf16_f32 v45, v42, v43")
    a("v_lshlrev_b32 v40, 16, v44\nv_and_b32 v41, 0xffff0000, v44\nv_lshlrev_b32 v42, 16, v45\nv_and_b32 v43, 0xffff0000, v45")
    a("v_pk_add_f32 v[40:41], v[40:41], v[100:101]\nv_pk_add_f32 v[42:43], v[42:43], v[102:103]")
    a("s_mov_b32 exec_lo, 0x3ffff\ns_mov_b32 exec_hi, 0x3ffff")
    for r in range(4):
        a(f"v_cvt_pk_bf16_f32 v{48+r}, v{40+r}, v{40+r}\nds_write_b32 v23, v{48+r} offset:{80*r}")
    a("s_mov_b64 exec, -1")
    a("s_waitcnt lgkmcnt(0)")
    for q in range(5):
        a(f"ds_read_b128 v[{64+4*q}:{67+4*q}], v24 offset:{16*q}")
    for r in range(4):
        a(f"v_and_b32 v{40+r}, 0xffff0000, v{48+r}")
    a("s_cmp_lg_u32 s3, 3\ns_cbranch_scc1 L_nost")
    for r in range(4):
        a(f"v_sub_f32 v{44+r}, v{40+r}, v29")
    a("v_add_f32 v52, v44, v45\nv_add_f32 v53, v46, v47\nv_mul_f32 v54, v44, v44\nv_mul_f32 v55, v45, v45")
    a("v_fmac_f32 v54, v46, v46\nv_fmac_f32 v55, v47, v47\nv_add_f32 v52, v52, v53\nv_add_f32 v53, v54, v55")
    a("v_cmp_gt_u32 vcc, 18, v5\nv_cndmask_b32 v52, 0, v52, vcc\nv_cndmask_b32 v53, 0, v53, vcc")
    row_allreduce("v_add_f32", [52, 53])
    swap_reduce("v_add_f32", [52, 53], [54, 55], 16)
    a("v_mov_b32 v54, v52\nv_mov_b32 v55, v53")
    a("v_permlane32_swap_b32 v52, v54\nv_permlane32_swap_b32 v53, v55")
    tag([52, 53, 54, 55])
    a("s_mov_b64 exec, 3")
    T.issue("buffer_store_dwordx4 v[52:55], v6, s[64:67], s86 offen sc1", cond=True)
    a("s_mov_b64 exec, -1")
    a.label("L_nost")
    stamp(19)
    for t in range(18):
        s0 = 84 + 4 * (t % 4)
        if t % 4 == 0:
            a(f"s_waitcnt lgkmcnt({4 - t//4})")
        for j in range(4):
            a(f"v_and_b32 v{s0+j}, v{64+t}, v{32+j}")
        c = "0" if t == 0 else "v[240:243]"
        a(f"v_mfma_f32_16x16x32_bf16 v[240:243], v[{s0}:{s0+3}], v[{168+4*t}:{171+4*t}], {c}")
    a("s_mov_b32 exec_lo, 0x3ffff\ns_mov_b32 exec_hi, 0x3ffff")
    a("ds_write_b128 v25, v[40:43]")
    a("s_mov_b64 exec, -1")
    tag([240, 241, 242, 243])
    T.issue("buffer_store_dwordx4 v[240:243], v38, s[64:67], s85 offen sc1")
    stamp(9)
    a("s_cmp_lg_u32 s3, 0\ns_cbranch_scc1 L_fin")
    a("s_waitcnt lgkmcnt(0)\nds_read_b32 v60, v8")
    a("v_mov_b32 v44, 0")
    gR = Gather([(f"buffer_load_dword v{40+i}, v7, s[64:67], s{40+i if i < 4 else 48} offen sc1", [40+i]) for i in range(5)], MK[:5],
                base=[(-1, -1)] * 4 + [(-1, 0)], tmp=76)
    gR.issue()
    a("s_waitcnt vmcnt(0)")
    gR.loop()
    stamp(12)
    a("v_add_f32 v40, v40, v41\nv_add_f32 v42, v42, v43\nv_add_f32 v40, v40, v44\nv_add_f32 v40, v40, v42")
    row_allreduce("v_add_f32", [40], steps=(8,))
    swap_reduce("v_add_f32", [40], [41], 16)
    swap_reduce("v_add_f32", [40], [41], 32)
    bf16r(40, 40)
    a("s_waitcnt lgkmcnt(0)")
    a("v_add_f32 v40, v40, v60\nv_cvt_pk_bf16_f32 v40, v40, v40")
    a("s_mov_b64 exec, 0xff")
    a("buffer_store_short v40, v3, s[72:75], s10 offen")
    a("s_cmp_lg_u32 s2, 0\ns_cbranch_scc1 L_fin")
    a("s_mov_b64 exec, 1\nv_mov_b32 v41, s78\nv_mov_b32 v42, 0")
    a("buffer_store_dword v41, v42, s[64:67], 0 offen sc1")
    a.label("L_fin")
    if stamps:
        a("s_mov_b64 exec, -1")
        stamp(14)
        a(f"v_writelane_b32 v31, s79, 15")
        a(f"s_lshl_b32 s8, s2, 2\ns_add_u32 s8, s8, s3\ns_lshl_b32 s8, s8, 8\ns_add_u32 s8, s8, {WS_STAMP}")
        a("buffer_store_dword v31, v9, s[64:67], s8 offen")
    a.label("L_end")
    a("s_endpgm")
    L, n = hazard.fix(a.L)
    body = "\n".join(L) + "\n"
    if codepf:
        body = body.replace("    .CODEPF_GUARD\n",
            "    s_cmp_ge_u32 s8, (L_end - " + NAME + "_kernel)\n    s_cbranch_scc1 L_nopf\n"
            "    v_add_u32 v31, s8, v3\n" if False else
            "    v_add_u32 v4, s8, v3\n"
            "    v_cmp_gt_u32 vcc, (L_end - " + NAME + "_kernel - 64), v4\n"
            "    s_and_saveexec_b64 s[100:101], vcc\n"
            "    s_cbranch_execz L_nopf\n"
            "    global_load_dword v255, v3, s[98:99]\n"
            "L_nopf:\n"
            "    s_mov_b64 exec, -1\n")
    lds = max(L_END, lds_force)
    return wrap(body, 256, 256, lds, 256)

import struct
def float_lit(x):
    return "0x%08x" % struct.unpack("<I", struct.pack("<f", x))[0]

if __name__ == "__main__":
    out = sys.argv[1] if len(sys.argv) > 1 else "k.s"
    kw = {}
    for arg in sys.argv[2:]:
        k, v = arg.split("=")
        kw[k] = int(v)
    open(out, "w").write(gen(**kw))
    print("wrote", out, "LDS", L_END, "WS_END", hex(WS_END))
```

```python
import sys, copy
from asmlib import *
import hazard

WS_EPOCH = 0
WS0 = 0x40000
XR = 0x40000
WS_QP = WS0
WS_OPART = WS0 + 0x8000
WS_ML = WS0 + 0x10000
WS_Y = WS0 + 0x11000
WS_OP = WS0 + 0x17000
WS_GA = WS0 + 0x1E000
WS_END = WS0 + 8 * XR
WS_STAMP = 0x8000000

L_K = 0
L_RED = 0
L_RED2 = 65536
L_XN = L_RED2 + 4096
L_QB = L_XN + 4 * 768
L_PT = L_QB + 512
L_MX = L_PT + 2048
L_XT = L_MX + 128
L_WT = L_XT + 4 * 640
L_H = L_WT + 256
L_YS = L_H + 576
L_END = L_YS + 64

TAGMASK = 0x3FF
POLL_MAX = 400000

class Tracker:
    def __init__(self, a):
        self.a = a; self.ops = []; self.n = 0
    def issue(self, ins, cond=False, window=None):
        if window is not None:
            cnt = sum(1 for (_, c) in self.ops if not c)
            if cnt >= window:
                self.a(f"s_waitcnt vmcnt({window-1})")
                self._retire_to(window - 1)
        self.a(ins)
        self.n += 1
        self.ops.append((self.n, cond))
        return self.n
    def _retire_to(self, k):
        keep = []; c = 0
        for op in reversed(self.ops):
            if c >= k: break
            keep.append(op)
            if not op[1]: c += 1
        self.ops = list(reversed(keep))
    def wait(self, opid):
        ids = [o for (o, _) in self.ops]
        if opid not in ids: return
        after = sum(1 for (o, c) in self.ops if o > opid and not c)
        self.a(f"s_waitcnt vmcnt({min(after, 63)})")
        self.ops = [(o, c) for (o, c) in self.ops if o > opid]
    def drain(self):
        self.a("s_waitcnt vmcnt(0)"); self.ops = []
    def fork(self):
        t = Tracker(self.a); t.ops = list(self.ops); t.n = self.n; return t

def gen(W=6, WE=12, WF=6, WFP=2, WE2=10, NK0=6, NKQ=0, NV0=6, WVT=10, dual=1, mlearly=0, woearly=0, pretouch=0, psleep=0, dbgtime=0, stsleep=0, stamps=False, lds_force=0, codepf=True):
    a = Asm()
    T = Tracker(a)
    nst = [0]
    def stamp(i):
        if stamps:
            a(f"s_memrealtime s[90:91]\ns_waitcnt lgkmcnt(0)\nv_writelane_b32 v31, s90, {i}")
    def srd(d, p, size):
        a(f"s_mov_b32 s{d}, s{p}\ns_and_b32 s{d+1}, s{p+1}, 0xffff\ns_mov_b32 s{d+2}, {size}\ns_mov_b32 s{d+3}, 0x00020000")
    def row_allreduce(op, regs, tmp=None, steps=(8, 4, 2, 1)):
        for st in steps:
            for r in regs:
                a(f"{op}_dpp v{r}, v{r}, v{r} row_ror:{st} row_mask:0xf bank_mask:0xf")
    def swap_reduce(op, regs, tmps, which):
        for r, t in zip(regs, tmps):
            a(f"v_mov_b32 v{t}, v{r}")
        for r, t in zip(regs, tmps):
            a(f"v_permlane{which}_swap_b32 v{r}, v{t}")
        for r, t in zip(regs, tmps):
            a(f"{op} v{r}, v{r}, v{t}")
    def bf16r(dst, src):
        a(f"v_cvt_pk_bf16_f32 v{dst}, v{src}, v{src}\nv_and_b32 v{dst}, 0xffff0000, v{dst}")
    def tag(regs, q=False):
        for r in regs:
            a(f"v_bfi_b32 v{r}, {'63' if q else 's77'}, v30, v{r}")
    def untag(regs, acc, first=True, q=False):
        for r in regs:
            a(f"v_xor_b32 v{r}, {'s75' if q else 'v30'}, v{r}")
        rs = list(regs)
        if first:
            if len(rs) >= 2:
                a(f"v_or_b32 v{acc}, v{rs[0]}, v{rs[1]}"); rs = rs[2:]
            else:
                a(f"v_mov_b32 v{acc}, v{rs[0]}"); rs = rs[1:]
        while len(rs) >= 2:
            a(f"v_or3_b32 v{acc}, v{acc}, v{rs[0]}, v{rs[1]}"); rs = rs[2:]
        if rs:
            a(f"v_or_b32 v{acc}, v{acc}, v{rs[0]}")
    def check_retry(acc, retry_label, code, q=False):
        ok = a.newlabel("L_ok")
        a(f"v_and_b32 v{acc}, {'63' if q else 's77'}, v{acc}\nv_cmp_ne_u32 vcc, 0, v{acc}")
        a(f"s_cbranch_vccz {ok}")
        a(f"s_add_u32 s79, s79, 1\ns_cmp_lt_u32 s79, {POLL_MAX}\ns_cbranch_scc1 {retry_label}")
        a.label(ok)

    def publish(Tk, ins, cond=False, local=False):
        Tk.issue(ins + " sc1", cond=cond)
        if local and dual:
            Tk.issue(ins, cond=cond)
    class Gather:
        def __init__(g, loads, masks=None, base=None, tmp=None, q=False):
            g.loads = loads; g.tmp = tmp; g.q = q
            g.base = base or [(-1, -1)] * len(loads)
        def issue(g, Tk=None):
            cur = (-1, -1); ids = []
            for (ins, _), b in zip(g.loads, g.base):
                if b != cur:
                    a(f"s_mov_b32 exec_lo, {b[0]}\ns_mov_b32 exec_hi, {b[1]}"); cur = b
                if Tk: ids.append(Tk.issue(ins))
                else: a(ins)
            if cur != (-1, -1): a("s_mov_b64 exec, -1")
            return ids
        def check(g):
            mk = '63' if g.q else 's77'
            groups = []
            for (ins, regs), b in zip(g.loads, g.base):
                if groups and groups[-1][0] == b: groups[-1][1].extend(regs)
                else: groups.append((b, list(regs)))
            first = True
            if groups[0][0] != (-1, -1):
                a(f"v_mov_b32 v{g.tmp}, 0")
            for b, regs in groups:
                if b != (-1, -1): a(f"s_mov_b32 exec_lo, {b[0]}\ns_mov_b32 exec_hi, {b[1]}")
                untag(regs, g.tmp, first=first, q=g.q); first = False
                if b != (-1, -1): a("s_mov_b64 exec, -1")
            a(f"v_and_b32 v{g.tmp}, {mk}, v{g.tmp}\nv_cmp_ne_u32 vcc, 0, v{g.tmp}")
        def loop(g, sleep=0):
            lc = a.newlabel("L_gc"); ld = a.newlabel("L_gd"); lr = a.newlabel("L_gr")
            a(f"s_branch {lc}")
            a.label(lr)
            if sleep or psleep: a(f"s_sleep {max(sleep, psleep)}")
            g.issue()
            a("s_waitcnt vmcnt(0)")
            a.label(lc)
            g.check()
            a(f"s_cbranch_vccz {ld}")
            a(f"s_add_u32 s79, s79, 1\ns_cmp_lt_u32 s79, {POLL_MAX}\ns_cbranch_scc1 {lr}")
            a.label(ld)
    MK = [16, 18, 20, 22, 24, 26, 28, 30]
    MK2 = [32, 34, 36, 38, 44, 46, 92, 94]
    def blkbase(dst, sblk):
        a(f"s_mul_i32 s8, {sblk}, 441\ns_lshr_b32 s8, s8, 11")
        a(f"s_mul_i32 s9, s8, 14\ns_add_u32 s9, s9, 2\ns_mul_i32 s9, s9, 171\ns_lshr_b32 s9, s9, 9")
        a(f"s_sub_u32 s9, {sblk}, s9\ns_mul_i32 s9, s9, 0x6400\ns_lshl_b32 s8, s8, 18\ns_add_u32 {dst}, s8, s9\ns_add_u32 {dst}, {dst}, {WS_GA}")
    a("s_cmp_ge_u32 s2, 256\ns_cbranch_scc1 L_end")
    a("s_load_dwordx16 s[16:31], s[0:1], 0\ns_load_dwordx8 s[32:39], s[0:1], 64")
    if stamps:
        a("s_memrealtime s[90:91]\nv_mov_b32 v31, 0")
    if dbgtime:
        a("s_memrealtime s[90:91]\ns_memtime s[92:93]\ns_waitcnt lgkmcnt(0)\nv_mov_b32 v31, s90\nv_mov_b32 v253, s92\ns_mov_b32 s90, s36\ns_mov_b32 s91, s37")
    a("v_lshrrev_b32 v1, 6, v0\nv_and_b32 v0, 63, v0")
    a("v_readfirstlane_b32 s3, v1")
    if codepf:
        a("s_getpc_b64 s[98:99]")
        a("v_lshlrev_b32 v3, 7, v0")
        a("s_lshl_b32 s8, s3, 13\ns_add_u32 s98, s98, s8\ns_addc_u32 s99, s99, 0")
        a(".CODEPF_GUARD")
    a("s_and_b32 s4, s2, 7\ns_lshr_b32 s5, s2, 3")
    a("s_lshr_b32 s6, s5, 4\ns_lshl_b32 s7, s4, 1\ns_add_u32 s6, s6, s7")
    a("s_and_b32 s7, s5, 15")
    a(f"s_lshl_b32 s99, s4, 18\ns_mul_i32 s98, s4, {0x40000-0x8000}")
    a("v_and_b32 v1, 15, v0\nv_lshrrev_b32 v2, 4, v0")
    a("v_lshrrev_b32 v4, 5, v0\nv_and_b32 v5, 31, v0")
    a("v_mul_u32_u24 v6, 36, v5\nv_mul_u32_u24 v7, 1152, v4\nv_add_u32 v6, v6, v7")
    a("v_lshl_add_u32 v7, v5, 1, v7")
    a("v_mul_u32_u24 v8, 8192, v2\nv_lshl_add_u32 v8, v1, 4, v8")
    a("s_mov_b32 s77, 0x3ff\ns_mov_b32 s79, 0")
    a("s_waitcnt lgkmcnt(0)")
    if stamps:
        a("v_writelane_b32 v31, s90, 0")
    a("s_load_dword s78, s[38:39], 0")
    srd(68, 16, 2304)
    srd(48, 22, 576 * 4096 * 2)
    srd(64, 38, 256 << 20)
    x0 = T.issue("buffer_load_dwordx4 v[60:63], v6, s[68:71], 0 offen")
    x1 = T.issue("buffer_load_dwordx4 v[64:67], v6, s[68:71], 0 offen offset:16")
    x2 = T.issue("buffer_load_dword v68, v6, s[68:71], 0 offen offset:32")
    a("s_lshr_b32 s9, s7, 1\ns_mul_i32 s10, s9, 144")
    xr = []
    for k in range(3):
        xr.append(T.issue(f"buffer_load_ushort v{69+k}, v7, s[68:71], s10 offen offset:{64*k}"))
    a("s_and_b32 s8, s7, 1\ns_lshl_b32 s11, s6, 1\ns_add_u32 s11, s8, s11")
    a("s_lshl_b32 s8, s11, 8")
    a("s_mul_i32 s12, s9, 72\ns_lshl_b32 s10, s3, 2\ns_add_u32 s12, s12, s10\ns_lshl_b32 s12, s12, 13\ns_add_u32 s8, s8, s12")
    wq = []
    for i in range(5):
        if i == 4:
            a("s_cmp_ge_u32 s3, 2\ns_cselect_b32 s8, 0x7fffffff, s8")
        wq.append(T.issue(f"buffer_load_dwordx4 v[{40+4*i}:{43+4*i}], v8, s[48:51], s8 offen nt"))
        if i < 4: a(f"s_add_u32 s8, s8, {16*8192}")
    a(f"s_lshl_b32 s13, s11, 3\ns_add_u32 s13, s13, s9\ns_lshl_b32 s13, s13, 10\ns_add_u32 s13, s13, {WS_QP}\ns_add_u32 s13, s13, s98")
    srd(40, 18, 64 << 20); srd(44, 20, 64 << 20)
    if pretouch:
        a("s_cmp_lg_u32 s3, 2\ns_cbranch_scc1 L_nopt")
        a(f"s_lshl_b32 s8, s5, 13\ns_add_u32 s8, s8, s99\ns_add_u32 s8, s8, {WS0}\nv_lshlrev_b32 v14, 7, v0")
        T.issue("buffer_load_dword v254, v14, s[64:67], s8 offen sc1", cond=True)
        a.label("L_nopt")
    a("s_lshr_b32 s8, s7, 3\ns_lshl_b32 s14, s8, 25\ns_lshl_b32 s9, s6, 21\ns_add_u32 s14, s14, s9")
    a("s_and_b32 s9, s7, 7\ns_lshl_b32 s9, s9, 14\ns_add_u32 s14, s14, s9\ns_lshl_b32 s9, s3, 12\ns_add_u32 s14, s14, s9")
    a(f"s_add_u32 s14, s14, {6144*256}\ns_mov_b32 s15, s14")
    for k in range(4):
        a(f"v_add_u32 v{10+k}, {4*k}, v2\nv_xor_b32 v{10+k}, v{10+k}, v1\nv_lshlrev_b32 v{10+k}, 4, v{10+k}\nv_lshl_add_u32 v{10+k}, v2, 8, v{10+k}")
    a("s_lshl_b32 s100, s3, 14")
    kops = []
    def kload(i, window):
        if i % 4 == 0:
            a(f"s_add_u32 s101, s100, {(i//4)*4096}\ns_mov_b32 m0, s101")
        kops.append(T.issue(f"buffer_load_dwordx4 v{10+i%4}, s[40:43], s14 offen offset:{(i%4)*1024} nt lds", window=window))
        if i % 4 == 3:
            a("s_add_u32 s14, s14, 131072")
    for i in range(NK0):
        kload(i, None)
    a("v_and_b32 v14, 1, v1\nv_cmp_eq_u32 vcc, 1, v14\nv_mov_b32 v15, 0xffff\nv_mov_b32 v16, 0xffff0000\nv_cndmask_b32 v14, v15, v16, vcc")
    a("v_bfe_u32 v15, v1, 1, 2")
    for j in range(4):
        a(f"v_cmp_eq_u32 vcc, {j}, v15\nv_cndmask_b32 v{32+j}, 0, v14, vcc")
    a("v_and_b32 v15, 1, v15")
    a("v_cmp_eq_u32 vcc, 0, v15\nv_cndmask_b32 v36, 0, v14, vcc\nv_cmp_eq_u32 vcc, 1, v15\nv_cndmask_b32 v37, 0, v14, vcc")
    a("v_cmp_eq_u32 s[92:93], 1, v2\nv_cmp_eq_u32 s[94:95], 2, v2\nv_cmp_eq_u32 s[96:97], 3, v2")
    a("v_lshrrev_b32 v14, 1, v2\nv_lshlrev_b32 v38, 9, v14\nv_lshl_add_u32 v38, v1, 5, v38\nv_and_b32 v14, 1, v2\nv_lshl_add_u32 v38, v14, 4, v38")
    a("v_lshlrev_b32 v39, 4, v0")
    a("v_lshlrev_b32 v9, 2, v0")
    T.wait(x2)
    for k in range(9):
        a(f"v_and_b32 v{73+2*k}, 0xffff0000, v{60+k}\nv_lshlrev_b32 v{72+2*k}, 16, v{60+k}")
    a("v_add_f32 v14, v72, v73")
    a("v_add_f32 v15, v74, v75")
    for k in range(4, 18, 2):
        a(f"v_add_f32 v14, v14, v{72+k}\nv_add_f32 v15, v15, v{73+k}")
    a("v_add_f32 v14, v14, v15")
    row_allreduce("v_add_f32", [14])
    swap_reduce("v_add_f32", [14], [15], 16)
    a(f"v_mul_f32 v14, {float_lit(1/576)}, v14")
    a("v_mov_b32 v29, v14")
    a("v_mov_b32 v15, 0\nv_mov_b32 v16, 0")
    for k in range(0, 18, 2):
        a(f"v_sub_f32 v{72+k}, v{72+k}, v14\nv_sub_f32 v{73+k}, v{73+k}, v14")
        a(f"v_fmac_f32 v15, v{72+k}, v{72+k}\nv_fmac_f32 v16, v{73+k}, v{73+k}")
    a("v_add_f32 v15, v15, v16")
    row_allreduce("v_add_f32", [15])
    swap_reduce("v_add_f32", [15], [16], 16)
    a(f"v_mul_f32 v15, {float_lit(1/576)}, v15")
    bf16r(15, 15)
    a(f"v_add_f32 v15, {float_lit(1e-5)}, v15")
    bf16r(15, 15)
    a("v_sqrt_f32 v15, v15")
    bf16r(15, 15)
    a("v_rcp_f32 v15, v15")
    bf16r(14, 14)
    T.wait(xr[2])
    a(f"s_mul_i32 s8, s3, 768\ns_add_u32 s8, s8, {L_XN}")
    a("v_mul_u32_u24 v16, 384, v4\nv_lshl_add_u32 v16, v5, 2, v16\nv_add_u32 v16, s8, v16")
    for k in range(3):
        r = 69 + k
        a(f"v_lshlrev_b32 v{r}, 16, v{r}\nv_sub_f32 v{r}, v{r}, v14")
        bf16r(r, r)
        a(f"v_mul_f32 v{r}, v{r}, v15\nv_cvt_pk_bf16_f32 v{r}, v{r}, v{r}")
        a(f"ds_write_b32 v16, v{r} offset:{128*k}")
    a("v_lshrrev_b32 v17, 3, v1\nv_mul_u32_u24 v17, 384, v17\nv_lshl_add_u32 v17, v2, 2, v17\ns_lshl_b32 s9, s3, 4\ns_add_u32 s8, s8, s9\nv_add_u32 v17, s8, v17")
    a("s_waitcnt lgkmcnt(0)")
    a("s_add_u32 s78, s78, 1\ns_and_b32 s76, s78, 0x3ff\nv_mov_b32 v30, s76\ns_and_b32 s75, s78, 63")
    for i in range(5):
        a(f"ds_read_b32 v{60+i}, v17 offset:{64*i}")
    a("s_waitcnt lgkmcnt(0)")
    stamp(1)
    for i in range(5):
        for j in range(4):
            a(f"v_and_b32 v{72+4*i+j}, v{60+i}, v{32+j}")
    for i in range(5):
        T.wait(wq[i])
        c = "0" if i == 0 else "v[96:99]"
        a(f"v_mfma_f32_16x16x32_bf16 v[96:99], v[{72+4*i}:{75+4*i}], v[{40+4*i}:{43+4*i}], {c}")
    for i in range(NK0, NK0 + NKQ):
        kload(i, None)
    a(f"s_lshl_b32 s8, s3, 10\ns_add_u32 s8, s8, {L_RED2}\nv_add_u32 v18, s8, v39")
    a(f"v_add_u32 v19, {L_RED2}, v39")
    a("ds_write_b128 v18, v[96:99]")
    a("s_waitcnt lgkmcnt(0)\ns_barrier")
    a("s_cmp_lg_u32 s3, 3\ns_cbranch_scc1 L_noq")
    for k in range(4):
        a(f"ds_read_b128 v[{72+4*k}:{75+4*k}], v19 offset:{1024*k}")
    a("s_waitcnt lgkmcnt(0)")
    for r in range(4):
        a(f"v_add_f32 v{72+r}, v{72+r}, v{76+r}\nv_add_f32 v{80+r}, v{80+r}, v{84+r}")
    for r in range(4):
        a(f"v_add_f32 v{72+r}, v{72+r}, v{80+r}")
    tag([72, 73, 74, 75], q=True)
    publish(T, "buffer_store_dwordx4 v[72:75], v38, s[64:67], s13 offen", cond=True, local=True)
    a.label("L_noq")
    stamp(2)
    for i in range(NK0 + NKQ, 16):
        kload(i, W)
    a("s_lshr_b32 s8, s3, 1\ns_lshl_b32 s9, s6, 1\ns_add_u32 s8, s8, s9\ns_lshl_b32 s8, s8, 13")
    a("s_lshr_b32 s9, s7, 3\ns_lshl_b32 s9, s9, 9\ns_add_u32 s8, s8, s9\ns_and_b32 s9, s3, 1\ns_lshl_b32 s9, s9, 8\ns_add_u32 s8, s8, s9")
    a(f"s_add_u32 s8, s8, {WS_QP}\ns_add_u32 s8, s8, s98\ns_add_u32 s9, s8, 4096")
    def qgather(Tk, window=None):
        ids = []
        for r in range(8):
            ids.append(Tk.issue(f"buffer_load_dword v{40+r}, v9, s[64:67], {'s8' if r < 4 else 's9'} offen offset:{(r%4)*1024} sc1"))
        return ids
    qg = qgather(T)
    vops = []
    def vload(i, window):
        if i >= 16: return
        vops.append(T.issue(f"buffer_load_dwordx4 v[{104+4*i}:{107+4*i}], v39, s[44:47], s15 offen offset:{(i%4)*1024} nt", window=window))
        if i % 4 == 3:
            a("s_add_u32 s15, s15, 131072")
    for i in range(NV0):
        vload(i, max(W, NV0) + 8 if i >= W else W + 8)
    T.wait(qg[-1])
    a("s_branch L_qchk")
    a.label("L_qretry")
    a("s_sleep 1")
    Tr = T.fork(); qgather(Tr); a("s_waitcnt vmcnt(0)")
    a.label("L_qchk")
    untag(list(range(40, 48)), 48, q=True)
    check_retry(48, "L_qretry", 1, q=True)
    for r in range(0, 8, 2):
        a(f"v_add_f32 v{40+r}, v{40+r}, v{41+r}")
    a("v_add_f32 v40, v40, v42\nv_add_f32 v44, v44, v46\nv_add_f32 v40, v40, v44")
    a("v_cvt_pk_bf16_f32 v40, v40, v40")
    a(f"s_lshl_b32 s8, s3, 7\ns_add_u32 s8, s8, {L_QB}\nv_lshlrev_b32 v14, 1, v0\nv_add_u32 v14, s8, v14")
    a("ds_write_b16 v14, v40")
    a(f"v_and_b32 v14, 1, v1\nv_lshlrev_b32 v14, 8, v14\nv_lshl_add_u32 v14, v2, 4, v14\nv_add_u32 v14, {L_QB}, v14")
    for j in range(4):
        a(f"v_add_u32 v{20+j}, {4*j}, v2\nv_xor_b32 v{20+j}, v{20+j}, v1\nv_lshlrev_b32 v{20+j}, 4, v{20+j}\nv_lshl_add_u32 v{20+j}, v1, 8, v{20+j}\nv_add_u32 v{20+j}, s100, v{20+j}")
    a("s_waitcnt lgkmcnt(0)\ns_barrier")
    stamp(3)
    for j in range(4):
        a(f"ds_read_b128 v[{40+4*j}:{43+4*j}], v14 offset:{64*j}")
    def kread(t):
        base = 56 + 16 * (t % 2)
        for j in range(4):
            a(f"ds_read_b128 v[{base+4*j}:{base+4*j+3}], v{20+j} offset:{4096*t}")
    kread(0); kread(1)
    nv = NV0
    for t in range(4):
        base = 56 + 16 * (t % 2)
        a(f"s_waitcnt lgkmcnt({4 if t < 3 else 0})")
        for j in range(4):
            c = "0" if j == 0 else f"v[{88+4*t}:{91+4*t}]"
            a(f"v_mfma_f32_16x16x32_bf16 v[{88+4*t}:{91+4*t}], v[{40+4*j}:{43+4*j}], v[{base+4*j}:{base+4*j+3}], {c}")
        if t + 2 < 4:
            a("s_nop 1")
            kread(t + 2)
        vload(nv, W); nv += 1
    for h in range(2):
        a(f"v_cndmask_b32 v{24+h}, v{88+h}, v{92+h}, s[92:93]")
    for h in range(2):
        a(f"v_cndmask_b32 v{24+h}, v{24+h}, v{96+h}, s[94:95]")
    for h in range(2):
        a(f"v_cndmask_b32 v{24+h}, v{24+h}, v{100+h}, s[96:97]")
    a("v_cvt_pk_bf16_f32 v26, v24, v25\nv_lshlrev_b32 v24, 16, v26\nv_and_b32 v25, 0xffff0000, v26")
    sc = float_lit(128 ** -0.5)
    a(f"v_mul_f32 v24, {sc}, v24\nv_mul_f32 v25, {sc}, v25")
    a("v_cvt_pk_bf16_f32 v26, v24, v25\nv_lshlrev_b32 v24, 16, v26\nv_and_b32 v25, 0xffff0000, v26")
    a("v_mov_b32 v26, v24\nv_mov_b32 v27, v25")
    row_allreduce("v_max_f32", [26, 27])
    swap_reduce("v_max_f32", [26, 27], [14, 15], 16)
    swap_reduce("v_max_f32", [26, 27], [14, 15], 32)
    a(f"s_lshl_b32 s8, s3, 3\ns_add_u32 s8, s8, {L_MX}\nv_mov_b32 v14, s8\nv_mov_b32 v16, {L_MX}")
    a("ds_write_b64 v14, v[26:27]")
    vload(nv, W); nv += 1
    a("s_waitcnt lgkmcnt(0)\ns_barrier")
    a("ds_read_b128 v[40:43], v16\nds_read_b128 v[44:47], v16 offset:16")
    a("s_waitcnt lgkmcnt(0)")
    a("v_max3_f32 v26, v40, v42, v44\nv_max3_f32 v27, v41, v43, v45\nv_max_f32 v26, v26, v46\nv_max_f32 v27, v27, v47")
    l2e = float_lit(1.4426950408889634)
    a("v_sub_f32 v24, v24, v26\nv_sub_f32 v25, v25, v27")
    a(f"v_mul_f32 v24, {l2e}, v24\nv_mul_f32 v25, {l2e}, v25")
    a("v_exp_f32 v24, v24\nv_exp_f32 v25, v25")
    a(f"s_lshl_b32 s8, s3, 9\ns_add_u32 s8, s8, {L_PT}")
    a("v_and_b32 v15, 3, v0\nv_lshlrev_b32 v15, 6, v15\nv_lshrrev_b32 v17, 2, v0\nv_lshl_add_u32 v15, v17, 2, v15\nv_add_u32 v15, s8, v15")
    a("v_cvt_pk_bf16_f32 v40, v24, v24\nv_cvt_pk_bf16_f32 v41, v25, v25")
    a("ds_write_b32 v15, v40\nds_write_b32 v15, v41 offset:256")
    a("v_lshrrev_b32 v17, 3, v1\nv_lshlrev_b32 v17, 8, v17\nv_lshl_add_u32 v17, v2, 6, v17\nv_add_u32 v17, s8, v17")
    row_allreduce("v_add_f32", [24, 25])
    swap_reduce("v_add_f32", [24, 25], [42, 43], 16)
    swap_reduce("v_add_f32", [24, 25], [42, 43], 32)
    a("ds_write_b64 v14, v[24:25] offset:32")
    a("s_waitcnt lgkmcnt(0)")
    for q in range(4):
        a(f"ds_read_b128 v[{240+4*q}:{243+4*q}], v17 offset:{16*q}")
    vload(nv, W); nv += 1
    a("s_waitcnt lgkmcnt(0)")
    for u in range(16):
        for j in range(4):
            a(f"v_and_b32 v{40+4*u+j}, v{240+u}, v{32+j}")
        if u % 4 == 3 and nv < 16:
            vload(nv, W); nv += 1
    a("s_barrier")
    a("s_cmp_lg_u32 s3, 1\ns_cbranch_scc1 L_noml")
    a("ds_read_b128 v[240:243], v16 offset:32\nds_read_b128 v[244:247], v16 offset:48")
    a("s_waitcnt lgkmcnt(0)")
    a("v_add_f32 v240, v240, v242\nv_add_f32 v244, v244, v246\nv_add_f32 v241, v241, v243\nv_add_f32 v245, v245, v247")
    a("v_add_f32 v249, v240, v244\nv_add_f32 v251, v241, v245\nv_mov_b32 v248, v26\nv_mov_b32 v250, v27")
    tag([248, 249, 250, 251])
    a(f"s_and_b32 s8, s6, 1\ns_lshl_b32 s8, s8, 11\ns_lshl_b32 s9, s7, 7\ns_add_u32 s8, s8, s9\ns_add_u32 s8, s8, {WS_ML}\ns_add_u32 s8, s8, s99")
    a("s_mov_b64 exec, 1\nv_mov_b32 v14, 0")
    publish(T, "buffer_store_dwordx4 v[248:251], v14, s[64:67], s8 offen", cond=True, local=True)
    a("s_mov_b64 exec, -1")
    a.label("L_noml")
    stamp(4)
    while nv < 16:
        vload(nv, WVT); nv += 1
    a(f"s_lshl_b32 s13, s6, 14\ns_lshl_b32 s9, s7, 9\ns_add_u32 s13, s13, s9\ns_add_u32 s13, s13, {WS_OPART}\ns_add_u32 s13, s13, s98")
    a("v_lshrrev_b32 v14, 1, v2\nv_mul_u32_u24 v14, 7680, v14\nv_add_u32 v28, v14, v38")
    a("s_cmp_lt_u32 s5, 18\ns_cbranch_scc1 L_F")
    Tbr = T.fork()

    def pv_and_publish(Tk, between, lab):
        for u in range(16):
            between(u)
            Tk.wait(vops[u])
            c = "0" if u == 0 else "v[240:243]"
            a(f"v_mfma_f32_16x16x32_bf16 v[240:243], v[{40+4*u}:{43+4*u}], v[{104+4*u}:{107+4*u}], {c}")
        stamp(5)
        a("ds_write_b128 v18, v[240:243]")
        a("s_waitcnt lgkmcnt(0)\ns_barrier")
        a(f"s_cmp_lg_u32 s3, 0\ns_cbranch_scc1 {lab}")
        for k in range(1, 4):
            a(f"ds_read_b128 v[{240+4*k}:{243+4*k}], v19 offset:{1024*k}")
        a("s_waitcnt lgkmcnt(0)")
        for r in range(4):
            a(f"v_add_f32 v{240+r}, v{240+r}, v{244+r}\nv_add_f32 v{248+r}, v{248+r}, v{252+r}")
        for r in range(4):
            a(f"v_add_f32 v{240+r}, v{240+r}, v{248+r}")
        tag([240, 241, 242, 243])
        publish(Tk, "buffer_store_dwordx4 v[240:243], v28, s[64:67], s13 offen", cond=True, local=True)
        a.label(lab)
        stamp(6)

    def tile_loads(base, srdn, soff):
        L = []
        for st in range(2):
            for cb in range(3):
                for rr in range(2):
                    r = base + 24 * st + 8 * cb + 4 * rr
                    L.append(f"buffer_load_dwordx4 v[{r}:{r+3}], v20, s[{srdn}:{srdn+3}], {soff[st]} offen offset:{rr*1152+cb*128} nt")
        return L
    def tile_swap(base):
        for k in range(6):
            r = base + 8 * k
            a(f"v_swap_b32 v{r+2}, v{r+4}\nv_swap_b32 v{r+3}, v{r+5}")
    def tile_mfma(Tk, base, sout, with_ys, vbp, bpoffs, vout):
        for k in range(4):
            a(f"ds_bpermute_b32 v{96+k}, v{vbp}, v64 offset:{bpoffs[k]}")
        for st in range(2):
            a(f"s_waitcnt lgkmcnt({2-2*st})")
            a(f"v_and_b32 v{68+4*st}, v{96+2*st}, v36\nv_and_b32 v{69+4*st}, v{96+2*st}, v37\nv_and_b32 v{70+4*st}, v{97+2*st}, v36\nv_and_b32 v{71+4*st}, v{97+2*st}, v37")
        for k in range(6):
            for st in range(2):
                r = base + 24 * st + 4 * k
                c = "0" if st == 0 else f"v[{40+4*k}:{43+4*k}]"
                a(f"v_mfma_f32_16x16x32_bf16 v[{40+4*k}:{43+4*k}], v[{68+4*st}:{71+4*st}], v[{r}:{r+3}], {c}")
            if k >= 2:
                kk = k - 2
                a(f"ds_write_b128 v22, v[{40+4*kk}:{43+4*kk}] offset:{((kk//2)*16 + (kk%2))*16}")
        for kk in (4, 5):
            a(f"ds_write_b128 v22, v[{40+4*kk}:{43+4*kk}] offset:{((kk//2)*16 + (kk%2))*16}")
        a("s_mov_b64 exec, 0xffffff")
        a("s_waitcnt lgkmcnt(0)\ns_barrier")
        for p in range(8):
            a(f"ds_read_b128 v[{64+4*p}:{67+4*p}], v23 offset:{1536*p}")
        for p in range(0, 8, 2):
            a(f"s_waitcnt lgkmcnt({6-p})")
            a(f"v_pk_add_f32 v[{64+4*p}:{65+4*p}], v[{64+4*p}:{65+4*p}], v[{68+4*p}:{69+4*p}]\nv_pk_add_f32 v[{66+4*p}:{67+4*p}], v[{66+4*p}:{67+4*p}], v[{70+4*p}:{71+4*p}]")
            if p == 2 or p == 6:
                q = p - 2
                a(f"v_pk_add_f32 v[{64+4*q}:{65+4*q}], v[{64+4*q}:{65+4*q}], v[{72+4*q}:{73+4*q}]\nv_pk_add_f32 v[{66+4*q}:{67+4*q}], v[{66+4*q}:{67+4*q}], v[{74+4*q}:{75+4*q}]")
        a("v_pk_add_f32 v[64:65], v[64:65], v[80:81]\nv_pk_add_f32 v[66:67], v[66:67], v[82:83]")
        tag([64, 65, 66, 67])
        Tk.issue(f"buffer_store_dwordx4 v[64:67], v{vout}, s[64:67], {sout} offen sc1")
        a("s_mov_b64 exec, -1")
    def out_voffset(scol, nprod, dst):
        a("s_lshr_b32 s8, s3, 1\ns_mul_i32 s8, s8, 384")
        a(f"s_and_b32 s9, s3, 1\ns_mul_i32 s9, s9, 96\ns_add_u32 s9, s9, {scol}")
        a("v_lshlrev_b32 v14, 2, v0\nv_add_u32 v14, s9, v14")
        a("v_mul_u32_u24 v15, 911, v14\nv_lshrrev_b32 v15, 16, v15")
        a("v_mul_u32_u24 v16, 72, v15\nv_sub_u32 v14, v14, v16")
        a(f"v_lshlrev_b32 v15, 18, v15\nv_lshl_add_u32 v{dst}, v14, 2, v15\nv_add_u32 v{dst}, s8, v{dst}")
    def half8(op, r):
        a(f"{op}_dpp v{r}, v{r}, v{r} quad_perm:[1,0,3,2] row_mask:0xf bank_mask:0xf")
        a(f"{op}_dpp v{r}, v{r}, v{r} quad_perm:[2,3,0,1] row_mask:0xf bank_mask:0xf")
        a(f"{op}_dpp v{r}, v{r}, v{r} row_half_mirror row_mask:0xf bank_mask:0xf")

    T = Tbr.fork()
    a("s_sub_u32 s10, s5, 18")
    srd(52, 24, 4096 * 576 * 2); srd(60, 32, 4608 * 576 * 2)
    a("v_lshrrev_b32 v20, 3, v1\nv_lshlrev_b32 v20, 3, v20\nv_lshl_add_u32 v20, v2, 1, v20\nv_mul_u32_u24 v20, 1152, v20\nv_and_b32 v14, 7, v1\nv_lshl_add_u32 v20, v14, 4, v20")
    a("s_mul_i32 s11, s10, 11\ns_lshr_b32 s11, s11, 5")
    a("s_mul_i32 s8, s11, 3\ns_sub_u32 s80, s10, s8")
    a("s_lshl_b32 s8, s4, 2\ns_add_u32 s11, s11, s8")
    a("s_lshl_b32 s8, s11, 7\ns_lshl_b32 s9, s3, 5\ns_add_u32 s8, s8, s9\ns_mul_i32 s8, s8, 1152\ns_mul_i32 s9, s80, 384\ns_add_u32 s81, s8, s9")
    a(f"s_bfe_u32 s8, s11, 0x10001\ns_lshl_b32 s8, s8, 11\ns_add_u32 s86, s8, {WS_ML}\ns_add_u32 s86, s86, s99")
    a("s_cmp_ge_u32 s10, 12\ns_cselect_b32 s81, 0x7fff0000, s81\ns_cselect_b32 s86, 0x7fff0000, s86")
    a(f"s_add_u32 s82, s81, {16*1152}")
    a("v_lshlrev_b32 v25, 7, v1")
    if mlearly == 1:
        mlg = T.issue("buffer_load_dwordx4 v[232:235], v25, s[64:67], s86 offen sc1")
    wol = tile_loads(168, 52, ["s81", "s82"])
    woo = [T.issue(wol[k], window=WE + W) for k in range(12)]
    if mlearly == 2:
        mlg = T.issue("buffer_load_dwordx4 v[232:235], v25, s[64:67], s86 offen sc1")
    a("v_bfe_u32 v14, v1, 2, 1\nv_lshlrev_b32 v3, 4, v14\nv_lshrrev_b32 v14, 3, v1\nv_lshl_add_u32 v3, v14, 2, v3\nv_add_u32 v3, v3, v2\nv_lshlrev_b32 v21, 3, v3\nv_lshlrev_b32 v3, 2, v3")
    a("s_mul_i32 s8, s3, 3072")
    a("v_lshrrev_b32 v14, 3, v1\nv_mul_u32_u24 v22, 1536, v14\nv_and_b32 v14, 1, v2\nv_mul_u32_u24 v14, 768, v14\nv_add_u32 v22, v22, v14\nv_and_b32 v14, 7, v1\nv_lshl_add_u32 v22, v14, 5, v22")
    a(f"v_add_u32 v22, s8, v22")
    a("v_lshrrev_b32 v14, 3, v1\nv_lshrrev_b32 v15, 1, v2\nv_cmp_eq_u32 vcc, v14, v15\nv_add_u32 v14, 16384, v39\nv_cndmask_b32 v22, v14, v22, vcc")
    a("s_mul_i32 s8, s3, 384\nv_add_u32 v23, s8, v39")
    a("s_mul_i32 s84, s80, 192")
    out_voffset("s84", 32, 24)
    a(f"s_mul_i32 s85, s11, 768\ns_add_u32 s85, s85, {WS_Y}")
    a(f"s_lshl_b32 s8, s3, 6\ns_add_u32 s8, s8, {L_WT}\nv_lshlrev_b32 v6, 2, v1\nv_add_u32 v6, s8, v6")
    a("v_lshlrev_b32 v7, 5, v4\nv_add_u32 v7, s8, v7")
    a(f"s_lshl_b32 s83, s11, 13\ns_lshl_b32 s8, s3, 7\ns_add_u32 s83, s83, s8\ns_add_u32 s83, s83, {WS_OPART}\ns_add_u32 s83, s83, s98")
    a("v_lshlrev_b32 v26, 12, v4\nv_lshl_add_u32 v26, v5, 2, v26")
    a("s_mul_i32 s48, s4, 14\ns_add_u32 s48, s48, s10")
    a("s_mul_i32 s8, s48, 171\ns_lshr_b32 s87, s8, 9")
    a("s_mul_i32 s8, s87, 3\ns_sub_u32 s49, s48, s8")
    a("s_lshl_b32 s8, s87, 7\ns_lshl_b32 s9, s3, 5\ns_add_u32 s8, s8, s9\ns_mul_i32 s8, s8, 1152\ns_mul_i32 s9, s49, 384\ns_add_u32 s50, s8, s9")
    a(f"s_add_u32 s51, s50, {16*1152}")
    a("s_mul_i32 s84, s49, 192")
    out_voffset("s84", 36, 8)
    a(f"s_mul_i32 s40, s87, 768\ns_add_u32 s40, s40, {WS_OP}")
    blkbase("s12", "s87")
    a("s_add_u32 s41, s12, 0x6000")
    a("v_and_b32 v10, 7, v0\nv_lshlrev_b32 v10, 7, v10")
    a("s_lshl_b32 s9, s3, 7\ns_add_u32 s56, s12, s9\ns_add_u32 s88, s56, 0x4000\ns_add_u32 s89, s88, 4096")
    a("v_lshlrev_b32 v12, 9, v4\nv_lshl_add_u32 v12, v1, 3, v12")
    a("s_add_u32 s57, s56, 4096\ns_add_u32 s58, s56, 8192\ns_add_u32 s59, s56, 12288")
    a("v_lshlrev_b32 v11, 9, v2\nv_lshl_add_u32 v11, v1, 3, v11")
    a("v_and_b32 v14, 1, v2\nv_cmp_eq_u32 s[42:43], 1, v14")
    a("v_readlane_b32 s8, v29, 0\nv_readlane_b32 s9, v29, 32\nv_mov_b32 v13, s8\nv_mov_b32 v14, s9\nv_cndmask_b32 v13, v13, v14, s[42:43]")
    pv_and_publish(T, lambda u: None, "L_noopE")
    a("s_cmp_ge_u32 s10, 12\ns_cbranch_scc1 L_E_D")
    gML = Gather([("buffer_load_dwordx4 v[232:235], v25, s[64:67], s86 offen sc1", [232, 233, 234, 235])], [96], tmp=76)
    gO = Gather([(f"buffer_load_dword v{64+s_}, v26, s[64:67], s83 offen offset:{512*s_} sc1", [64+s_]) for s_ in range(8)], MK, tmp=76)
    gML.issue(); gO.issue()
    stamp(16)
    a("s_waitcnt vmcnt(9)")
    stamp(17)
    tile_swap(168)
    a("s_waitcnt vmcnt(8)")
    stamp(18)
    gML.loop()
    stamp(19)
    a("s_bitcmp1_b32 s11, 0\ns_cselect_b64 vcc, -1, 0")
    a("v_cndmask_b32 v72, v232, v234, vcc\nv_cndmask_b32 v73, v233, v235, vcc")
    a("v_mov_b32 v74, v72")
    half8("v_max_f32", 74)
    a(f"v_sub_f32 v72, v72, v74\nv_mul_f32 v72, {l2e}, v72\nv_exp_f32 v72, v72")
    a("v_mul_f32 v73, v73, v72")
    half8("v_add_f32", 73)
    a("v_rcp_f32 v73, v73")
    a("v_mul_f32 v72, v72, v73")
    a("ds_write_b32 v6, v72")
    a("s_waitcnt lgkmcnt(0)")
    a("ds_read_b128 v[88:91], v7\nds_read_b128 v[92:95], v7 offset:16")
    stamp(7)
    T.drain()
    stamp(20)
    gO.loop()
    stamp(8)
    a("s_waitcnt lgkmcnt(0)")
    a("v_mul_f32 v64, v64, v88\nv_mul_f32 v65, v65, v89")
    for s_ in range(2, 8, 2):
        a(f"v_fmac_f32 v64, v{64+s_}, v{88+s_}\nv_fmac_f32 v65, v{65+s_}, v{89+s_}")
    a("v_add_f32 v64, v64, v65\nv_cvt_pk_bf16_f32 v64, v64, v64")
    tile_mfma(T, 168, "s85", True, 21, [0, 4, 64, 68], 24)
    stamp(9)
    a.label("L_E_D")
    T.ops = [(o, True) for (o, _) in T.ops]
    a("s_cmp_ge_u32 s48, 108\ns_cbranch_scc1 L_fin")
    w2l = tile_loads(104, 60, ["s50", "s51"])
    for k in range(12):
        T.issue(w2l[k], window=WE2)
    gST = Gather([("buffer_load_dwordx4 v[64:67], v10, s[64:67], s41 offen sc1", [64, 65, 66, 67])], [96], tmp=76)
    gS = Gather([(f"buffer_load_dwordx2 v[{184+2*rg}:{185+2*rg}], v12, s[64:67], s{88+rg//4} offen offset:{1024*(rg%4)} sc1", [184+2*rg, 185+2*rg]) for rg in range(8)], MK2, tmp=76)
    gG = Gather([(f"buffer_load_dwordx2 v[{168+2*rg}:{169+2*rg}], v11, s[64:67], s{56+rg//2} offen offset:{2048*(rg%2)} sc1", [168+2*rg, 169+2*rg]) for rg in range(8)], MK, tmp=76)
    gST.issue()
    a("s_waitcnt vmcnt(1)")
    a("s_barrier")
    stamp(10)
    tile_swap(104)
    T.drain()
    gST.loop(sleep=stsleep)
    gS.issue(); gG.issue()
    row_allreduce("v_add_f32", [64, 65, 66, 67], steps=(4, 2, 1))
    a("v_cndmask_b32 v64, v64, v66, s[42:43]\nv_cndmask_b32 v65, v65, v67, s[42:43]")
    a(f"v_mul_f32 v64, {float_lit(1/576)}, v64\nv_mul_f32 v65, {float_lit(1/576)}, v65")
    a("v_fma_f32 v65, -v64, v64, v65\nv_max_f32 v65, 0, v65")
    a("v_add_f32 v64, v64, v13")
    bf16r(65, 65)
    bf16r(64, 64)
    a(f"v_add_f32 v65, {float_lit(1e-5)}, v65")
    bf16r(65, 65)
    a("v_sqrt_f32 v65, v65")
    bf16r(65, 65)
    a("v_rcp_f32 v27, v65")
    stamp(11)
    a("s_waitcnt vmcnt(8)")
    gS.loop()
    for k in range(0, 16, 4):
        a(f"v_pk_add_f32 v[{184+k}:{185+k}], v[{184+k}:{185+k}], v[{186+k}:{187+k}]")
    a("v_pk_add_f32 v[184:185], v[184:185], v[188:189]\nv_pk_add_f32 v[192:193], v[192:193], v[196:197]")
    a("v_pk_add_f32 v[24:25], v[184:185], v[192:193]")
    a("v_permlane32_swap_b32 v24, v25")
    a("v_mul_f32 v24, v24, v64\nv_mul_f32 v25, v25, v64")
    a("s_waitcnt vmcnt(0)")
    gG.loop()
    stamp(12)
    for k in range(0, 16, 4):
        a(f"v_pk_add_f32 v[{168+k}:{169+k}], v[{168+k}:{169+k}], v[{170+k}:{171+k}]")
    a("v_pk_add_f32 v[168:169], v[168:169], v[172:173]\nv_pk_add_f32 v[176:177], v[176:177], v[180:181]")
    a("v_pk_add_f32 v[64:65], v[168:169], v[176:177]")
    a("v_permlane32_swap_b32 v64, v65")
    a("v_sub_f32 v64, v64, v24\nv_sub_f32 v65, v65, v25")
    a("v_mul_f32 v64, v64, v27\nv_mul_f32 v65, v65, v27")
    a("v_cvt_pk_bf16_f32 v66, v64, v65\nv_lshlrev_b32 v64, 16, v66\nv_and_b32 v65, 0xffff0000, v66")
    a(f"v_mul_f32 v66, {float_lit(-1.4426950408889634)}, v64\nv_exp_f32 v66, v66")
    a("v_add_f32 v66, 1.0, v66\nv_rcp_f32 v66, v66")
    a("v_mul_f32 v64, v64, v66")
    bf16r(64, 64)
    a("v_mul_f32 v64, v64, v65\nv_cvt_pk_bf16_f32 v64, v64, v64")
    tile_mfma(T, 104, "s40", False, 3, [0, 128, 32, 160], 8)
    stamp(13)
    a("s_branch L_fin")

    a.label("L_F")
    T = Tbr.fork()
    a("s_cmp_ge_u32 s3, 2\ns_cselect_b32 s56, s30, s28\ns_cselect_b32 s57, s31, s29\ns_and_b32 s57, s57, 0xffff")
    a(f"s_mov_b32 s58, {576*4608*2}\ns_mov_b32 s59, 0x00020000")
    a("v_mul_u32_u24 v20, 9216, v2\nv_lshl_add_u32 v20, v1, 4, v20")
    a(f"s_mul_i32 s81, s4, {72*9216}\ns_lshl_b32 s9, s5, 9\ns_add_u32 s81, s81, s9\ns_and_b32 s9, s3, 1\ns_lshl_b32 s9, s9, 8\ns_add_u32 s81, s81, s9")
    gl = []
    def gload(t, window):
        gl.append(T.issue(f"buffer_load_dwordx4 v[{168+4*t}:{171+4*t}], v20, s[56:59], s81 offen nt", window=window))
        a(f"s_add_u32 s81, s81, {4*9216}")
    a("v_mul_u32_u24 v21, 1152, v4\nv_lshl_add_u32 v21, v5, 3, v21\ns_mul_i32 s8, s4, 144")
    xres = T.issue("buffer_load_dwordx2 v[26:27], v21, s[68:71], s8 offen")
    a(f"s_mul_i32 s82, s3, {8*768}\ns_add_u32 s82, s82, s99\ns_add_u32 s82, s82, {WS_Y}\ns_add_u32 s83, s82, 3072")
    a("v_mul_u32_u24 v21, 384, v4\nv_lshl_add_u32 v21, v5, 4, v21")
    a("s_lshl_b32 s8, s3, 10\nv_add_u32 v22, s8, v39")
    a(f"s_mul_i32 s84, s3, 640\ns_add_u32 s84, s84, {L_XT}")
    a("v_mul_u32_u24 v23, 320, v4\nv_lshl_add_u32 v23, v5, 2, v23\nv_add_u32 v23, s84, v23")
    a("v_lshrrev_b32 v14, 3, v1\nv_mul_u32_u24 v24, 320, v14\nv_mul_u32_u24 v14, 80, v2\nv_add3_u32 v24, v24, v14, s84")
    a(f"v_mul_u32_u24 v25, 288, v4\nv_lshl_add_u32 v25, v5, 4, v25\nv_add_u32 v25, {L_H}, v25")
    a("s_lshl_b32 s10, s5, 1")
    blkbase("s11", "s10")
    a("s_add_u32 s10, s10, 1")
    blkbase("s12", "s10")
    a("s_bitcmp1_b32 s3, 0\ns_cselect_b32 s10, s12, s11")
    a("s_lshl_b32 s8, s4, 1\ns_lshr_b32 s9, s3, 1\ns_add_u32 s8, s8, s9")
    a("s_lshl_b32 s85, s8, 10\ns_add_u32 s85, s85, s10\ns_lshl_b32 s87, s8, 9\ns_add_u32 s87, s87, s10\ns_add_u32 s87, s87, 0x4000")
    a("s_lshl_b32 s9, s4, 7\ns_add_u32 s86, s11, s9\ns_add_u32 s86, s86, 0x6000\ns_sub_u32 s12, s12, s11")
    a("v_mul_lo_u32 v6, s12, v0")
    for j in range(4):
        a(f"v_and_b32 v{10+j}, 0x3f803f80, v{32+j}")
    srd(72, 34, 2304)
    a("s_cmp_ge_u32 s5, 9\ns_cselect_b32 s11, 96, 0\ns_lshl_b32 s9, s5, 5\ns_add_u32 s11, s11, s9")
    a(f"s_add_u32 s40, s99, s11\ns_add_u32 s40, s40, {WS_OP}")
    a("v_lshrrev_b32 v14, 3, v0\nv_mul_u32_u24 v7, 768, v14\nv_and_b32 v14, 7, v0\nv_lshl_add_u32 v7, v14, 2, v7")
    a(f"s_add_u32 s10, s9, {L_H}\nv_lshlrev_b32 v8, 2, v14\nv_add_u32 v8, s10, v8")
    for i in range(1, 4):
        a(f"s_add_u32 s{40+i}, s40, {8*768*i}")
    a(f"s_add_u32 s48, s40, {8*768*4}")
    a("s_cmp_ge_u32 s5, 9\ns_cselect_b32 s10, 504, 0\ns_mul_i32 s11, s4, 72\ns_add_u32 s10, s10, s11\ns_lshl_b32 s11, s5, 3\ns_add_u32 s10, s10, s11\ns_lshl_b32 s10, s10, 1")
    a("v_lshlrev_b32 v3, 1, v14")
    ng = [0]
    def betweenF(u):
        if u >= 16 - WFP and ng[0] < 18:
            gload(ng[0], None); ng[0] += 1
    pv_and_publish(T, betweenF, "L_noopF")
    ns = [0]
    def smfma():
        t = ns[0]; ns[0] += 1
        T.wait(gl[t])
        c = "0" if t == 0 else "v[244:247]"
        a(f"v_mfma_f32_16x16x32_bf16 v[244:247], v[10:13], v[{168+4*t}:{171+4*t}], {c}")
    while ng[0] < 18:
        if ng[0] >= WF:
            smfma()
        gload(ng[0], WF); ng[0] += 1
    stamp(7)
    gY = Gather([(f"buffer_load_dwordx4 v[{40+4*k}:{43+4*k}], v21, s[64:67], {'s82' if k < 4 else 's83'} offen offset:{768*(k%4)} sc1", list(range(40+4*k, 44+4*k))) for k in range(8)],
                MK, base=[(0x3ffff, 0x3ffff)] * 8, tmp=76)
    gY.issue(T)
    a("v_lshlrev_b32 v100, 16, v26\nv_and_b32 v101, 0xffff0000, v26\nv_lshlrev_b32 v102, 16, v27\nv_and_b32 v103, 0xffff0000, v27")
    while ns[0] < 18:
        smfma()
    tag([244, 245, 246, 247])
    a("s_mov_b32 exec_hi, 0")
    T.issue("buffer_store_dwordx4 v[244:247], v38, s[64:67], s87 offen sc1")
    a("s_mov_b64 exec, -1")
    stamp(16)
    a("s_waitcnt vmcnt(1)")
    stamp(17)
    T.ops = [(o, True) for (o, _) in T.ops[-1:]]
    gY.loop()
    stamp(8)
    for k in range(0, 8, 2):
        a(f"v_pk_add_f32 v[{40+4*k}:{41+4*k}], v[{40+4*k}:{41+4*k}], v[{44+4*k}:{45+4*k}]\nv_pk_add_f32 v[{42+4*k}:{43+4*k}], v[{42+4*k}:{43+4*k}], v[{46+4*k}:{47+4*k}]")
    for k in (0, 4):
        a(f"v_pk_add_f32 v[{40+4*k}:{41+4*k}], v[{40+4*k}:{41+4*k}], v[{48+4*k}:{49+4*k}]\nv_pk_add_f32 v[{42+4*k}:{43+4*k}], v[{42+4*k}:{43+4*k}], v[{50+4*k}:{51+4*k}]")
    a("v_pk_add_f32 v[40:41], v[40:41], v[56:57]\nv_pk_add_f32 v[42:43], v[42:43], v[58:59]")
    a("ds_write_b128 v22, v[40:43]")
    a("s_waitcnt lgkmcnt(0)\ns_barrier")
    stamp(18)
    for k in range(4):
        a(f"ds_read_b128 v[{40+4*k}:{43+4*k}], v39 offset:{1024*k}")
    a("s_waitcnt lgkmcnt(2)")
    a("v_pk_add_f32 v[40:41], v[40:41], v[44:45]\nv_pk_add_f32 v[42:43], v[42:43], v[46:47]")
    a("s_waitcnt lgkmcnt(0)")
    a("v_pk_add_f32 v[48:49], v[48:49], v[52:53]\nv_pk_add_f32 v[50:51], v[50:51], v[54:55]")
    a("v_pk_add_f32 v[40:41], v[40:41], v[48:49]\nv_pk_add_f32 v[42:43], v[42:43], v[50:51]")
    a("v_cvt_pk_bf16_f32 v44, v40, v41\nv_cvt_pk_bf16_f32 v45, v42, v43")
    a("v_lshlrev_b32 v40, 16, v44\nv_and_b32 v41, 0xffff0000, v44\nv_lshlrev_b32 v42, 16, v45\nv_and_b32 v43, 0xffff0000, v45")
    a("v_pk_add_f32 v[40:41], v[40:41], v[100:101]\nv_pk_add_f32 v[42:43], v[42:43], v[102:103]")
    a("s_mov_b32 exec_lo, 0x3ffff\ns_mov_b32 exec_hi, 0x3ffff")
    for r in range(4):
        a(f"v_cvt_pk_bf16_f32 v{48+r}, v{40+r}, v{40+r}\nds_write_b32 v23, v{48+r} offset:{80*r}")
    a("s_mov_b64 exec, -1")
    a("s_waitcnt lgkmcnt(0)")
    for q in range(5):
        a(f"ds_read_b128 v[{64+4*q}:{67+4*q}], v24 offset:{16*q}")
    for r in range(4):
        a(f"v_and_b32 v{40+r}, 0xffff0000, v{48+r}")
    a("s_cmp_lg_u32 s3, 3\ns_cbranch_scc1 L_nost")
    for r in range(4):
        a(f"v_sub_f32 v{44+r}, v{40+r}, v29")
    a("v_add_f32 v52, v44, v45\nv_add_f32 v53, v46, v47\nv_mul_f32 v54, v44, v44\nv_mul_f32 v55, v45, v45")
    a("v_fmac_f32 v54, v46, v46\nv_fmac_f32 v55, v47, v47\nv_add_f32 v52, v52, v53\nv_add_f32 v53, v54, v55")
    a("v_cmp_gt_u32 vcc, 18, v5\nv_cndmask_b32 v52, 0, v52, vcc\nv_cndmask_b32 v53, 0, v53, vcc")
    row_allreduce("v_add_f32", [52, 53])
    swap_reduce("v_add_f32", [52, 53], [54, 55], 16)
    a("v_mov_b32 v54, v52\nv_mov_b32 v55, v53")
    a("v_permlane32_swap_b32 v52, v54\nv_permlane32_swap_b32 v53, v55")
    tag([52, 53, 54, 55])
    a("s_mov_b64 exec, 3")
    T.issue("buffer_store_dwordx4 v[52:55], v6, s[64:67], s86 offen sc1", cond=True)
    a("s_mov_b64 exec, -1")
    a.label("L_nost")
    stamp(19)
    for t in range(18):
        s0 = 84 + 4 * (t % 4)
        if t % 4 == 0:
            a(f"s_waitcnt lgkmcnt({4 - t//4})")
        for j in range(4):
            a(f"v_and_b32 v{s0+j}, v{64+t}, v{32+j}")
        c = "0" if t == 0 else "v[240:243]"
        a(f"v_mfma_f32_16x16x32_bf16 v[240:243], v[{s0}:{s0+3}], v[{168+4*t}:{171+4*t}], {c}")
    a("s_mov_b32 exec_lo, 0x3ffff\ns_mov_b32 exec_hi, 0x3ffff")
    a("ds_write_b128 v25, v[40:43]")
    a("s_mov_b64 exec, -1")
    tag([240, 241, 242, 243])
    T.issue("buffer_store_dwordx4 v[240:243], v38, s[64:67], s85 offen sc1")
    stamp(9)
    a("s_cmp_lg_u32 s3, 0\ns_cbranch_scc1 L_fin")
    a("s_waitcnt lgkmcnt(0)\nds_read_b32 v60, v8")
    a("v_mov_b32 v44, 0")
    gR = Gather([(f"buffer_load_dword v{40+i}, v7, s[64:67], s{40+i if i < 4 else 48} offen sc1", [40+i]) for i in range(5)], MK[:5],
                base=[(-1, -1)] * 4 + [(-1, 0)], tmp=76)
    gR.issue()
    a("s_waitcnt vmcnt(0)")
    gR.loop()
    stamp(12)
    a("v_add_f32 v40, v40, v41\nv_add_f32 v42, v42, v43\nv_add_f32 v40, v40, v44\nv_add_f32 v40, v40, v42")
    row_allreduce("v_add_f32", [40], steps=(8,))
    swap_reduce("v_add_f32", [40], [41], 16)
    swap_reduce("v_add_f32", [40], [41], 32)
    bf16r(40, 40)
    a("s_waitcnt lgkmcnt(0)")
    a("v_add_f32 v40, v40, v60\nv_cvt_pk_bf16_f32 v40, v40, v40")
    a("s_mov_b64 exec, 0xff")
    a("buffer_store_short v40, v3, s[72:75], s10 offen")
    a("s_cmp_lg_u32 s2, 0\ns_cbranch_scc1 L_fin")
    a("s_mov_b64 exec, 1\nv_mov_b32 v41, s78\nv_mov_b32 v42, 0")
    a("buffer_store_dword v41, v42, s[64:67], 0 offen sc1")
    a.label("L_fin")
    if dbgtime:
        a("s_mov_b64 exec, 1\ns_memrealtime s[16:17]\ns_waitcnt lgkmcnt(0)")
        a("v_mov_b32 v1, 0\nv_mov_b32 v2, s16\nv_not_b32 v3, v31\nv_sub_u32 v4, v2, v31")
        a("global_atomic_umax v1, v2, s[90:91]\nglobal_atomic_umax v1, v3, s[90:91] offset:4\nglobal_atomic_umax v1, v4, s[90:91] offset:8")
        a("global_atomic_umax v1, v31, s[90:91] offset:12")
    if stamps:
        a("s_mov_b64 exec, -1")
        stamp(14)
        a(f"v_writelane_b32 v31, s79, 15")
        a(f"s_lshl_b32 s8, s2, 2\ns_add_u32 s8, s8, s3\ns_lshl_b32 s8, s8, 8\ns_add_u32 s8, s8, {WS_STAMP}")
        a("buffer_store_dword v31, v9, s[64:67], s8 offen")
    a.label("L_end")
    a("s_endpgm")
    L, n = hazard.fix(a.L)
    body = "\n".join(L) + "\n"
    if codepf:
        body = body.replace("    .CODEPF_GUARD\n",
            "    s_cmp_ge_u32 s8, (L_end - " + NAME + "_kernel)\n    s_cbranch_scc1 L_nopf\n"
            "    v_add_u32 v31, s8, v3\n" if False else
            "    v_add_u32 v4, s8, v3\n"
            "    v_cmp_gt_u32 vcc, (L_end - " + NAME + "_kernel - 64), v4\n"
            "    s_and_saveexec_b64 s[100:101], vcc\n"
            "    s_cbranch_execz L_nopf\n"
            "    global_load_dword v255, v3, s[98:99]\n"
            "L_nopf:\n"
            "    s_mov_b64 exec, -1\n")
    lds = max(L_END, lds_force)
    return wrap(body, 256, 256, lds, 256)

import struct
def float_lit(x):
    return "0x%08x" % struct.unpack("<I", struct.pack("<f", x))[0]

if __name__ == "__main__":
    out = sys.argv[1] if len(sys.argv) > 1 else "k.s"
    kw = {}
    for arg in sys.argv[2:]:
        k, v = arg.split("=")
        kw[k] = int(v)
    open(out, "w").write(gen(**kw))
    print("wrote", out, "LDS", L_END, "WS_END", hex(WS_END))
```

```python
import sys, copy
from asmlib import *
import hazard

WS_EPOCH = 0
WS0 = 0x40000
XR = 0x40000
WS_QP = WS0
WS_OPART = WS0 + 0x8000
WS_ML = WS0 + 0x10000
WS_Y = WS0 + 0x11000
WS_OP = WS0 + 0x17000
WS_G = WS0 + 0x1E000
WS_S = WS0 + 0x2C000
WS_ST = WS0 + 0x33000
WS_XID = WS0 + 0x3E000
LOCOFF = 8 * XR
WS_END = WS0 + 16 * XR
WS_STAMP = 0x8000000

L_K = 0
L_RED = 0
L_RED2 = 65536
L_XN = L_RED2 + 4096
L_QB = L_XN + 4 * 768
L_PT = L_QB + 512
L_MX = L_PT + 2048
L_XT = L_MX + 128
L_WT = L_XT + 4 * 768
L_H = L_WT + 256
L_YS = L_H + 768
L_END = L_YS + 64

TAGMASK = 0x3FF
POLL_MAX = 400000

class Tracker:
    def __init__(self, a):
        self.a = a; self.ops = []; self.n = 0
    def issue(self, ins, cond=False, window=None):
        if window is not None:
            cnt = sum(1 for (_, c) in self.ops if not c)
            if cnt >= window:
                self.a(f"s_waitcnt vmcnt({window-1})")
                self._retire_to(window - 1)
        self.a(ins)
        self.n += 1
        self.ops.append((self.n, cond))
        return self.n
    def _retire_to(self, k):
        keep = []; c = 0
        for op in reversed(self.ops):
            if c >= k: break
            keep.append(op)
            if not op[1]: c += 1
        self.ops = list(reversed(keep))
    def wait(self, opid):
        ids = [o for (o, _) in self.ops]
        if opid not in ids: return
        after = sum(1 for (o, c) in self.ops if o > opid and not c)
        self.a(f"s_waitcnt vmcnt({min(after, 63)})")
        self.ops = [(o, c) for (o, c) in self.ops if o > opid]
    def drain(self):
        self.a("s_waitcnt vmcnt(0)"); self.ops = []
    def fork(self):
        t = Tracker(self.a); t.ops = list(self.ops); t.n = self.n; return t

def gen(W=6, WE=12, WF=6, WFP=2, WE2=10, NK0=6, NKQ=0, NV0=6, WVT=10, dual=1, mlearly=0, woearly=1, WOW=2, w2early=0, fearly=0, ack=0, tlb=0, YCB=3, NL=0, sel=0, db=0, fdelay=0, loc=1, dfr=2, mlat=0, XK=2, XV=2, pretouch=0, psleep=0, dbgtime=0, ldnt=0, stnt=0, stsleep=0, stamps=False, lds_force=0, codepf=True):
    a = Asm()
    T = Tracker(a)
    nst = [0]
    def cnt_stamp(i):
        if stamps: a(f"v_writelane_b32 v31, s79, {i}")
    def stamp(i):
        if stamps:
            a(f"s_memrealtime s[90:91]\ns_waitcnt lgkmcnt(0)\nv_writelane_b32 v31, s90, {i}")
    def srd(d, p, size):
        a(f"s_mov_b32 s{d}, s{p}\ns_and_b32 s{d+1}, s{p+1}, 0xffff\ns_mov_b32 s{d+2}, {size}\ns_mov_b32 s{d+3}, 0x00020000")
    def row_allreduce(op, regs, tmp=None, steps=(8, 4, 2, 1)):
        for st in steps:
            for r in regs:
                a(f"{op}_dpp v{r}, v{r}, v{r} row_ror:{st} row_mask:0xf bank_mask:0xf")
    def swap_reduce(op, regs, tmps, which):
        for r, t in zip(regs, tmps):
            a(f"v_mov_b32 v{t}, v{r}")
        for r, t in zip(regs, tmps):
            a(f"v_permlane{which}_swap_b32 v{r}, v{t}")
        for r, t in zip(regs, tmps):
            a(f"{op} v{r}, v{r}, v{t}")
    def bf16r(dst, src):
        a(f"v_cvt_pk_bf16_f32 v{dst}, v{src}, v{src}\nv_and_b32 v{dst}, 0xffff0000, v{dst}")
    def tag(regs, q=False):
        for r in regs:
            a(f"v_bfi_b32 v{r}, {'63' if q else 's77'}, v30, v{r}")
    def untag(regs, acc, first=True, q=False):
        for r in regs:
            a(f"v_xor_b32 v{r}, {'s75' if q else 'v30'}, v{r}")
        rs = list(regs)
        if first:
            if len(rs) >= 2:
                a(f"v_or_b32 v{acc}, v{rs[0]}, v{rs[1]}"); rs = rs[2:]
            else:
                a(f"v_mov_b32 v{acc}, v{rs[0]}"); rs = rs[1:]
        while len(rs) >= 2:
            a(f"v_or3_b32 v{acc}, v{acc}, v{rs[0]}, v{rs[1]}"); rs = rs[2:]
        if rs:
            a(f"v_or_b32 v{acc}, v{acc}, v{rs[0]}")
    def check_retry(acc, retry_label, code, q=False):
        ok = a.newlabel("L_ok")
        a(f"v_and_b32 v{acc}, {'63' if q else 's77'}, v{acc}\nv_cmp_ne_u32 vcc, 0, v{acc}")
        a(f"s_cbranch_vccz {ok}")
        a(f"s_add_u32 s79, s79, 1\ns_cmp_lt_u32 s79, {POLL_MAX}\ns_cbranch_scc1 {retry_label}")
        a.label(ok)

    def publish(Tk, ins, cond=False, local=False, defer=False):
        if local and loc:
            import re
            m = re.search(r"s\[64:67\], (s\d+) offen", ins)
            a(f"s_add_u32 s101, {m.group(1)}, {LOCOFF}")
            Tk.issue(ins.replace(f"s[64:67], {m.group(1)} offen", "s[64:67], s101 offen"), cond=cond)
            if defer: return ins + " sc1"
        Tk.issue(ins + " sc1", cond=cond)
    class Gather:
        def __init__(g, loads, masks=None, base=None, tmp=None, q=False):
            g.loads = loads; g.tmp = tmp; g.q = q
            g.base = base or [(-1, -1)] * len(loads)
        def issue(g, Tk=None):
            cur = (-1, -1); ids = []
            for (ins, _), b in zip(g.loads, g.base):
                if b != cur:
                    a(f"s_mov_b32 exec_lo, {b[0]}\ns_mov_b32 exec_hi, {b[1]}"); cur = b
                if Tk: ids.append(Tk.issue(ins))
                else: a(ins)
            if cur != (-1, -1): a("s_mov_b64 exec, -1")
            return ids
        def check(g):
            mk = '63' if g.q else 's77'
            groups = []
            for (ins, regs), b in zip(g.loads, g.base):
                if groups and groups[-1][0] == b: groups[-1][1].extend(regs)
                else: groups.append((b, list(regs)))
            first = True
            if groups[0][0] != (-1, -1):
                a(f"v_mov_b32 v{g.tmp}, 0")
            for b, regs in groups:
                if b != (-1, -1): a(f"s_mov_b32 exec_lo, {b[0]}\ns_mov_b32 exec_hi, {b[1]}")
                untag(regs, g.tmp, first=first, q=g.q); first = False
                if b != (-1, -1): a("s_mov_b64 exec, -1")
            a(f"v_and_b32 v{g.tmp}, {mk}, v{g.tmp}\nv_cmp_ne_u32 vcc, 0, v{g.tmp}")
        def loop(g, sleep=0):
            lc = a.newlabel("L_gc"); ld = a.newlabel("L_gd"); lr = a.newlabel("L_gr")
            a(f"s_branch {lc}")
            a.label(lr)
            if sleep or psleep: a(f"s_sleep {max(sleep, psleep)}")
            g.issue()
            a("s_waitcnt vmcnt(0)")
            a.label(lc)
            g.check()
            a(f"s_cbranch_vccz {ld}")
            a(f"s_add_u32 s79, s79, 1\ns_cmp_lt_u32 s79, {POLL_MAX}\ns_cbranch_scc1 {lr}")
            a.label(ld)
    def selloop(g, sp="s16"):
        n = len(g.loads)
        lc = a.newlabel("L_sc"); ld = a.newlabel("L_sd")
        a(f"s_mov_b32 {sp}, {(1 << n) - 1}")
        a.label(lc)
        cur = (-1, -1)
        for k, ((ins, regs), b) in enumerate(zip(g.loads, g.base)):
            if b != cur:
                a(f"s_mov_b32 exec_lo, {b[0]}\ns_mov_b32 exec_hi, {b[1]}"); cur = b
            l = a.newlabel("L_sk")
            a(f"s_bitcmp1_b32 {sp}, {k}\ns_cbranch_scc0 {l}")
            untag(regs, g.tmp)
            a(f"v_and_b32 v{g.tmp}, s77, v{g.tmp}\nv_cmp_ne_u32 vcc, 0, v{g.tmp}")
            a(f"s_cbranch_vccnz {l}r")
            a(f"s_bitset0_b32 {sp}, {k}\ns_branch {l}")
            a.label(l + "r")
            a(ins)
            a.label(l)
        a("s_mov_b64 exec, -1")
        a(f"s_cmp_eq_u32 {sp}, 0\ns_cbranch_scc1 {ld}")
        a(f"s_add_u32 s79, s79, 1\ns_cmp_lt_u32 s79, {POLL_MAX}\ns_waitcnt vmcnt(0)\ns_cbranch_scc1 {lc}")
        a.label(ld)
    def poll2(gA, gB, fin, dbbit, young=0):
        n = len(gA.loads)
        if not (db & dbbit):
            a(f"s_waitcnt vmcnt({young})")
            gA.loop(); fin(0); return
        l0 = a.newlabel("L_p2"); la = a.newlabel("L_p2a"); lb = a.newlabel("L_p2b"); le = a.newlabel("L_p2e")
        a.label(l0)
        gB.issue()
        a(f"s_waitcnt vmcnt({n})")
        gA.check()
        a(f"s_cbranch_vccz {la}")
        gA.issue()
        a(f"s_waitcnt vmcnt({n})")
        gB.check()
        a(f"s_cbranch_vccz {lb}")
        a(f"s_add_u32 s79, s79, 1\ns_cmp_lt_u32 s79, {POLL_MAX}\ns_cbranch_scc1 {l0}")
        a.label(lb)
        fin(1)
        a(f"s_branch {le}")
        a.label(la)
        fin(0)
        a.label(le)
    def quarter_publish(Tk, r, vaddr, soff, q=False, defer=False):
        a("s_mov_b64 exec, s[62:63]")
        for k in range(4):
            a(f"ds_read_b128 v[{r+4*k}:{r+4*k+3}], v19 offset:{1024*k}")
        a("s_waitcnt lgkmcnt(2)")
        a(f"v_pk_add_f32 v[{r}:{r+1}], v[{r}:{r+1}], v[{r+4}:{r+5}]\nv_pk_add_f32 v[{r+2}:{r+3}], v[{r+2}:{r+3}], v[{r+6}:{r+7}]")
        a("s_waitcnt lgkmcnt(0)")
        a(f"v_pk_add_f32 v[{r+8}:{r+9}], v[{r+8}:{r+9}], v[{r+12}:{r+13}]\nv_pk_add_f32 v[{r+10}:{r+11}], v[{r+10}:{r+11}], v[{r+14}:{r+15}]")
        a(f"v_pk_add_f32 v[{r}:{r+1}], v[{r}:{r+1}], v[{r+8}:{r+9}]\nv_pk_add_f32 v[{r+2}:{r+3}], v[{r+2}:{r+3}], v[{r+10}:{r+11}]")
        tag([r, r+1, r+2, r+3], q=q)
        d = publish(Tk, f"buffer_store_dwordx4 v[{r}:{r+3}], v{vaddr}, s[64:67], {soff} offen", local=not q, defer=defer)
        a("s_mov_b64 exec, -1")
        return d
    MK = [16, 18, 20, 22, 24, 26, 28, 30]
    MK2 = [32, 34, 36, 38, 44, 46, 92, 94]
    def tile_loads(base, srdn, soff, rc="v"):
        L = []
        for st in range(len(soff)):
            for cb in range(3):
                for rr in range(2):
                    r = base + 24 * st + 8 * cb + 4 * rr
                    L.append(f"buffer_load_dwordx4 {rc}[{r}:{r+3}], v236, s[{srdn}:{srdn+3}], {soff[st]} offen offset:{rr*1152+cb*128} nt")
        return L
    a("s_cmp_ge_u32 s2, 256\ns_cbranch_scc1 L_end")
    a("s_load_dwordx16 s[16:31], s[0:1], 0\ns_load_dwordx8 s[32:39], s[0:1], 64")
    if stamps:
        a("s_memrealtime s[90:91]\nv_mov_b32 v31, 0")
    if dbgtime:
        a("s_memrealtime s[90:91]\ns_memtime s[92:93]\ns_waitcnt lgkmcnt(0)\nv_mov_b32 v31, s90\nv_mov_b32 v253, s92\ns_mov_b32 s90, s36\ns_mov_b32 s91, s37")
    a("v_lshrrev_b32 v1, 6, v0\nv_and_b32 v0, 63, v0")
    a("v_readfirstlane_b32 s3, v1")
    if codepf:
        a("s_getpc_b64 s[98:99]")
        a("v_lshlrev_b32 v3, 7, v0")
        a("s_lshl_b32 s8, s3, 13\ns_add_u32 s98, s98, s8\ns_addc_u32 s99, s99, 0")
        a(".CODEPF_GUARD")
    a("s_and_b32 s4, s2, 7\ns_lshr_b32 s5, s2, 3")
    a("s_lshr_b32 s6, s5, 4\ns_lshl_b32 s7, s4, 1\ns_add_u32 s6, s6, s7")
    a("s_and_b32 s7, s5, 15")
    a(f"s_lshl_b32 s99, s4, 18\ns_mul_i32 s98, s4, {0x40000-0x8000}")
    a("v_and_b32 v1, 15, v0\nv_lshrrev_b32 v2, 4, v0")
    a("v_lshrrev_b32 v4, 5, v0\nv_and_b32 v5, 31, v0")
    a("v_mul_u32_u24 v6, 36, v5\nv_mul_u32_u24 v7, 1152, v4\nv_add_u32 v6, v6, v7")
    a("v_lshl_add_u32 v7, v5, 1, v7")
    a("v_mul_u32_u24 v8, 8192, v2\nv_lshl_add_u32 v8, v1, 4, v8")
    a("s_mov_b32 s77, 0x3ff\ns_mov_b32 s79, 0")
    a("s_waitcnt lgkmcnt(0)")
    if stamps:
        a("v_writelane_b32 v31, s90, 0")
    a("s_load_dword s78, s[38:39], 0")
    if pretouch == 2:
        a(f"s_lshl_b32 s8, s5, 13\ns_lshl_b32 s9, s3, 11\ns_add_u32 s8, s8, s9\ns_add_u32 s8, s8, s99\ns_add_u32 s8, s8, {WS0}")
        a("s_add_u32 s88, s38, s8\ns_addc_u32 s89, s39, 0")
        for k in range(16):
            a(f"s_load_dword s{83 + k % 5}, s[88:89], {128*k}")
    srd(68, 16, 2304)
    srd(48, 22, 576 * 4096 * 2)
    srd(64, 38, 256 << 20)
    x0 = T.issue("buffer_load_dwordx4 v[60:63], v6, s[68:71], 0 offen")
    x1 = T.issue("buffer_load_dwordx4 v[64:67], v6, s[68:71], 0 offen offset:16")
    x2 = T.issue("buffer_load_dword v68, v6, s[68:71], 0 offen offset:32")
    a("s_lshr_b32 s9, s7, 1\ns_mul_i32 s10, s9, 144")
    xr = []
    for k in range(3):
        xr.append(T.issue(f"buffer_load_ushort v{69+k}, v7, s[68:71], s10 offen offset:{64*k}"))
    a("s_and_b32 s8, s7, 1\ns_lshl_b32 s11, s6, 1\ns_add_u32 s11, s8, s11")
    a("s_lshl_b32 s8, s11, 8")
    a("s_mul_i32 s12, s9, 72\ns_lshl_b32 s10, s3, 2\ns_add_u32 s12, s12, s10\ns_lshl_b32 s12, s12, 13\ns_add_u32 s8, s8, s12")
    wq = []
    for i in range(5):
        if i == 4:
            a("s_cmp_ge_u32 s3, 2\ns_cselect_b32 s8, 0x7fffffff, s8")
        wq.append(T.issue(f"buffer_load_dwordx4 v[{40+4*i}:{43+4*i}], v8, s[48:51], s8 offen nt"))
        if i < 4: a(f"s_add_u32 s8, s8, {16*8192}")
    a(f"s_lshl_b32 s13, s11, 3\ns_add_u32 s13, s13, s9\ns_lshl_b32 s13, s13, 10\ns_add_u32 s13, s13, {WS_QP}\ns_add_u32 s13, s13, s98")
    srd(40, 18, 64 << 20); srd(44, 20, 64 << 20)
    if pretouch == 1:
        a("s_cmp_lg_u32 s3, 2\ns_cbranch_scc1 L_nopt")
        a(f"s_lshl_b32 s8, s5, 13\ns_add_u32 s8, s8, s99\ns_add_u32 s8, s8, {WS0}\nv_lshlrev_b32 v14, 7, v0")
        T.issue("buffer_load_dword v254, v14, s[64:67], s8 offen sc1", cond=True)
        a.label("L_nopt")
    a("s_lshr_b32 s8, s7, 3\ns_lshl_b32 s14, s8, 25\ns_lshl_b32 s9, s6, 21\ns_add_u32 s14, s14, s9")
    a("s_and_b32 s9, s7, 7\ns_lshl_b32 s9, s9, 14\ns_add_u32 s14, s14, s9\ns_lshl_b32 s9, s3, 12\ns_add_u32 s14, s14, s9")
    a(f"s_add_u32 s14, s14, {6144*256}\ns_mov_b32 s15, s14")
    for k in range(4):
        a(f"v_add_u32 v{10+k}, {4*k}, v2\nv_xor_b32 v{10+k}, v{10+k}, v1\nv_lshlrev_b32 v{10+k}, 4, v{10+k}\nv_lshl_add_u32 v{10+k}, v2, 8, v{10+k}")
    a("s_lshl_b32 s100, s3, 14")
    kops = []
    def kload(i, window):
        if i % 4 == 0:
            a(f"s_add_u32 s101, s100, {(i//4)*4096}\ns_mov_b32 m0, s101")
        kops.append(T.issue(f"buffer_load_dwordx4 v{10+i%4}, s[40:43], s14 offen offset:{(i%4)*1024} nt lds", window=window))
        if i % 4 == 3:
            a("s_add_u32 s14, s14, 131072")
    for i in range(NK0):
        kload(i, None)
    a("s_sub_u32 s74, s5, 18")
    srd(52, 24, 4096 * 576 * 2)
    a("v_lshrrev_b32 v236, 3, v1\nv_lshlrev_b32 v236, 3, v236\nv_lshl_add_u32 v236, v2, 1, v236\nv_mul_u32_u24 v236, 1152, v236\nv_and_b32 v14, 7, v1\nv_lshl_add_u32 v236, v14, 4, v236")
    a("s_and_b32 s8, s74, 15\ns_mul_i32 s73, s8, 11\ns_lshr_b32 s73, s73, 5")
    a("s_mul_i32 s9, s73, 3\ns_sub_u32 s80, s8, s9")
    a("s_lshl_b32 s8, s4, 2\ns_add_u32 s73, s73, s8")
    a("s_lshl_b32 s8, s73, 7\ns_lshl_b32 s9, s3, 5\ns_add_u32 s8, s8, s9\ns_mul_i32 s8, s8, 1152\ns_mul_i32 s9, s80, 384\ns_add_u32 s81, s8, s9")
    a("s_cmp_ge_u32 s74, 12\ns_cselect_b32 s81, 0x7fff0000, s81")
    a(f"s_add_u32 s82, s81, {16*1152}")
    wol = tile_loads(168, 52, ["s81", "s82"])
    if w2early:
        srd(60, 32, 4608 * 576 * 2)
        a("s_and_b32 s8, s74, 15\ns_mul_i32 s72, s4, 14\ns_add_u32 s72, s72, s8")
        a("s_mul_i32 s8, s72, 171\ns_lshr_b32 s8, s8, 9\ns_mul_i32 s9, s8, 3\ns_sub_u32 s9, s72, s9")
        a("s_lshl_b32 s8, s8, 7\ns_lshl_b32 s12, s3, 5\ns_add_u32 s8, s8, s12\ns_mul_i32 s8, s8, 1152\ns_mul_i32 s9, s9, 384\ns_add_u32 s83, s8, s9")
        a("s_cmp_ge_u32 s74, 14\ns_cselect_b32 s83, 0x7fff0000, s83\ns_cmp_ge_u32 s72, 108\ns_cselect_b32 s83, 0x7fff0000, s83")
        a(f"s_add_u32 s84, s83, {16*1152}")
        wol = wol + tile_loads(0, 60, ["s83", "s84"], rc="a")
    if fearly:
        a("s_mov_b32 s85, 1152\ns_mov_b32 s86, -1024\ns_mov_b32 s87, 17024")
        a("s_cmp_ge_u32 s5, 18\ns_cbranch_scc1 L_xE")
        a("s_cmp_ge_u32 s3, 2\ns_cselect_b32 s52, s30, s28\ns_cselect_b32 s53, s31, s29\ns_and_b32 s53, s53, 0xffff")
        a(f"s_mov_b32 s54, {576*4608*2}")
        a("v_mul_u32_u24 v236, 9216, v2\nv_lshl_add_u32 v236, v1, 4, v236")
        a(f"s_mul_i32 s81, s4, {72*9216}\ns_lshl_b32 s9, s5, 9\ns_add_u32 s81, s81, s9\ns_and_b32 s9, s3, 1\ns_lshl_b32 s9, s9, 8\ns_add_u32 s81, s81, s9")
        a(f"s_mov_b32 s85, {4*9216}\ns_mov_b32 s86, {4*9216}\ns_mov_b32 s87, {4*9216}")
        a.label("L_xE")
        wol = []
        for k in range(12):
            inc = "s87" if k == 5 else ("s85" if k % 2 == 0 else "s86")
            wol.append(f"buffer_load_dwordx4 v[{168+4*k}:{171+4*k}], v236, s[52:55], s81 offen nt\ns_add_u32 s81, s81, {inc}")
    if tlb:
        srd(60, 32, 4608 * 576 * 2)
        a("s_cmp_ge_u32 s3, 2\ns_cselect_b32 s56, s30, s28\ns_cselect_b32 s57, s31, s29\ns_and_b32 s57, s57, 0xffff")
        a(f"s_mov_b32 s58, {576*4608*2}\ns_mov_b32 s59, 0x00020000")
        a("v_lshlrev_b32 v14, 16, v0")
        a(f"s_mul_i32 s8, s4, {72*9216}\ns_lshl_b32 s9, s5, 9\ns_add_u32 s8, s8, s9\ns_cmp_ge_u32 s5, 18\ns_cselect_b32 s8, 0x7fff0000, s8")
        a("s_and_b32 s9, s74, 15\ns_mul_i32 s12, s4, 14\ns_add_u32 s12, s12, s9\ns_mul_i32 s12, s12, 49152\ns_cmp_lt_u32 s5, 18\ns_cselect_b32 s12, 0x7fff0000, s12")
        a("s_mov_b64 exec, 0x7ff")
        T.issue("buffer_load_dword v252, v14, s[56:59], s8 offen nt")
        a("s_mov_b64 exec, 0xf")
        T.issue("buffer_load_dword v253, v14, s[60:63], s12 offen nt")
        a("s_mov_b64 exec, 0xff")
        T.issue("buffer_load_dword v254, v14, s[44:47], s15 offen nt")
        a("s_mov_b64 exec, -1")
    woo = []
    cnt = [0]
    def extra(window, every=2):
        cnt[0] += 1
        if woearly and cnt[0] % every == 0 and len(woo) < len(wol):
            woo.append(T.issue(wol[len(woo)], window=window))
    if woearly: W = W + WOW; WVT = WVT + WOW
    a("v_and_b32 v14, 1, v1\nv_cmp_eq_u32 vcc, 1, v14\nv_mov_b32 v15, 0xffff\nv_mov_b32 v16, 0xffff0000\nv_cndmask_b32 v14, v15, v16, vcc")
    a("v_bfe_u32 v15, v1, 1, 2")
    for j in range(4):
        a(f"v_cmp_eq_u32 vcc, {j}, v15\nv_cndmask_b32 v{32+j}, 0, v14, vcc")
    a("v_and_b32 v15, 1, v15")
    a("v_cmp_eq_u32 vcc, 0, v15\nv_cndmask_b32 v36, 0, v14, vcc\nv_cmp_eq_u32 vcc, 1, v15\nv_cndmask_b32 v37, 0, v14, vcc")
    a("v_cmp_eq_u32 s[92:93], 1, v2\nv_cmp_eq_u32 s[94:95], 2, v2\nv_cmp_eq_u32 s[96:97], 3, v2")
    a("v_lshrrev_b32 v14, 1, v2\nv_lshlrev_b32 v38, 9, v14\nv_lshl_add_u32 v38, v1, 5, v38\nv_and_b32 v14, 1, v2\nv_lshl_add_u32 v38, v14, 4, v38")
    a("v_lshlrev_b32 v39, 4, v0")
    a("v_lshlrev_b32 v9, 2, v0")
    T.wait(x2)
    for k in range(9):
        a(f"v_and_b32 v{73+2*k}, 0xffff0000, v{60+k}\nv_lshlrev_b32 v{72+2*k}, 16, v{60+k}")
    a("v_add_f32 v14, v72, v73")
    a("v_add_f32 v15, v74, v75")
    for k in range(4, 18, 2):
        a(f"v_add_f32 v14, v14, v{72+k}\nv_add_f32 v15, v15, v{73+k}")
    a("v_add_f32 v14, v14, v15")
    row_allreduce("v_add_f32", [14])
    swap_reduce("v_add_f32", [14], [15], 16)
    a(f"v_mul_f32 v14, {float_lit(1/576)}, v14")
    a("v_mov_b32 v29, v14")
    a("v_mov_b32 v15, 0\nv_mov_b32 v16, 0")
    for k in range(0, 18, 2):
        a(f"v_sub_f32 v{72+k}, v{72+k}, v14\nv_sub_f32 v{73+k}, v{73+k}, v14")
        a(f"v_fmac_f32 v15, v{72+k}, v{72+k}\nv_fmac_f32 v16, v{73+k}, v{73+k}")
    a("v_add_f32 v15, v15, v16")
    row_allreduce("v_add_f32", [15])
    swap_reduce("v_add_f32", [15], [16], 16)
    a(f"v_mul_f32 v15, {float_lit(1/576)}, v15")
    bf16r(15, 15)
    a(f"v_add_f32 v15, {float_lit(1e-5)}, v15")
    bf16r(15, 15)
    a("v_sqrt_f32 v15, v15")
    bf16r(15, 15)
    a("v_rcp_f32 v15, v15")
    bf16r(14, 14)
    T.wait(xr[2])
    a(f"s_mul_i32 s8, s3, 768\ns_add_u32 s8, s8, {L_XN}")
    a("v_mul_u32_u24 v16, 384, v4\nv_lshl_add_u32 v16, v5, 2, v16\nv_add_u32 v16, s8, v16")
    for k in range(3):
        r = 69 + k
        a(f"v_lshlrev_b32 v{r}, 16, v{r}\nv_sub_f32 v{r}, v{r}, v14")
        bf16r(r, r)
        a(f"v_mul_f32 v{r}, v{r}, v15\nv_cvt_pk_bf16_f32 v{r}, v{r}, v{r}")
        a(f"ds_write_b32 v16, v{r} offset:{128*k}")
    a("v_lshrrev_b32 v17, 3, v1\nv_mul_u32_u24 v17, 384, v17\nv_lshl_add_u32 v17, v2, 2, v17\ns_lshl_b32 s9, s3, 4\ns_add_u32 s8, s8, s9\nv_add_u32 v17, s8, v17")
    a("s_waitcnt lgkmcnt(0)")
    a("s_add_u32 s78, s78, 1\ns_and_b32 s76, s78, 0x3ff\nv_mov_b32 v30, s76\ns_and_b32 s75, s78, 63")
    if loc:
        a("s_getreg_b32 s72, hwreg(HW_REG_XCC_ID)\ns_and_b32 s72, s72, 15\ns_lshl_b32 s8, s78, 4\ns_or_b32 s72, s72, s8")
        a("s_cmp_lg_u32 s3, 0\ns_cbranch_scc1 L_noxid")
        a(f"s_lshl_b32 s8, s5, 2\ns_add_u32 s8, s8, s99\ns_add_u32 s8, s8, {WS_XID}\nv_mov_b32 v65, s72\nv_mov_b32 v66, 0\ns_mov_b64 exec, 1")
        T.issue("buffer_store_dword v65, v66, s[64:67], s8 offen sc1", cond=True)
        a("s_mov_b64 exec, -1")
        a.label("L_noxid")
    for i in range(5):
        a(f"ds_read_b32 v{60+i}, v17 offset:{64*i}")
    a("s_waitcnt lgkmcnt(0)")
    stamp(1)
    for i in range(5):
        for j in range(4):
            a(f"v_and_b32 v{72+4*i+j}, v{60+i}, v{32+j}")
    for i in range(5):
        T.wait(wq[i])
        c = "0" if i == 0 else "v[96:99]"
        a(f"v_mfma_f32_16x16x32_bf16 v[96:99], v[{72+4*i}:{75+4*i}], v[{40+4*i}:{43+4*i}], {c}")
    for i in range(NK0, NK0 + NKQ):
        kload(i, None)
    a(f"s_lshl_b32 s8, s3, 10\ns_add_u32 s8, s8, {L_RED2}\nv_add_u32 v18, s8, v39")
    a(f"v_add_u32 v19, {L_RED2}, v39")
    a("ds_write_b128 v18, v[96:99]")
    a("s_lshr_b32 s8, s3, 1\ns_lshl_b32 s8, s8, 5\ns_and_b32 s9, s3, 1\ns_lshl_b32 s9, s9, 3\ns_add_u32 s8, s8, s9\ns_mov_b64 s[62:63], 0x00ff00ff\ns_lshl_b64 s[62:63], s[62:63], s8")
    a("s_waitcnt lgkmcnt(0)\ns_barrier")
    quarter_publish(T, 72, 38, "s13", q=True)
    stamp(2)
    for i in range(NK0 + NKQ, 16):
        kload(i, W); extra(W, XK)
    a("s_lshr_b32 s8, s3, 1\ns_lshl_b32 s9, s6, 1\ns_add_u32 s8, s8, s9\ns_lshl_b32 s8, s8, 13")
    a("s_lshr_b32 s9, s7, 3\ns_lshl_b32 s9, s9, 9\ns_add_u32 s8, s8, s9\ns_and_b32 s9, s3, 1\ns_lshl_b32 s9, s9, 8\ns_add_u32 s8, s8, s9")
    a(f"s_add_u32 s8, s8, {WS_QP}\ns_add_u32 s8, s8, s98\ns_add_u32 s9, s8, 4096")
    def qgather(Tk, window=None):
        ids = []
        for r in range(8):
            ids.append(Tk.issue(f"buffer_load_dword v{40+r}, v9, s[64:67], {'s8' if r < 4 else 's9'} offen offset:{(r%4)*1024} sc1"))
        return ids
    if loc:
        a(f"s_add_u32 s10, s99, {WS_XID}\nv_lshlrev_b32 v14, 2, v5")
        T.issue("buffer_load_dword v49, v14, s[64:67], s10 offen sc1")
    qg = qgather(T)
    vops = []
    def vload(i, window):
        if i >= 16: return
        vops.append(T.issue(f"buffer_load_dwordx4 v[{104+4*i}:{107+4*i}], v39, s[44:47], s15 offen offset:{(i%4)*1024} nt", window=window))
        if i % 4 == 3:
            a("s_add_u32 s15, s15, 131072")
        extra(window, XV)
    for i in range(NV0):
        vload(i, max(W, NV0) + 8 if i >= W else W + 8)
    T.wait(qg[-1])
    a("s_branch L_qchk")
    a.label("L_qretry")
    a("s_sleep 1")
    Tr = T.fork(); qgather(Tr); a("s_waitcnt vmcnt(0)")
    a.label("L_qchk")
    untag(list(range(40, 48)), 48, q=True)
    check_retry(48, "L_qretry", 1, q=True)
    if loc:
        a(f"v_cmp_ne_u32 vcc, s72, v49\ns_cmp_eq_u64 vcc, 0\ns_cselect_b32 s72, {LOCOFF}, 0")
    for r in range(0, 8, 2):
        a(f"v_add_f32 v{40+r}, v{40+r}, v{41+r}")
    a("v_add_f32 v40, v40, v42\nv_add_f32 v44, v44, v46\nv_add_f32 v40, v40, v44")
    a("v_cvt_pk_bf16_f32 v40, v40, v40")
    a(f"s_lshl_b32 s8, s3, 7\ns_add_u32 s8, s8, {L_QB}\nv_lshlrev_b32 v14, 1, v0\nv_add_u32 v14, s8, v14")
    a("ds_write_b16 v14, v40")
    a(f"v_and_b32 v14, 1, v1\nv_lshlrev_b32 v14, 8, v14\nv_lshl_add_u32 v14, v2, 4, v14\nv_add_u32 v14, {L_QB}, v14")
    for j in range(4):
        a(f"v_add_u32 v{20+j}, {4*j}, v2\nv_xor_b32 v{20+j}, v{20+j}, v1\nv_lshlrev_b32 v{20+j}, 4, v{20+j}\nv_lshl_add_u32 v{20+j}, v1, 8, v{20+j}\nv_add_u32 v{20+j}, s100, v{20+j}")
    a("s_waitcnt lgkmcnt(0)\ns_barrier")
    stamp(3)
    for j in range(4):
        a(f"ds_read_b128 v[{40+4*j}:{43+4*j}], v14 offset:{64*j}")
    def kread(t):
        base = 56 + 16 * (t % 2)
        for j in range(4):
            a(f"ds_read_b128 v[{base+4*j}:{base+4*j+3}], v{20+j} offset:{4096*t}")
    kread(0); kread(1)
    nv = NV0
    for t in range(4):
        base = 56 + 16 * (t % 2)
        a(f"s_waitcnt lgkmcnt({4 if t < 3 else 0})")
        for j in range(4):
            c = "0" if j == 0 else f"v[{88+4*t}:{91+4*t}]"
            a(f"v_mfma_f32_16x16x32_bf16 v[{88+4*t}:{91+4*t}], v[{40+4*j}:{43+4*j}], v[{base+4*j}:{base+4*j+3}], {c}")
        if t + 2 < 4:
            a("s_nop 1")
            kread(t + 2)
        vload(nv, W); nv += 1
    for h in range(2):
        a(f"v_cndmask_b32 v{24+h}, v{88+h}, v{92+h}, s[92:93]")
    for h in range(2):
        a(f"v_cndmask_b32 v{24+h}, v{24+h}, v{96+h}, s[94:95]")
    for h in range(2):
        a(f"v_cndmask_b32 v{24+h}, v{24+h}, v{100+h}, s[96:97]")
    a("v_cvt_pk_bf16_f32 v26, v24, v25\nv_lshlrev_b32 v24, 16, v26\nv_and_b32 v25, 0xffff0000, v26")
    sc = float_lit(128 ** -0.5)
    a(f"v_mul_f32 v24, {sc}, v24\nv_mul_f32 v25, {sc}, v25")
    a("v_cvt_pk_bf16_f32 v26, v24, v25\nv_lshlrev_b32 v24, 16, v26\nv_and_b32 v25, 0xffff0000, v26")
    a("v_mov_b32 v26, v24\nv_mov_b32 v27, v25")
    row_allreduce("v_max_f32", [26, 27])
    swap_reduce("v_max_f32", [26, 27], [14, 15], 16)
    swap_reduce("v_max_f32", [26, 27], [14, 15], 32)
    a(f"s_lshl_b32 s8, s3, 3\ns_add_u32 s8, s8, {L_MX}\nv_mov_b32 v14, s8\nv_mov_b32 v16, {L_MX}")
    a("ds_write_b64 v14, v[26:27]")
    vload(nv, W); nv += 1
    a("s_waitcnt lgkmcnt(0)\ns_barrier")
    a("ds_read_b128 v[40:43], v16\nds_read_b128 v[44:47], v16 offset:16")
    a("s_waitcnt lgkmcnt(0)")
    a("v_max3_f32 v26, v40, v42, v44\nv_max3_f32 v27, v41, v43, v45\nv_max_f32 v26, v26, v46\nv_max_f32 v27, v27, v47")
    l2e = float_lit(1.4426950408889634)
    a("v_sub_f32 v24, v24, v26\nv_sub_f32 v25, v25, v27")
    a(f"v_mul_f32 v24, {l2e}, v24\nv_mul_f32 v25, {l2e}, v25")
    a("v_exp_f32 v24, v24\nv_exp_f32 v25, v25")
    a(f"s_lshl_b32 s8, s3, 9\ns_add_u32 s8, s8, {L_PT}")
    a("v_and_b32 v15, 3, v0\nv_lshlrev_b32 v15, 6, v15\nv_lshrrev_b32 v17, 2, v0\nv_lshl_add_u32 v15, v17, 2, v15\nv_add_u32 v15, s8, v15")
    a("v_cvt_pk_bf16_f32 v40, v24, v24\nv_cvt_pk_bf16_f32 v41, v25, v25")
    a("ds_write_b32 v15, v40\nds_write_b32 v15, v41 offset:256")
    a("v_lshrrev_b32 v17, 3, v1\nv_lshlrev_b32 v17, 8, v17\nv_lshl_add_u32 v17, v2, 6, v17\nv_add_u32 v17, s8, v17")
    row_allreduce("v_add_f32", [24, 25])
    swap_reduce("v_add_f32", [24, 25], [42, 43], 16)
    swap_reduce("v_add_f32", [24, 25], [42, 43], 32)
    a("ds_write_b64 v14, v[24:25] offset:32")
    a("s_waitcnt lgkmcnt(0)")
    for q in range(4):
        a(f"ds_read_b128 v[{240+4*q}:{243+4*q}], v17 offset:{16*q}")
    vload(nv, W); nv += 1
    a("s_waitcnt lgkmcnt(0)")
    for u in range(16):
        for j in range(4):
            a(f"v_and_b32 v{40+4*u+j}, v{240+u}, v{32+j}")
        if u % 4 == 3 and nv < 16:
            vload(nv, W); nv += 1
    a("s_barrier")
    a("s_cmp_lg_u32 s3, 1\ns_cbranch_scc1 L_noml")
    a("ds_read_b128 v[240:243], v16 offset:32\nds_read_b128 v[244:247], v16 offset:48")
    a("s_waitcnt lgkmcnt(0)")
    a("v_add_f32 v240, v240, v242\nv_add_f32 v244, v244, v246\nv_add_f32 v241, v241, v243\nv_add_f32 v245, v245, v247")
    a("v_add_f32 v249, v240, v244\nv_add_f32 v251, v241, v245\nv_mov_b32 v248, v26\nv_mov_b32 v250, v27")
    tag([248, 249, 250, 251])
    a(f"s_and_b32 s8, s6, 1\ns_lshl_b32 s8, s8, 11\ns_lshl_b32 s9, s7, 7\ns_add_u32 s8, s8, s9\ns_add_u32 s8, s8, {WS_ML}\ns_add_u32 s8, s8, s99")
    a("s_mov_b64 exec, 0xff")
    publish(T, "buffer_store_dwordx4 v[248:251], v39, s[64:67], s8 offen", cond=True, local=True)
    a("s_mov_b64 exec, -1")
    a.label("L_noml")
    stamp(4)
    while nv < 16:
        vload(nv, WVT); nv += 1
    a(f"s_lshl_b32 s13, s6, 14\ns_lshl_b32 s9, s7, 9\ns_add_u32 s13, s13, s9\ns_add_u32 s13, s13, {WS_OPART}\ns_add_u32 s13, s13, s98")
    a("v_lshrrev_b32 v14, 1, v2\nv_mul_u32_u24 v14, 7680, v14\nv_add_u32 v28, v14, v38")
    a("s_cmp_lt_u32 s5, 18\ns_cbranch_scc1 L_F")
    Tbr = T.fork()

    def pv_and_publish(Tk, between, lab, defer=False):
        for u in range(16):
            between(u)
            Tk.wait(vops[u])
            c = "0" if u == 0 else "v[240:243]"
            a(f"v_mfma_f32_16x16x32_bf16 v[240:243], v[{40+4*u}:{43+4*u}], v[{104+4*u}:{107+4*u}], {c}")
        stamp(5)
        a("ds_write_b128 v18, v[240:243]")
        a("s_waitcnt lgkmcnt(0)\ns_barrier")
        d = quarter_publish(Tk, 240, 28, "s13", defer=defer)
        stamp(6)
        return d

    def tile_swap(base, n=6):
        for k in range(n):
            r = base + 8 * k
            a(f"v_swap_b32 v{r+2}, v{r+4}\nv_swap_b32 v{r+3}, v{r+5}")
    ACC = [240, 244, 248, 252, 76, 80]
    def sel_and(st, x0, x1):
        a(f"v_and_b32 v{84+4*st}, v{x0}, v36\nv_and_b32 v{85+4*st}, v{x0}, v37\nv_and_b32 v{86+4*st}, v{x1}, v36\nv_and_b32 v{87+4*st}, v{x1}, v37")
    def mfma_block(base, nsets, acc):
        for k in range(6):
            for st in range(nsets):
                r = base + 24 * st + 4 * k
                c = "0" if st == 0 else f"v[{acc[k]}:{acc[k]+3}]"
                a(f"v_mfma_f32_16x16x32_bf16 v[{acc[k]}:{acc[k]+3}], v[{84+4*st}:{87+4*st}], v[{r}:{r+3}], {c}")
            if k >= 2:
                kk = k - 2
                a(f"ds_write_b128 v22, v[{acc[kk]}:{acc[kk]+3}] offset:{((kk//2)*16 + (kk%2))*16}")
        for kk in (4, 5):
            a(f"ds_write_b128 v22, v[{acc[kk]}:{acc[kk]+3}] offset:{((kk//2)*16 + (kk%2))*16}")
    def reduce8_store(sout):
        a("s_mov_b64 exec, 0xffffff")
        a("s_waitcnt lgkmcnt(0)\ns_barrier")
        for p in range(8):
            a(f"ds_read_b128 v[{40+4*p}:{43+4*p}], v23 offset:{1536*p}")
        for p in range(0, 8, 2):
            a(f"s_waitcnt lgkmcnt({6-p})")
            a(f"v_pk_add_f32 v[{40+4*p}:{41+4*p}], v[{40+4*p}:{41+4*p}], v[{44+4*p}:{45+4*p}]\nv_pk_add_f32 v[{42+4*p}:{43+4*p}], v[{42+4*p}:{43+4*p}], v[{46+4*p}:{47+4*p}]")
            if p == 2 or p == 6:
                q = p - 2
                a(f"v_pk_add_f32 v[{40+4*q}:{41+4*q}], v[{40+4*q}:{41+4*q}], v[{48+4*q}:{49+4*q}]\nv_pk_add_f32 v[{42+4*q}:{43+4*q}], v[{42+4*q}:{43+4*q}], v[{50+4*q}:{51+4*q}]")
        a("v_pk_add_f32 v[40:41], v[40:41], v[56:57]\nv_pk_add_f32 v[42:43], v[42:43], v[58:59]")
        tag([40, 41, 42, 43])
        a(f"buffer_store_dwordx4 v[40:43], v39, s[64:67], {sout} offen sc1")
        a("s_mov_b64 exec, -1")
    def red_write_addr():
        a("s_mul_i32 s8, s3, 3072")
        a("v_lshrrev_b32 v14, 3, v1\nv_mul_u32_u24 v22, 1536, v14\nv_and_b32 v14, 1, v2\nv_mul_u32_u24 v14, 768, v14\nv_add_u32 v22, v22, v14\nv_and_b32 v14, 7, v1\nv_lshl_add_u32 v22, v14, 5, v22")
        a("v_add_u32 v22, s8, v22")
        a("v_lshrrev_b32 v14, 3, v1\nv_lshrrev_b32 v15, 1, v2\nv_cmp_eq_u32 vcc, v14, v15\nv_add_u32 v14, 16384, v39\nv_cndmask_b32 v22, v14, v22, vcc")
    def rec_soffset(dst, scol3, sprod, base):
        a(f"s_lshl_b32 s8, {scol3}, 1\ns_and_b32 s9, s3, 1\ns_add_u32 s8, s8, s9\ns_lshl_b32 s8, s8, 18")
        a(f"s_mul_i32 {dst}, {sprod}, 768\ns_add_u32 {dst}, {dst}, s8\ns_lshr_b32 s9, s3, 1\ns_mul_i32 s9, s9, 384\ns_add_u32 {dst}, {dst}, s9\ns_add_u32 {dst}, {dst}, {base}")
    def half8(op, r):
        a(f"{op}_dpp v{r}, v{r}, v{r} quad_perm:[1,0,3,2] row_mask:0xf bank_mask:0xf")
        a(f"{op}_dpp v{r}, v{r}, v{r} quad_perm:[2,3,0,1] row_mask:0xf bank_mask:0xf")
        a(f"{op}_dpp v{r}, v{r}, v{r} row_half_mirror row_mask:0xf bank_mask:0xf")

    T = Tbr.fork()
    a("s_mov_b32 s10, s74\ns_mov_b32 s11, s73")
    a(f"s_bfe_u32 s8, s11, 0x10001\ns_lshl_b32 s8, s8, 11\ns_add_u32 s86, s8, {WS_ML}\ns_add_u32 s86, s86, s99\ns_add_u32 s86, s86, s72")
    a("v_lshlrev_b32 v25, 7, v1")
    nwo = len(woo)
    for k in range(nwo, len(wol)):
        T.issue(wol[k], window=WE + W)
    a("s_sub_u32 s48, s10, 5\ns_and_b32 s8, s48, 15\ns_mul_i32 s87, s8, 11\ns_lshr_b32 s87, s87, 5\ns_mul_i32 s9, s87, 3\ns_sub_u32 s49, s8, s9")
    a("s_mul_i32 s12, s4, 3\ns_add_u32 s12, s12, s87")
    a("s_mul_i32 s8, s12, 192\ns_mul_i32 s9, s3, 48\ns_add_u32 s8, s8, s9\ns_mul_i32 s8, s8, 1152\ns_mul_i32 s9, s49, 384\ns_add_u32 s50, s8, s9")
    a(f"s_add_u32 s51, s50, {16*1152}\ns_add_u32 s84, s50, {32*1152}")
    srd(44, 32, 4608 * 576 * 2)
    a("s_cmp_lt_u32 s10, 5\ns_cselect_b32 s50, 0x7fff0000, s50\ns_cselect_b32 s51, 0x7fff0000, s51\ns_cselect_b32 s84, 0x7fff0000, s84")
    w2l = tile_loads(104, 44, ["s50", "s51", "s84"])
    a(f"s_mul_i32 s100, s3, {NL*2048}\ns_add_u32 s100, s100, 20480")
    for k in range(2 * NL):
        st, cb, rr = k // 6, (k % 6) // 2, k % 2
        imm = rr * 1152 + cb * 128
        a(f"s_add_u32 s101, s100, {1024*k - imm}\ns_mov_b32 m0, s101")
        T.issue(f"buffer_load_dwordx4 v236, s[44:47], {['s50','s51','s84'][st]} offen offset:{imm} nt lds", window=WE + W)
    a("v_bfe_u32 v14, v1, 2, 1\nv_lshrrev_b32 v15, 3, v1")
    a("v_lshlrev_b32 v21, 5, v14\nv_lshl_add_u32 v21, v15, 3, v21\nv_lshl_add_u32 v21, v2, 1, v21\nv_lshlrev_b32 v21, 2, v21")
    a("v_lshlrev_b32 v3, 4, v14\nv_lshl_add_u32 v3, v15, 1, v3\nv_lshrrev_b32 v14, 1, v2\nv_add_u32 v3, v3, v14\nv_and_b32 v14, 1, v2\nv_lshl_add_u32 v3, v14, 5, v3\nv_lshlrev_b32 v3, 2, v3")
    red_write_addr()
    a("s_mul_i32 s8, s3, 384\nv_add_u32 v23, s8, v39")
    rec_soffset("s85", "s80", "s11", WS_Y)
    a(f"s_lshl_b32 s8, s3, 6\ns_add_u32 s8, s8, {L_WT}\nv_lshlrev_b32 v6, 2, v1\nv_add_u32 v6, s8, v6")
    a("v_lshlrev_b32 v7, 5, v4\nv_add_u32 v7, s8, v7")
    a(f"s_lshl_b32 s83, s11, 13\ns_lshl_b32 s8, s3, 7\ns_add_u32 s83, s83, s8\ns_add_u32 s83, s83, {WS_OPART}\ns_add_u32 s83, s83, s98\ns_add_u32 s83, s83, s72")
    a("v_lshlrev_b32 v26, 12, v4\nv_lshl_add_u32 v26, v5, 2, v26")
    rec_soffset("s40", "s49", "s12", WS_OP)
    a("s_add_u32 s12, s99, s72")
    a(f"s_lshl_b32 s41, s87, 10\ns_add_u32 s41, s41, s12\ns_add_u32 s41, s41, {WS_ST}")
    a("v_and_b32 v10, 7, v0\nv_lshlrev_b32 v10, 7, v10")
    a(f"s_mul_i32 s9, s3, 192\ns_add_u32 s12, s12, s9\ns_mul_i32 s56, s87, {6*3072}\ns_add_u32 s56, s56, s12\ns_add_u32 s56, s56, {WS_G}")
    a("s_add_u32 s57, s56, 6144\ns_add_u32 s58, s56, 12288")
    a(f"s_mul_i32 s88, s87, {6*1536}\ns_add_u32 s88, s88, s12\ns_add_u32 s88, s88, {WS_S}\ns_add_u32 s89, s88, 4608")
    a("v_mul_u32_u24 v11, 768, v2\nv_lshl_add_u32 v11, v1, 4, v11")
    a("v_mul_u32_u24 v12, 768, v4\nv_lshl_add_u32 v12, v1, 4, v12")
    a("v_and_b32 v14, 1, v2\nv_cmp_eq_u32 s[42:43], 1, v14")
    a("v_readlane_b32 s8, v29, 0\nv_readlane_b32 s9, v29, 32\nv_mov_b32 v13, s8\nv_mov_b32 v14, s9\nv_cndmask_b32 v13, v13, v14, s[42:43]")
    a("s_mov_b64 s[96:97], s[62:63]")
    dst = pv_and_publish(T, lambda u: None, "L_noopE", defer=True)
    def deferred():
        a(f"s_mov_b64 exec, s[96:97]\n{dst}\ns_mov_b64 exec, -1")
    a("s_cmp_ge_u32 s10, 12\ns_cbranch_scc1 L_E_D")
    gML = Gather([("buffer_load_dwordx4 v[232:235], v25, s[64:67], s86 offen sc1", [232, 233, 234, 235])], tmp=76)
    gO = Gather([(f"buffer_load_dword v{64+s_}, v26, s[64:67], s83 offen offset:{512*s_} sc1", [64+s_]) for s_ in range(8)], tmp=76)
    a("s_cmp_lg_u32 s72, 0\ns_cbranch_scc1 L_dfr1")
    deferred()
    a.label("L_dfr1")
    gML.issue(); gO.issue()
    stamp(16)
    if not woearly: a("s_waitcnt vmcnt(9)")
    tile_swap(168)
    a("s_waitcnt vmcnt(8)")
    stamp(18)
    gML.loop()
    a("s_bitcmp1_b32 s11, 0\ns_cselect_b64 vcc, -1, 0")
    a("v_cndmask_b32 v72, v232, v234, vcc\nv_cndmask_b32 v73, v233, v235, vcc")
    a("v_mov_b32 v74, v72")
    half8("v_max_f32", 74)
    a(f"v_sub_f32 v72, v72, v74\nv_mul_f32 v72, {l2e}, v72\nv_exp_f32 v72, v72")
    a("v_mul_f32 v73, v73, v72")
    half8("v_add_f32", 73)
    a("v_rcp_f32 v73, v73")
    a("v_mul_f32 v72, v72, v73")
    a("ds_write_b32 v6, v72")
    a("s_waitcnt lgkmcnt(0)")
    a("ds_read_b128 v[88:91], v7\nds_read_b128 v[92:95], v7 offset:16")
    stamp(7)
    a("s_waitcnt vmcnt(0)")
    selloop(gO) if sel & 1 else gO.loop()
    stamp(8)
    a("s_waitcnt lgkmcnt(0)")
    a("v_mul_f32 v100, v64, v88\nv_mul_f32 v101, v65, v89")
    for s_ in range(2, 8, 2):
        a(f"v_fmac_f32 v100, v{64+s_}, v{88+s_}\nv_fmac_f32 v101, v{65+s_}, v{89+s_}")
    a("v_add_f32 v100, v100, v101\nv_cvt_pk_bf16_f32 v100, v100, v100")
    for k, off in enumerate([0, 4, 64, 68]):
        a(f"ds_bpermute_b32 v{96+k}, v21, v100 offset:{off}")
    a("s_cmp_eq_u32 s72, 0\ns_cbranch_scc1 L_dfr2")
    deferred()
    a.label("L_dfr2")
    for st in range(2):
        a(f"s_waitcnt lgkmcnt({2-2*st})")
        sel_and(st, 96+2*st, 97+2*st)
    mfma_block(168, 2, ACC)
    reduce8_store("s85")
    stamp(9)
    a("s_cmp_lt_u32 s10, 5\ns_cbranch_scc1 L_fin")
    a("s_branch L_D2")
    a.label("L_E_D")
    deferred()
    a.label("L_D2")
    T.ops = []
    for ins in w2l[2*NL:]:
        a(ins)
    a(f"s_waitcnt vmcnt({18-2*NL})")
    a("v_add_u32 v14, s100, v39")
    for k in range(NL):
        a(f"ds_read2_b64 v[{104+8*k}:{107+8*k}], v14 offset0:0 offset1:128\nds_read2_b64 v[{108+8*k}:{111+8*k}], v14 offset0:1 offset1:129")
        if k < NL - 1: a("v_add_u32 v14, 2048, v14")
    M12 = (0x0fff0fff, 0x0fff0fff)
    gS = Gather([(f"buffer_load_dwordx4 v[{176+4*rg}:{179+4*rg}], v12, s[64:67], s{88+rg//3} offen offset:{1536*(rg%3)} sc1", list(range(176+4*rg, 180+4*rg))) for rg in range(6)], base=[M12]*6, tmp=76)
    gG = Gather([("buffer_load_dwordx4 v[224:227], v10, s[64:67], s41 offen sc1", [224, 225, 226, 227])] +
                [(f"buffer_load_dwordx4 v[{200+4*rg}:{203+4*rg}], v11, s[64:67], s{56+rg//2} offen offset:{3072*(rg%2)} sc1", list(range(200+4*rg, 204+4*rg))) for rg in range(6)],
                base=[(0x3f3f3f3f, 0x3f3f3f3f)] + [M12]*6, tmp=76)
    a("v_mov_b32 v224, 0\nv_mov_b32 v225, 0\nv_mov_b32 v226, 0\nv_mov_b32 v227, 0")
    a("s_waitcnt vmcnt(0)")
    gS.issue()
    a("s_barrier")
    stamp(10)
    tile_swap(104 + 8*NL, 9 - NL)
    a("s_waitcnt vmcnt(0)")
    gS.loop()
    gG.issue()
    def sum6(b0, d):
        L = []
        for h in (0, 2):
            L += [f"v_pk_add_f32 v[{b0+h}:{b0+h+1}], v[{b0+h}:{b0+h+1}], v[{b0+4+h}:{b0+5+h}]",
                  f"v_pk_add_f32 v[{b0+8+h}:{b0+9+h}], v[{b0+8+h}:{b0+9+h}], v[{b0+12+h}:{b0+13+h}]",
                  f"v_pk_add_f32 v[{b0+16+h}:{b0+17+h}], v[{b0+16+h}:{b0+17+h}], v[{b0+20+h}:{b0+21+h}]"]
        for h in (0, 2):
            L += [f"v_pk_add_f32 v[{b0+h}:{b0+h+1}], v[{b0+h}:{b0+h+1}], v[{b0+8+h}:{b0+9+h}]"]
        for h in (0, 2):
            L += [f"v_pk_add_f32 v[{d+h}:{d+h+1}], v[{b0+h}:{b0+h+1}], v[{b0+16+h}:{b0+17+h}]"]
        return L
    for ins in sum6(176, 68): a(ins)
    a("v_permlane32_swap_b32 v68, v70\nv_permlane32_swap_b32 v69, v71")
    stamp(11); cnt_stamp(24)
    a("s_waitcnt vmcnt(0)")
    stamp(20)
    selloop(gG) if sel & 4 else gG.loop()
    stamp(12); cnt_stamp(25)
    sq = sum6(200, 64)
    a("v_cndmask_b32 v72, v224, v226, s[42:43]\nv_cndmask_b32 v73, v225, v227, s[42:43]")
    for i, stp in enumerate((4, 2, 1)):
        a(sq[2*i]); a(sq[2*i+1])
        a(f"v_add_f32_dpp v72, v72, v72 row_ror:{stp} row_mask:0xf bank_mask:0xf\nv_add_f32_dpp v73, v73, v73 row_ror:{stp} row_mask:0xf bank_mask:0xf")
    a(sq[6]); a(sq[7])
    a(f"v_mul_f32 v72, {float_lit(1/576)}, v72\nv_mul_f32 v73, {float_lit(1/576)}, v73")
    a(sq[8]); a(sq[9])
    a("v_fma_f32 v73, -v72, v72, v73\nv_add_f32 v72, v72, v13\nv_max_f32 v73, 0, v73")
    a("v_permlane32_swap_b32 v64, v66\nv_permlane32_swap_b32 v65, v67")
    a("v_cvt_pk_bf16_f32 v74, v73, v72\nv_lshlrev_b32 v73, 16, v74\nv_and_b32 v72, 0xffff0000, v74")
    a(f"v_add_f32 v73, {float_lit(1e-5)}, v73")
    bf16r(73, 73)
    a("v_sqrt_f32 v73, v73")
    for r in range(4):
        a(f"v_fma_f32 v{64+r}, -v72, v{68+r}, v{64+r}")
    bf16r(73, 73)
    a("v_rcp_f32 v73, v73")
    for r in range(4):
        a(f"v_mul_f32 v{64+r}, v{64+r}, v73")
    a("v_cvt_pk_bf16_f32 v68, v64, v65\nv_cvt_pk_bf16_f32 v69, v66, v67")
    a("v_lshlrev_b32 v64, 16, v68\nv_and_b32 v65, 0xffff0000, v68\nv_lshlrev_b32 v66, 16, v69\nv_and_b32 v67, 0xffff0000, v69")
    nl = float_lit(-1.4426950408889634)
    a(f"v_mul_f32 v68, {nl}, v64\nv_mul_f32 v69, {nl}, v65\nv_exp_f32 v68, v68\nv_exp_f32 v69, v69")
    a("v_add_f32 v68, 1.0, v68\nv_add_f32 v69, 1.0, v69\nv_rcp_f32 v68, v68\nv_rcp_f32 v69, v69")
    a("v_mul_f32 v64, v64, v68\nv_mul_f32 v65, v65, v69")
    a("v_cvt_pk_bf16_f32 v68, v64, v65\nv_lshlrev_b32 v64, 16, v68\nv_and_b32 v65, 0xffff0000, v68")
    a("v_mul_f32 v64, v64, v66\nv_mul_f32 v65, v65, v67")
    a("v_cvt_pk_bf16_f32 v102, v64, v64\nv_cvt_pk_bf16_f32 v103, v65, v65")
    for st in range(3):
        a(f"ds_bpermute_b32 v{96+2*st}, v3, v102 offset:{16*st}\nds_bpermute_b32 v{97+2*st}, v3, v103 offset:{16*st}")
    for st in range(3):
        a(f"s_waitcnt lgkmcnt({4-2*st})")
        sel_and(st, 96+2*st, 97+2*st)
    mfma_block(104, 3, ACC)
    reduce8_store("s40")
    stamp(13)
    a("s_branch L_fin")

    a.label("L_F")
    T = Tbr.fork()
    a("s_mul_i32 s10, s5, 11\ns_lshr_b32 s10, s10, 5\ns_cmp_eq_u32 s5, 17\ns_cselect_b32 s10, 5, s10\ns_cmp_eq_u32 s5, 14\ns_cselect_b32 s10, 4, s10")
    a("s_mul_i32 s8, s10, 3\ns_sub_u32 s11, s5, s8")
    a("s_cmp_ge_u32 s3, 2\ns_cselect_b32 s56, s30, s28\ns_cselect_b32 s57, s31, s29\ns_and_b32 s57, s57, 0xffff")
    a(f"s_mov_b32 s58, {576*4608*2}\ns_mov_b32 s59, 0x00020000")
    a("v_lshrrev_b32 v20, 3, v1\nv_lshlrev_b32 v20, 3, v20\nv_lshl_add_u32 v20, v2, 1, v20\nv_mul_u32_u24 v20, 9216, v20\nv_and_b32 v14, 7, v1\nv_lshl_add_u32 v20, v14, 4, v20")
    a("s_mul_i32 s12, s4, 3\ns_add_u32 s12, s12, s11")
    a("s_mul_i32 s8, s10, 96\ns_and_b32 s9, s3, 1\ns_mul_i32 s9, s9, 48\ns_add_u32 s8, s8, s9\ns_mul_i32 s81, s8, 9216\ns_mul_i32 s9, s12, 384\ns_add_u32 s81, s81, s9")
    gl = []
    def gload(t, window):
        st, rr, cb = t // 6, (t % 6) // 3, t % 3
        r = 168 + 24 * st + 8 * cb + 4 * rr
        gl.append(T.issue(f"buffer_load_dwordx4 v[{r}:{r+3}], v20, s[56:59], s81 offen offset:{128*cb} nt", window=window))
        if cb == 2: a(f"s_add_u32 s81, s81, {9216 if rr == 0 else 15*9216}")
    a("v_mul_u32_u24 v21, 1152, v4\nv_lshl_add_u32 v21, v5, 3, v21\ns_mul_i32 s8, s10, 192")
    xres = T.issue("buffer_load_dwordx2 v[26:27], v21, s[68:71], s8 offen")
    a(f"s_lshl_b32 s80, s10, 18\ns_mul_i32 s82, s3, {8*768}\ns_add_u32 s82, s82, s80\ns_add_u32 s82, s82, {WS_Y}\ns_add_u32 s83, s82, 3072")
    a("v_mul_u32_u24 v21, 384, v4\nv_lshl_add_u32 v21, v5, 4, v21")
    red_write_addr()
    a(f"s_lshl_b32 s8, s3, 10\ns_add_u32 s8, s8, {L_RED2}\nv_add_u32 v16, s8, v39")
    a("s_lshr_b32 s8, s3, 1\ns_mul_i32 s8, s8, 6144\ns_and_b32 s9, s3, 1\ns_mul_i32 s9, s9, 768\ns_add_u32 s8, s8, s9\nv_add_u32 v23, s8, v39")
    a(f"s_mul_i32 s84, s3, 768\ns_add_u32 s84, s84, {L_XT}\nv_add_u32 v17, s84, v21")
    a("v_bfe_u32 v14, v1, 2, 1\nv_mul_u32_u24 v24, 384, v14\nv_lshrrev_b32 v14, 3, v1\nv_lshl_add_u32 v24, v14, 5, v24\nv_lshl_add_u32 v24, v2, 3, v24")
    a("s_and_b32 s9, s3, 1\ns_mul_i32 s9, s9, 192\ns_add_u32 s9, s9, s84\nv_add_u32 v24, s9, v24")
    a(f"v_add_u32 v25, {L_H}, v21")
    a("s_mul_i32 s8, s11, 6\ns_add_u32 s8, s8, s10")
    a(f"s_mul_i32 s85, s8, 3072\ns_mul_i32 s9, s3, 768\ns_add_u32 s85, s85, s9\ns_add_u32 s85, s85, s99\ns_add_u32 s85, s85, {WS_G}")
    a(f"s_mul_i32 s87, s8, 1536\ns_lshr_b32 s9, s3, 1\ns_mul_i32 s9, s9, 768\ns_add_u32 s87, s87, s9\ns_add_u32 s87, s87, s99\ns_add_u32 s87, s87, {WS_S}")
    a(f"s_lshl_b32 s86, s11, 10\ns_lshl_b32 s9, s10, 7\ns_add_u32 s86, s86, s9\ns_add_u32 s86, s86, s99\ns_add_u32 s86, s86, {WS_ST}")
    a("v_and_b32 v10, 0x3f803f80, v36\nv_and_b32 v11, 0x3f803f80, v37\nv_mov_b32 v12, v10\nv_mov_b32 v13, v11")
    srd(72, 34, 2304)
    a(f"s_lshl_b32 s9, s12, 5\ns_add_u32 s40, s80, s9\ns_add_u32 s40, s40, {WS_OP}\ns_add_u32 s41, s40, {8*768}\ns_add_u32 s42, s40, {16*768}")
    a("v_lshrrev_b32 v14, 3, v0\nv_mul_u32_u24 v7, 768, v14\nv_and_b32 v14, 7, v0\nv_lshl_add_u32 v7, v14, 2, v7")
    a(f"s_add_u32 s8, s9, {L_H}\nv_lshlrev_b32 v8, 2, v14\nv_add_u32 v8, s8, v8")
    a("s_cmp_ge_u32 s12, 12\ns_cselect_b32 s43, 480, 0\ns_mul_i32 s8, s10, 96\ns_add_u32 s43, s43, s8\ns_lshl_b32 s8, s12, 3\ns_add_u32 s43, s43, s8\ns_lshl_b32 s43, s43, 1")
    a("v_lshlrev_b32 v3, 1, v14")
    ng = [0]
    def betweenF(u):
        if u >= 16 - WFP and ng[0] < 18:
            gload(ng[0], None); ng[0] += 1
    pv_and_publish(T, betweenF, "L_noopF")
    while ng[0] < 18:
        gload(ng[0], WF); ng[0] += 1
    stamp(7)
    M24 = (0xffffff, 0xffffff)
    gY = Gather([(f"buffer_load_dwordx4 v[{104+4*k}:{107+4*k}], v21, s[64:67], {'s82' if k < 4 else 's83'} offen offset:{768*(k%4)} sc1", list(range(104+4*k, 108+4*k))) for k in range(8)],
                base=[M24] * 8, tmp=76)
    T.wait(xres)
    a("v_lshlrev_b32 v100, 16, v26\nv_and_b32 v101, 0xffff0000, v26\nv_lshlrev_b32 v102, 16, v27\nv_and_b32 v103, 0xffff0000, v27")
    SACC = [40, 44, 48, 52, 56, 60]
    for st in range(3):
        for cb in range(3):
            if st == 2 and cb == YCB: gY.issue(T)
            T.wait(gl[6*st + 3 + cb])
            r = 168 + 24 * st + 8 * cb
            a(f"v_swap_b32 v{r+2}, v{r+4}\nv_swap_b32 v{r+3}, v{r+5}")
            for hf in range(2):
                k = 2 * cb + hf
                c = "0" if st == 0 else f"v[{SACC[k]}:{SACC[k]+3}]"
                a(f"v_mfma_f32_16x16x32_bf16 v[{SACC[k]}:{SACC[k]+3}], v[10:13], v[{r+4*hf}:{r+4*hf+3}], {c}")
    if YCB >= 3: gY.issue(T)
    stamp(17)
    for k in range(6):
        a(f"ds_write_b128 v22, v[{SACC[k]}:{SACC[k]+3}] offset:{((k//2)*16 + (k%2))*16}")
    def reduce4(r):
        a("s_mov_b32 exec_lo, -1\ns_mov_b32 exec_hi, 0xffff")
        for p in range(4):
            a(f"ds_read_b128 v[{r+4*p}:{r+4*p+3}], v23 offset:{1536*p}")
        a("s_waitcnt lgkmcnt(2)")
        a(f"v_pk_add_f32 v[{r}:{r+1}], v[{r}:{r+1}], v[{r+4}:{r+5}]\nv_pk_add_f32 v[{r+2}:{r+3}], v[{r+2}:{r+3}], v[{r+6}:{r+7}]")
        a("s_waitcnt lgkmcnt(0)")
        a(f"v_pk_add_f32 v[{r+8}:{r+9}], v[{r+8}:{r+9}], v[{r+12}:{r+13}]\nv_pk_add_f32 v[{r+10}:{r+11}], v[{r+10}:{r+11}], v[{r+14}:{r+15}]")
        a(f"v_pk_add_f32 v[{r}:{r+1}], v[{r}:{r+1}], v[{r+8}:{r+9}]\nv_pk_add_f32 v[{r+2}:{r+3}], v[{r+2}:{r+3}], v[{r+10}:{r+11}]")
        tag([r, r+1, r+2, r+3])
    a("s_waitcnt lgkmcnt(0)\ns_barrier")
    a("s_bitcmp1_b32 s3, 0\ns_cbranch_scc1 L_noS")
    reduce4(136)
    a(f"s_add_u32 s101, s87, {LOCOFF}\nbuffer_store_dwordx4 v[136:139], v39, s[64:67], s101 offen")
    a("s_mov_b64 exec, -1")
    a("s_waitcnt vmcnt(1)\ns_branch L_S1")
    a.label("L_noS")
    a("s_waitcnt vmcnt(0)")
    a.label("L_S1")
    T.ops = []
    selloop(gY) if sel & 2 else gY.loop()
    stamp(8)
    for k in range(0, 8, 2):
        a(f"v_pk_add_f32 v[{104+4*k}:{105+4*k}], v[{104+4*k}:{105+4*k}], v[{108+4*k}:{109+4*k}]\nv_pk_add_f32 v[{106+4*k}:{107+4*k}], v[{106+4*k}:{107+4*k}], v[{110+4*k}:{111+4*k}]")
    for k in (0, 4):
        a(f"v_pk_add_f32 v[{104+4*k}:{105+4*k}], v[{104+4*k}:{105+4*k}], v[{112+4*k}:{113+4*k}]\nv_pk_add_f32 v[{106+4*k}:{107+4*k}], v[{106+4*k}:{107+4*k}], v[{114+4*k}:{115+4*k}]")
    a("v_pk_add_f32 v[40:41], v[104:105], v[120:121]\nv_pk_add_f32 v[42:43], v[106:107], v[122:123]")
    a("ds_write_b128 v16, v[40:43]")
    a("s_waitcnt lgkmcnt(0)\ns_barrier")
    stamp(18)
    for k in range(4):
        a(f"ds_read_b128 v[{40+4*k}:{43+4*k}], v19 offset:{1024*k}")
    a("s_waitcnt lgkmcnt(2)")
    a("v_pk_add_f32 v[40:41], v[40:41], v[44:45]\nv_pk_add_f32 v[42:43], v[42:43], v[46:47]")
    a("s_waitcnt lgkmcnt(0)")
    a("v_pk_add_f32 v[48:49], v[48:49], v[52:53]\nv_pk_add_f32 v[50:51], v[50:51], v[54:55]")
    a("v_pk_add_f32 v[40:41], v[40:41], v[48:49]\nv_pk_add_f32 v[42:43], v[42:43], v[50:51]")
    a("v_cvt_pk_bf16_f32 v44, v40, v41\nv_cvt_pk_bf16_f32 v45, v42, v43")
    a("v_lshlrev_b32 v40, 16, v44\nv_and_b32 v41, 0xffff0000, v44\nv_lshlrev_b32 v42, 16, v45\nv_and_b32 v43, 0xffff0000, v45")
    a("v_pk_add_f32 v[40:41], v[40:41], v[100:101]\nv_pk_add_f32 v[42:43], v[42:43], v[102:103]")
    for r in range(4):
        a(f"v_cvt_pk_bf16_f32 v{48+r}, v{40+r}, v{40+r}")
    a("s_mov_b32 exec_lo, 0xffffff\ns_mov_b32 exec_hi, 0xffffff")
    a("ds_write_b128 v17, v[48:51]")
    a("s_mov_b64 exec, -1")
    a("s_waitcnt lgkmcnt(0)")
    for st in range(3):
        a(f"ds_read_b64 v[{96+2*st}:{97+2*st}], v24 offset:{64*st}")
    for r in range(4):
        a(f"v_and_b32 v{60+r}, 0xffff0000, v{48+r}")
    for st in range(3):
        a(f"s_waitcnt lgkmcnt({2-st})")
        sel_and(st, 96+2*st, 97+2*st)
    stamp(19)
    mfma_block(168, 3, ACC)
    for r in range(4):
        a(f"v_sub_f32 v{44+r}, v{60+r}, v29")
    a("v_add_f32 v52, v44, v45\nv_add_f32 v53, v46, v47\nv_mul_f32 v54, v44, v44\nv_mul_f32 v55, v45, v45")
    a("v_fmac_f32 v54, v46, v46\nv_fmac_f32 v55, v47, v47\nv_add_f32 v52, v52, v53\nv_add_f32 v53, v54, v55")
    a("s_waitcnt lgkmcnt(0)\ns_barrier")
    reduce4(104)
    a(f"s_add_u32 s101, s85, {LOCOFF}\nbuffer_store_dwordx4 v[104:107], v39, s[64:67], s101 offen")
    a("s_mov_b64 exec, -1")
    stamp(9)
    a("s_cmp_lg_u32 s3, 3\ns_cbranch_scc1 L_nost")
    a("v_cmp_gt_u32 vcc, 24, v5\nv_cndmask_b32 v52, 0, v52, vcc\nv_cndmask_b32 v53, 0, v53, vcc")
    row_allreduce("v_add_f32", [52, 53])
    swap_reduce("v_add_f32", [52, 53], [54, 55], 16)
    a("v_mov_b32 v54, v52\nv_mov_b32 v55, v53")
    a("v_permlane32_swap_b32 v52, v54\nv_permlane32_swap_b32 v53, v55")
    tag([52, 53, 54, 55])
    a("s_mov_b64 exec, 0xff")
    a(f"s_add_u32 s101, s86, {LOCOFF}\nbuffer_store_dwordx4 v[52:55], v39, s[64:67], s101 offen\nbuffer_store_dwordx4 v[52:55], v39, s[64:67], s86 offen sc1")
    a("s_mov_b64 exec, -1")
    a.label("L_nost")
    a("s_mov_b32 exec_lo, -1\ns_mov_b32 exec_hi, 0xffff")
    a("buffer_store_dwordx4 v[104:107], v39, s[64:67], s85 offen sc1")
    a("s_bitcmp1_b32 s3, 0\ns_cbranch_scc1 L_fin")
    a("buffer_store_dwordx4 v[136:139], v39, s[64:67], s87 offen sc1")
    a("s_cmp_lg_u32 s3, 0\ns_cbranch_scc1 L_fin")
    a("s_mov_b32 exec_lo, 0xffffff\ns_mov_b32 exec_hi, 0xffffff")
    a("ds_write_b128 v25, v[60:63]")
    a("s_mov_b64 exec, -1")
    a("s_waitcnt lgkmcnt(0)\nds_read_b32 v64, v8")
    gR = Gather([(f"buffer_load_dword v{48+i}, v7, s[64:67], s{40+i} offen sc1", [48+i]) for i in range(3)], tmp=76)
    gR.issue()
    a("s_waitcnt vmcnt(0)")
    selloop(gR) if sel & 8 else gR.loop()
    stamp(12)
    a("v_add_f32 v40, v48, v49\nv_add_f32 v40, v40, v50")
    row_allreduce("v_add_f32", [40], steps=(8,))
    swap_reduce("v_add_f32", [40], [41], 16)
    swap_reduce("v_add_f32", [40], [41], 32)
    bf16r(40, 40)
    a("s_waitcnt lgkmcnt(0)")
    a("v_add_f32 v40, v40, v64\nv_cvt_pk_bf16_f32 v40, v40, v40")
    a("s_mov_b64 exec, 0xff")
    a("buffer_store_short v40, v3, s[72:75], s43 offen")
    a("s_cmp_lg_u32 s2, 0\ns_cbranch_scc1 L_fin")
    a("s_mov_b64 exec, 1\nv_mov_b32 v41, s78\nv_mov_b32 v42, 0")
    a("buffer_store_dword v41, v42, s[64:67], 0 offen sc1")
    a.label("L_fin")
    if dbgtime:
        a("s_mov_b64 exec, 1\ns_memrealtime s[16:17]\ns_waitcnt lgkmcnt(0)")
        a("v_mov_b32 v1, 0\nv_mov_b32 v2, s16\nv_not_b32 v3, v31\nv_sub_u32 v4, v2, v31")
        a("global_atomic_umax v1, v2, s[90:91]\nglobal_atomic_umax v1, v3, s[90:91] offset:4\nglobal_atomic_umax v1, v4, s[90:91] offset:8")
        a("global_atomic_umax v1, v31, s[90:91] offset:12")
    if stamps:
        a("s_mov_b64 exec, -1")
        stamp(14)
        a(f"v_writelane_b32 v31, s79, 15")
        a(f"s_lshl_b32 s8, s2, 2\ns_add_u32 s8, s8, s3\ns_lshl_b32 s8, s8, 8\ns_add_u32 s8, s8, {WS_STAMP}")
        a("buffer_store_dword v31, v9, s[64:67], s8 offen")
    a.label("L_end")
    a("s_endpgm")
    L, n = hazard.fix(a.L)
    if ldnt: L = [l.replace(" sc1", " sc1 nt") if "buffer_load" in l else l for l in L]
    if stnt: L = [l.replace(" sc1", " sc1 nt") if "buffer_store" in l else l for l in L]
    body = "\n".join(L) + "\n"
    if codepf:
        body = body.replace("    .CODEPF_GUARD\n",
            "    s_cmp_ge_u32 s8, (L_end - " + NAME + "_kernel)\n    s_cbranch_scc1 L_nopf\n"
            "    v_add_u32 v31, s8, v3\n" if False else
            "    v_add_u32 v4, s8, v3\n"
            "    v_cmp_gt_u32 vcc, (L_end - " + NAME + "_kernel - 64), v4\n"
            "    s_and_saveexec_b64 s[100:101], vcc\n"
            "    s_cbranch_execz L_nopf\n"
            "    global_load_dword v255, v3, s[98:99]\n"
            "L_nopf:\n"
            "    s_mov_b64 exec, -1\n")
    lds = max(L_END, lds_force)
    return wrap(body, 256, 256, lds, 304 if w2early else 256, accum=256)

import struct
def float_lit(x):
    return "0x%08x" % struct.unpack("<I", struct.pack("<f", x))[0]

if __name__ == "__main__":
    out = sys.argv[1] if len(sys.argv) > 1 else "k.s"
    kw = {}
    for arg in sys.argv[2:]:
        k, v = arg.split("=")
        kw[k] = int(v)
    open(out, "w").write(gen(**kw))
    print("wrote", out, "LDS", L_END, "WS_END", hex(WS_END))
```

```python
import sys, copy
from asmlib import *
import hazard

WS_EPOCH = 0
WS0 = 0x40000
XR = 0x40000
WS_QP = WS0
WS_OPART = WS0 + 0x8000
WS_ML = WS0 + 0x10000
WS_Y = WS0 + 0x11000
WS_OP = WS0 + 0x17000
WS_G = WS0 + 0x1E000
WS_S = WS0 + 0x2C000
WS_ST = WS0 + 0x33000
WS_XID = WS0 + 0x3E000
LOCOFF = 8 * XR
WS_END = WS0 + 16 * XR
WS_STAMP = 0x8000000

L_K = 0
L_RED = 0
L_RED2 = 65536
L_XN = L_RED2 + 4096
L_QB = L_XN + 4 * 768
L_PT = L_QB + 512
L_MX = L_PT + 2048
L_XT = L_MX + 128
L_WT = L_XT + 4 * 768
L_H = L_WT + 256
L_YS = L_H + 768
L_END = L_YS + 64

TAGMASK = 0x3FF
POLL_MAX = 400000

class Tracker:
    def __init__(self, a):
        self.a = a; self.ops = []; self.n = 0
    def issue(self, ins, cond=False, window=None):
        if window is not None:
            cnt = sum(1 for (_, c) in self.ops if not c)
            if cnt >= window:
                self.a(f"s_waitcnt vmcnt({window-1})")
                self._retire_to(window - 1)
        self.a(ins)
        self.n += 1
        self.ops.append((self.n, cond))
        return self.n
    def _retire_to(self, k):
        keep = []; c = 0
        for op in reversed(self.ops):
            if c >= k: break
            keep.append(op)
            if not op[1]: c += 1
        self.ops = list(reversed(keep))
    def wait(self, opid):
        ids = [o for (o, _) in self.ops]
        if opid not in ids: return
        after = sum(1 for (o, c) in self.ops if o > opid and not c)
        self.a(f"s_waitcnt vmcnt({min(after, 63)})")
        self.ops = [(o, c) for (o, c) in self.ops if o > opid]
    def drain(self):
        self.a("s_waitcnt vmcnt(0)"); self.ops = []
    def fork(self):
        t = Tracker(self.a); t.ops = list(self.ops); t.n = self.n; return t

def gen(W=6, WE=12, WF=6, WFP=2, WE2=10, NK0=6, NKQ=0, NV0=6, WVT=10, dual=1, mlearly=0, woearly=1, WOW=2, w2early=0, fearly=0, ack=0, tlb=0, YCB=3, NL=0, stearly=2, dj=3, sel=0, db=0, fdelay=0, loc=1, dfr=2, mlat=0, XK=2, XV=2, pretouch=0, psleep=0, dbgtime=0, ldnt=0, stnt=0, stsleep=0, stamps=False, lds_force=0, codepf=True):
    a = Asm()
    T = Tracker(a)
    nst = [0]
    def cnt_stamp(i):
        if stamps: a(f"v_writelane_b32 v31, s79, {i}")
    def stamp(i):
        if stamps:
            a(f"s_memrealtime s[90:91]\ns_waitcnt lgkmcnt(0)\nv_writelane_b32 v31, s90, {i}")
    def srd(d, p, size):
        a(f"s_mov_b32 s{d}, s{p}\ns_and_b32 s{d+1}, s{p+1}, 0xffff\ns_mov_b32 s{d+2}, {size}\ns_mov_b32 s{d+3}, 0x00020000")
    def row_allreduce(op, regs, tmp=None, steps=(8, 4, 2, 1)):
        for st in steps:
            for r in regs:
                a(f"{op}_dpp v{r}, v{r}, v{r} row_ror:{st} row_mask:0xf bank_mask:0xf")
    def swap_reduce(op, regs, tmps, which):
        for r, t in zip(regs, tmps):
            a(f"v_mov_b32 v{t}, v{r}")
        for r, t in zip(regs, tmps):
            a(f"v_permlane{which}_swap_b32 v{r}, v{t}")
        for r, t in zip(regs, tmps):
            a(f"{op} v{r}, v{r}, v{t}")
    def bf16r(dst, src):
        a(f"v_cvt_pk_bf16_f32 v{dst}, v{src}, v{src}\nv_and_b32 v{dst}, 0xffff0000, v{dst}")
    def tag(regs, q=False):
        for r in regs:
            a(f"v_bfi_b32 v{r}, {'63' if q else 's77'}, v30, v{r}")
    def untag(regs, acc, first=True, q=False):
        for r in regs:
            a(f"v_xor_b32 v{r}, {'s75' if q else 'v30'}, v{r}")
        rs = list(regs)
        if first:
            if len(rs) >= 2:
                a(f"v_or_b32 v{acc}, v{rs[0]}, v{rs[1]}"); rs = rs[2:]
            else:
                a(f"v_mov_b32 v{acc}, v{rs[0]}"); rs = rs[1:]
        while len(rs) >= 2:
            a(f"v_or3_b32 v{acc}, v{acc}, v{rs[0]}, v{rs[1]}"); rs = rs[2:]
        if rs:
            a(f"v_or_b32 v{acc}, v{acc}, v{rs[0]}")
    def check_retry(acc, retry_label, code, q=False):
        ok = a.newlabel("L_ok")
        a(f"v_and_b32 v{acc}, {'63' if q else 's77'}, v{acc}\nv_cmp_ne_u32 vcc, 0, v{acc}")
        a(f"s_cbranch_vccz {ok}")
        a(f"s_add_u32 s79, s79, 1\ns_cmp_lt_u32 s79, {POLL_MAX}\ns_cbranch_scc1 {retry_label}")
        a.label(ok)

    def publish(Tk, ins, cond=False, local=False, defer=False):
        if local and loc:
            import re
            m = re.search(r"s\[64:67\], (s\d+) offen", ins)
            a(f"s_add_u32 s101, {m.group(1)}, {LOCOFF}")
            Tk.issue(ins.replace(f"s[64:67], {m.group(1)} offen", "s[64:67], s101 offen"), cond=cond)
            if defer: return ins + " sc1"
        Tk.issue(ins + " sc1", cond=cond)
    class Gather:
        def __init__(g, loads, masks=None, base=None, tmp=None, q=False):
            g.loads = loads; g.tmp = tmp; g.q = q
            g.base = base or [(-1, -1)] * len(loads)
        def issue(g, Tk=None):
            cur = (-1, -1); ids = []
            for (ins, _), b in zip(g.loads, g.base):
                if b != cur:
                    a(f"s_mov_b32 exec_lo, {b[0]}\ns_mov_b32 exec_hi, {b[1]}"); cur = b
                if Tk: ids.append(Tk.issue(ins))
                else: a(ins)
            if cur != (-1, -1): a("s_mov_b64 exec, -1")
            return ids
        def check(g):
            mk = '63' if g.q else 's77'
            groups = []
            for (ins, regs), b in zip(g.loads, g.base):
                if groups and groups[-1][0] == b: groups[-1][1].extend(regs)
                else: groups.append((b, list(regs)))
            first = True
            if groups[0][0] != (-1, -1):
                a(f"v_mov_b32 v{g.tmp}, 0")
            for b, regs in groups:
                if b != (-1, -1): a(f"s_mov_b32 exec_lo, {b[0]}\ns_mov_b32 exec_hi, {b[1]}")
                untag(regs, g.tmp, first=first, q=g.q); first = False
                if b != (-1, -1): a("s_mov_b64 exec, -1")
            a(f"v_and_b32 v{g.tmp}, {mk}, v{g.tmp}\nv_cmp_ne_u32 vcc, 0, v{g.tmp}")
        def loop(g, sleep=0):
            lc = a.newlabel("L_gc"); ld = a.newlabel("L_gd"); lr = a.newlabel("L_gr")
            a(f"s_branch {lc}")
            a.label(lr)
            if sleep or psleep: a(f"s_sleep {max(sleep, psleep)}")
            g.issue()
            a("s_waitcnt vmcnt(0)")
            a.label(lc)
            g.check()
            a(f"s_cbranch_vccz {ld}")
            a(f"s_add_u32 s79, s79, 1\ns_cmp_lt_u32 s79, {POLL_MAX}\ns_cbranch_scc1 {lr}")
            a.label(ld)
    def selloop(g, sp="s16"):
        n = len(g.loads)
        lc = a.newlabel("L_sc"); ld = a.newlabel("L_sd")
        a(f"s_mov_b32 {sp}, {(1 << n) - 1}")
        a.label(lc)
        cur = (-1, -1)
        for k, ((ins, regs), b) in enumerate(zip(g.loads, g.base)):
            if b != cur:
                a(f"s_mov_b32 exec_lo, {b[0]}\ns_mov_b32 exec_hi, {b[1]}"); cur = b
            l = a.newlabel("L_sk")
            a(f"s_bitcmp1_b32 {sp}, {k}\ns_cbranch_scc0 {l}")
            untag(regs, g.tmp)
            a(f"v_and_b32 v{g.tmp}, s77, v{g.tmp}\nv_cmp_ne_u32 vcc, 0, v{g.tmp}")
            a(f"s_cbranch_vccnz {l}r")
            a(f"s_bitset0_b32 {sp}, {k}\ns_branch {l}")
            a.label(l + "r")
            a(ins)
            a.label(l)
        a("s_mov_b64 exec, -1")
        a(f"s_cmp_eq_u32 {sp}, 0\ns_cbranch_scc1 {ld}")
        a(f"s_add_u32 s79, s79, 1\ns_cmp_lt_u32 s79, {POLL_MAX}\ns_waitcnt vmcnt(0)\ns_cbranch_scc1 {lc}")
        a.label(ld)
    def poll2(gA, gB, fin, dbbit, young=0):
        n = len(gA.loads)
        if not (db & dbbit):
            a(f"s_waitcnt vmcnt({young})")
            gA.loop(); fin(0); return
        l0 = a.newlabel("L_p2"); la = a.newlabel("L_p2a"); lb = a.newlabel("L_p2b"); le = a.newlabel("L_p2e")
        a.label(l0)
        gB.issue()
        a(f"s_waitcnt vmcnt({n})")
        gA.check()
        a(f"s_cbranch_vccz {la}")
        gA.issue()
        a(f"s_waitcnt vmcnt({n})")
        gB.check()
        a(f"s_cbranch_vccz {lb}")
        a(f"s_add_u32 s79, s79, 1\ns_cmp_lt_u32 s79, {POLL_MAX}\ns_cbranch_scc1 {l0}")
        a.label(lb)
        fin(1)
        a(f"s_branch {le}")
        a.label(la)
        fin(0)
        a.label(le)
    def quarter_publish(Tk, r, vaddr, soff, q=False, defer=False):
        a("s_mov_b64 exec, s[62:63]")
        for k in range(4):
            a(f"ds_read_b128 v[{r+4*k}:{r+4*k+3}], v19 offset:{1024*k}")
        a("s_waitcnt lgkmcnt(2)")
        a(f"v_pk_add_f32 v[{r}:{r+1}], v[{r}:{r+1}], v[{r+4}:{r+5}]\nv_pk_add_f32 v[{r+2}:{r+3}], v[{r+2}:{r+3}], v[{r+6}:{r+7}]")
        a("s_waitcnt lgkmcnt(0)")
        a(f"v_pk_add_f32 v[{r+8}:{r+9}], v[{r+8}:{r+9}], v[{r+12}:{r+13}]\nv_pk_add_f32 v[{r+10}:{r+11}], v[{r+10}:{r+11}], v[{r+14}:{r+15}]")
        a(f"v_pk_add_f32 v[{r}:{r+1}], v[{r}:{r+1}], v[{r+8}:{r+9}]\nv_pk_add_f32 v[{r+2}:{r+3}], v[{r+2}:{r+3}], v[{r+10}:{r+11}]")
        tag([r, r+1, r+2, r+3], q=q)
        d = publish(Tk, f"buffer_store_dwordx4 v[{r}:{r+3}], v{vaddr}, s[64:67], {soff} offen", local=not q, defer=defer)
        a("s_mov_b64 exec, -1")
        return d
    MK = [16, 18, 20, 22, 24, 26, 28, 30]
    MK2 = [32, 34, 36, 38, 44, 46, 92, 94]
    def tile_loads(base, srdn, soff, rc="v"):
        L = []
        for st in range(len(soff)):
            for cb in range(3):
                for rr in range(2):
                    r = base + 24 * st + 8 * cb + 4 * rr
                    L.append(f"buffer_load_dwordx4 {rc}[{r}:{r+3}], v236, s[{srdn}:{srdn+3}], {soff[st]} offen offset:{rr*1152+cb*128} nt")
        return L
    a("s_cmp_ge_u32 s2, 256\ns_cbranch_scc1 L_end")
    a("s_load_dwordx16 s[16:31], s[0:1], 0\ns_load_dwordx8 s[32:39], s[0:1], 64")
    if stamps:
        a("s_memrealtime s[90:91]\nv_mov_b32 v31, 0")
    if dbgtime:
        a("s_memrealtime s[90:91]\ns_memtime s[92:93]\ns_waitcnt lgkmcnt(0)\nv_mov_b32 v31, s90\nv_mov_b32 v253, s92\ns_mov_b32 s90, s36\ns_mov_b32 s91, s37")
    a("v_lshrrev_b32 v1, 6, v0\nv_and_b32 v0, 63, v0")
    a("v_readfirstlane_b32 s3, v1")
    if codepf:
        a("s_getpc_b64 s[98:99]")
        a("v_lshlrev_b32 v3, 7, v0")
        a("s_lshl_b32 s8, s3, 13\ns_add_u32 s98, s98, s8\ns_addc_u32 s99, s99, 0")
        a(".CODEPF_GUARD")
    a("s_and_b32 s4, s2, 7\ns_lshr_b32 s5, s2, 3")
    a("s_lshr_b32 s6, s5, 4\ns_lshl_b32 s7, s4, 1\ns_add_u32 s6, s6, s7")
    a("s_and_b32 s7, s5, 15")
    a(f"s_lshl_b32 s99, s4, 18\ns_mul_i32 s98, s4, {0x40000-0x8000}")
    a("v_and_b32 v1, 15, v0\nv_lshrrev_b32 v2, 4, v0")
    a("v_lshrrev_b32 v4, 5, v0\nv_and_b32 v5, 31, v0")
    a("v_mul_u32_u24 v6, 36, v5\nv_mul_u32_u24 v7, 1152, v4\nv_add_u32 v6, v6, v7")
    a("v_lshl_add_u32 v7, v5, 1, v7")
    a("v_mul_u32_u24 v8, 8192, v2\nv_lshl_add_u32 v8, v1, 4, v8")
    a("s_mov_b32 s77, 0x3ff\ns_mov_b32 s79, 0")
    a("s_waitcnt lgkmcnt(0)")
    if stamps:
        a("v_writelane_b32 v31, s90, 0")
    a("s_load_dword s78, s[38:39], 0")
    if pretouch == 2:
        a(f"s_lshl_b32 s8, s5, 13\ns_lshl_b32 s9, s3, 11\ns_add_u32 s8, s8, s9\ns_add_u32 s8, s8, s99\ns_add_u32 s8, s8, {WS0}")
        a("s_add_u32 s88, s38, s8\ns_addc_u32 s89, s39, 0")
        for k in range(16):
            a(f"s_load_dword s{83 + k % 5}, s[88:89], {128*k}")
    srd(68, 16, 2304)
    srd(48, 22, 576 * 4096 * 2)
    srd(64, 38, 256 << 20)
    x0 = T.issue("buffer_load_dwordx4 v[60:63], v6, s[68:71], 0 offen")
    x1 = T.issue("buffer_load_dwordx4 v[64:67], v6, s[68:71], 0 offen offset:16")
    x2 = T.issue("buffer_load_dword v68, v6, s[68:71], 0 offen offset:32")
    a("s_lshr_b32 s9, s7, 1\ns_mul_i32 s10, s9, 144")
    xr = []
    for k in range(3):
        xr.append(T.issue(f"buffer_load_ushort v{69+k}, v7, s[68:71], s10 offen offset:{64*k}"))
    a("s_and_b32 s8, s7, 1\ns_lshl_b32 s11, s6, 1\ns_add_u32 s11, s8, s11")
    a("s_lshl_b32 s8, s11, 8")
    a("s_mul_i32 s12, s9, 72\ns_lshl_b32 s10, s3, 2\ns_add_u32 s12, s12, s10\ns_lshl_b32 s12, s12, 13\ns_add_u32 s8, s8, s12")
    wq = []
    for i in range(5):
        if i == 4:
            a("s_cmp_ge_u32 s3, 2\ns_cselect_b32 s8, 0x7fffffff, s8")
        wq.append(T.issue(f"buffer_load_dwordx4 v[{40+4*i}:{43+4*i}], v8, s[48:51], s8 offen nt"))
        if i < 4: a(f"s_add_u32 s8, s8, {16*8192}")
    a(f"s_lshl_b32 s13, s11, 3\ns_add_u32 s13, s13, s9\ns_lshl_b32 s13, s13, 10\ns_add_u32 s13, s13, {WS_QP}\ns_add_u32 s13, s13, s98")
    srd(40, 18, 64 << 20); srd(44, 20, 64 << 20)
    if pretouch == 1:
        a("s_cmp_lg_u32 s3, 2\ns_cbranch_scc1 L_nopt")
        a(f"s_lshl_b32 s8, s5, 13\ns_add_u32 s8, s8, s99\ns_add_u32 s8, s8, {WS0}\nv_lshlrev_b32 v14, 7, v0")
        T.issue("buffer_load_dword v254, v14, s[64:67], s8 offen sc1", cond=True)
        a.label("L_nopt")
    a("s_lshr_b32 s8, s7, 3\ns_lshl_b32 s14, s8, 25\ns_lshl_b32 s9, s6, 21\ns_add_u32 s14, s14, s9")
    a("s_and_b32 s9, s7, 7\ns_lshl_b32 s9, s9, 14\ns_add_u32 s14, s14, s9\ns_lshl_b32 s9, s3, 12\ns_add_u32 s14, s14, s9")
    a(f"s_add_u32 s14, s14, {6144*256}\ns_mov_b32 s15, s14")
    for k in range(4):
        a(f"v_add_u32 v{10+k}, {4*k}, v2\nv_xor_b32 v{10+k}, v{10+k}, v1\nv_lshlrev_b32 v{10+k}, 4, v{10+k}\nv_lshl_add_u32 v{10+k}, v2, 8, v{10+k}")
    a("s_lshl_b32 s100, s3, 14")
    kops = []
    def kload(i, window):
        if i % 4 == 0:
            a(f"s_add_u32 s101, s100, {(i//4)*4096}\ns_mov_b32 m0, s101")
        kops.append(T.issue(f"buffer_load_dwordx4 v{10+i%4}, s[40:43], s14 offen offset:{(i%4)*1024} nt lds", window=window))
        if i % 4 == 3:
            a("s_add_u32 s14, s14, 131072")
    for i in range(NK0):
        kload(i, None)
    a("s_sub_u32 s74, s5, 18")
    srd(52, 24, 4096 * 576 * 2)
    a("v_lshrrev_b32 v236, 3, v1\nv_lshlrev_b32 v236, 3, v236\nv_lshl_add_u32 v236, v2, 1, v236\nv_mul_u32_u24 v236, 1152, v236\nv_and_b32 v14, 7, v1\nv_lshl_add_u32 v236, v14, 4, v236")
    a("s_and_b32 s8, s74, 15\ns_mul_i32 s73, s8, 11\ns_lshr_b32 s73, s73, 5")
    a("s_mul_i32 s9, s73, 3\ns_sub_u32 s80, s8, s9")
    a("s_lshl_b32 s8, s4, 2\ns_add_u32 s73, s73, s8")
    a("s_lshl_b32 s8, s73, 7\ns_lshl_b32 s9, s3, 5\ns_add_u32 s8, s8, s9\ns_mul_i32 s8, s8, 1152\ns_mul_i32 s9, s80, 384\ns_add_u32 s81, s8, s9")
    a("s_cmp_ge_u32 s74, 12\ns_cselect_b32 s81, 0x7fff0000, s81")
    a(f"s_add_u32 s82, s81, {16*1152}")
    wol = tile_loads(168, 52, ["s81", "s82"])
    if w2early:
        srd(60, 32, 4608 * 576 * 2)
        a("s_and_b32 s8, s74, 15\ns_mul_i32 s72, s4, 14\ns_add_u32 s72, s72, s8")
        a("s_mul_i32 s8, s72, 171\ns_lshr_b32 s8, s8, 9\ns_mul_i32 s9, s8, 3\ns_sub_u32 s9, s72, s9")
        a("s_lshl_b32 s8, s8, 7\ns_lshl_b32 s12, s3, 5\ns_add_u32 s8, s8, s12\ns_mul_i32 s8, s8, 1152\ns_mul_i32 s9, s9, 384\ns_add_u32 s83, s8, s9")
        a("s_cmp_ge_u32 s74, 14\ns_cselect_b32 s83, 0x7fff0000, s83\ns_cmp_ge_u32 s72, 108\ns_cselect_b32 s83, 0x7fff0000, s83")
        a(f"s_add_u32 s84, s83, {16*1152}")
        wol = wol + tile_loads(0, 60, ["s83", "s84"], rc="a")
    if fearly:
        a("s_mov_b32 s85, 1152\ns_mov_b32 s86, -1024\ns_mov_b32 s87, 17024")
        a("s_cmp_ge_u32 s5, 18\ns_cbranch_scc1 L_xE")
        a("s_cmp_ge_u32 s3, 2\ns_cselect_b32 s52, s30, s28\ns_cselect_b32 s53, s31, s29\ns_and_b32 s53, s53, 0xffff")
        a(f"s_mov_b32 s54, {576*4608*2}")
        a("v_mul_u32_u24 v236, 9216, v2\nv_lshl_add_u32 v236, v1, 4, v236")
        a(f"s_mul_i32 s81, s4, {72*9216}\ns_lshl_b32 s9, s5, 9\ns_add_u32 s81, s81, s9\ns_and_b32 s9, s3, 1\ns_lshl_b32 s9, s9, 8\ns_add_u32 s81, s81, s9")
        a(f"s_mov_b32 s85, {4*9216}\ns_mov_b32 s86, {4*9216}\ns_mov_b32 s87, {4*9216}")
        a.label("L_xE")
        wol = []
        for k in range(12):
            inc = "s87" if k == 5 else ("s85" if k % 2 == 0 else "s86")
            wol.append(f"buffer_load_dwordx4 v[{168+4*k}:{171+4*k}], v236, s[52:55], s81 offen nt\ns_add_u32 s81, s81, {inc}")
    if tlb:
        srd(60, 32, 4608 * 576 * 2)
        a("s_cmp_ge_u32 s3, 2\ns_cselect_b32 s56, s30, s28\ns_cselect_b32 s57, s31, s29\ns_and_b32 s57, s57, 0xffff")
        a(f"s_mov_b32 s58, {576*4608*2}\ns_mov_b32 s59, 0x00020000")
        a("v_lshlrev_b32 v14, 16, v0")
        a(f"s_mul_i32 s8, s4, {72*9216}\ns_lshl_b32 s9, s5, 9\ns_add_u32 s8, s8, s9\ns_cmp_ge_u32 s5, 18\ns_cselect_b32 s8, 0x7fff0000, s8")
        a("s_and_b32 s9, s74, 15\ns_mul_i32 s12, s4, 14\ns_add_u32 s12, s12, s9\ns_mul_i32 s12, s12, 49152\ns_cmp_lt_u32 s5, 18\ns_cselect_b32 s12, 0x7fff0000, s12")
        a("s_mov_b64 exec, 0x7ff")
        T.issue("buffer_load_dword v252, v14, s[56:59], s8 offen nt")
        a("s_mov_b64 exec, 0xf")
        T.issue("buffer_load_dword v253, v14, s[60:63], s12 offen nt")
        a("s_mov_b64 exec, 0xff")
        T.issue("buffer_load_dword v254, v14, s[44:47], s15 offen nt")
        a("s_mov_b64 exec, -1")
    woo = []
    cnt = [0]
    def extra(window, every=2):
        cnt[0] += 1
        if woearly and cnt[0] % every == 0 and len(woo) < len(wol):
            woo.append(T.issue(wol[len(woo)], window=window))
    if woearly: W = W + WOW; WVT = WVT + WOW
    a("v_and_b32 v14, 1, v1\nv_cmp_eq_u32 vcc, 1, v14\nv_mov_b32 v15, 0xffff\nv_mov_b32 v16, 0xffff0000\nv_cndmask_b32 v14, v15, v16, vcc")
    a("v_bfe_u32 v15, v1, 1, 2")
    for j in range(4):
        a(f"v_cmp_eq_u32 vcc, {j}, v15\nv_cndmask_b32 v{32+j}, 0, v14, vcc")
    a("v_and_b32 v15, 1, v15")
    a("v_cmp_eq_u32 vcc, 0, v15\nv_cndmask_b32 v36, 0, v14, vcc\nv_cmp_eq_u32 vcc, 1, v15\nv_cndmask_b32 v37, 0, v14, vcc")
    a("v_cmp_eq_u32 s[92:93], 1, v2\nv_cmp_eq_u32 s[94:95], 2, v2\nv_cmp_eq_u32 s[96:97], 3, v2")
    a("v_lshrrev_b32 v14, 1, v2\nv_lshlrev_b32 v38, 9, v14\nv_lshl_add_u32 v38, v1, 5, v38\nv_and_b32 v14, 1, v2\nv_lshl_add_u32 v38, v14, 4, v38")
    a("v_lshlrev_b32 v39, 4, v0")
    a("v_lshlrev_b32 v9, 2, v0")
    T.wait(x2)
    for k in range(9):
        a(f"v_and_b32 v{73+2*k}, 0xffff0000, v{60+k}\nv_lshlrev_b32 v{72+2*k}, 16, v{60+k}")
    a("v_add_f32 v14, v72, v73")
    a("v_add_f32 v15, v74, v75")
    for k in range(4, 18, 2):
        a(f"v_add_f32 v14, v14, v{72+k}\nv_add_f32 v15, v15, v{73+k}")
    a("v_add_f32 v14, v14, v15")
    row_allreduce("v_add_f32", [14])
    swap_reduce("v_add_f32", [14], [15], 16)
    a(f"v_mul_f32 v14, {float_lit(1/576)}, v14")
    a("v_mov_b32 v29, v14")
    a("v_mov_b32 v15, 0\nv_mov_b32 v16, 0")
    for k in range(0, 18, 2):
        a(f"v_sub_f32 v{72+k}, v{72+k}, v14\nv_sub_f32 v{73+k}, v{73+k}, v14")
        a(f"v_fmac_f32 v15, v{72+k}, v{72+k}\nv_fmac_f32 v16, v{73+k}, v{73+k}")
    a("v_add_f32 v15, v15, v16")
    row_allreduce("v_add_f32", [15])
    swap_reduce("v_add_f32", [15], [16], 16)
    a(f"v_mul_f32 v15, {float_lit(1/576)}, v15")
    bf16r(15, 15)
    a(f"v_add_f32 v15, {float_lit(1e-5)}, v15")
    bf16r(15, 15)
    a("v_sqrt_f32 v15, v15")
    bf16r(15, 15)
    a("v_rcp_f32 v15, v15")
    bf16r(14, 14)
    T.wait(xr[2])
    a(f"s_mul_i32 s8, s3, 768\ns_add_u32 s8, s8, {L_XN}")
    a("v_mul_u32_u24 v16, 384, v4\nv_lshl_add_u32 v16, v5, 2, v16\nv_add_u32 v16, s8, v16")
    for k in range(3):
        r = 69 + k
        a(f"v_lshlrev_b32 v{r}, 16, v{r}\nv_sub_f32 v{r}, v{r}, v14")
        bf16r(r, r)
        a(f"v_mul_f32 v{r}, v{r}, v15\nv_cvt_pk_bf16_f32 v{r}, v{r}, v{r}")
        a(f"ds_write_b32 v16, v{r} offset:{128*k}")
    a("v_lshrrev_b32 v17, 3, v1\nv_mul_u32_u24 v17, 384, v17\nv_lshl_add_u32 v17, v2, 2, v17\ns_lshl_b32 s9, s3, 4\ns_add_u32 s8, s8, s9\nv_add_u32 v17, s8, v17")
    a("s_waitcnt lgkmcnt(0)")
    a("s_add_u32 s78, s78, 1\ns_and_b32 s76, s78, 0x3ff\nv_mov_b32 v30, s76\ns_and_b32 s75, s78, 63")
    if loc:
        a("s_getreg_b32 s72, hwreg(HW_REG_XCC_ID)\ns_and_b32 s72, s72, 15\ns_lshl_b32 s8, s78, 4\ns_or_b32 s72, s72, s8")
        a("s_cmp_lg_u32 s3, 0\ns_cbranch_scc1 L_noxid")
        a(f"s_lshl_b32 s8, s5, 2\ns_add_u32 s8, s8, s99\ns_add_u32 s8, s8, {WS_XID}\nv_mov_b32 v65, s72\nv_mov_b32 v66, 0\ns_mov_b64 exec, 1")
        T.issue("buffer_store_dword v65, v66, s[64:67], s8 offen sc1", cond=True)
        a("s_mov_b64 exec, -1")
        a.label("L_noxid")
    for i in range(5):
        a(f"ds_read_b32 v{60+i}, v17 offset:{64*i}")
    a("s_waitcnt lgkmcnt(0)")
    stamp(1)
    for i in range(5):
        for j in range(4):
            a(f"v_and_b32 v{72+4*i+j}, v{60+i}, v{32+j}")
    for i in range(5):
        T.wait(wq[i])
        c = "0" if i == 0 else "v[96:99]"
        a(f"v_mfma_f32_16x16x32_bf16 v[96:99], v[{72+4*i}:{75+4*i}], v[{40+4*i}:{43+4*i}], {c}")
    for i in range(NK0, NK0 + NKQ):
        kload(i, None)
    a(f"s_lshl_b32 s8, s3, 10\ns_add_u32 s8, s8, {L_RED2}\nv_add_u32 v18, s8, v39")
    a(f"v_add_u32 v19, {L_RED2}, v39")
    a("ds_write_b128 v18, v[96:99]")
    a("s_lshr_b32 s8, s3, 1\ns_lshl_b32 s8, s8, 5\ns_and_b32 s9, s3, 1\ns_lshl_b32 s9, s9, 3\ns_add_u32 s8, s8, s9\ns_mov_b64 s[62:63], 0x00ff00ff\ns_lshl_b64 s[62:63], s[62:63], s8")
    a("s_waitcnt lgkmcnt(0)\ns_barrier")
    quarter_publish(T, 72, 38, "s13", q=True)
    stamp(2)
    for i in range(NK0 + NKQ, 16):
        kload(i, W); extra(W, XK)
    a("s_lshr_b32 s8, s3, 1\ns_lshl_b32 s9, s6, 1\ns_add_u32 s8, s8, s9\ns_lshl_b32 s8, s8, 13")
    a("s_lshr_b32 s9, s7, 3\ns_lshl_b32 s9, s9, 9\ns_add_u32 s8, s8, s9\ns_and_b32 s9, s3, 1\ns_lshl_b32 s9, s9, 8\ns_add_u32 s8, s8, s9")
    a(f"s_add_u32 s8, s8, {WS_QP}\ns_add_u32 s8, s8, s98\ns_add_u32 s9, s8, 4096")
    def qgather(Tk, window=None):
        ids = []
        for r in range(8):
            ids.append(Tk.issue(f"buffer_load_dword v{40+r}, v9, s[64:67], {'s8' if r < 4 else 's9'} offen offset:{(r%4)*1024} sc1"))
        return ids
    if loc:
        a(f"s_add_u32 s10, s99, {WS_XID}\nv_lshlrev_b32 v14, 2, v5")
        T.issue("buffer_load_dword v49, v14, s[64:67], s10 offen sc1")
    qg = qgather(T)
    vops = []
    def vload(i, window):
        if i >= 16: return
        vops.append(T.issue(f"buffer_load_dwordx4 v[{104+4*i}:{107+4*i}], v39, s[44:47], s15 offen offset:{(i%4)*1024} nt", window=window))
        if i % 4 == 3:
            a("s_add_u32 s15, s15, 131072")
        extra(window, XV)
    for i in range(NV0):
        vload(i, max(W, NV0) + 8 if i >= W else W + 8)
    T.wait(qg[-1])
    a("s_branch L_qchk")
    a.label("L_qretry")
    a("s_sleep 1")
    Tr = T.fork(); qgather(Tr); a("s_waitcnt vmcnt(0)")
    a.label("L_qchk")
    untag(list(range(40, 48)), 48, q=True)
    check_retry(48, "L_qretry", 1, q=True)
    if loc:
        a(f"v_cmp_ne_u32 vcc, s72, v49\ns_cmp_eq_u64 vcc, 0\ns_cselect_b32 s72, {LOCOFF}, 0")
    for r in range(0, 8, 2):
        a(f"v_add_f32 v{40+r}, v{40+r}, v{41+r}")
    a("v_add_f32 v40, v40, v42\nv_add_f32 v44, v44, v46\nv_add_f32 v40, v40, v44")
    a("v_cvt_pk_bf16_f32 v40, v40, v40")
    a(f"s_lshl_b32 s8, s3, 7\ns_add_u32 s8, s8, {L_QB}\nv_lshlrev_b32 v14, 1, v0\nv_add_u32 v14, s8, v14")
    a("ds_write_b16 v14, v40")
    a(f"v_and_b32 v14, 1, v1\nv_lshlrev_b32 v14, 8, v14\nv_lshl_add_u32 v14, v2, 4, v14\nv_add_u32 v14, {L_QB}, v14")
    for j in range(4):
        a(f"v_add_u32 v{20+j}, {4*j}, v2\nv_xor_b32 v{20+j}, v{20+j}, v1\nv_lshlrev_b32 v{20+j}, 4, v{20+j}\nv_lshl_add_u32 v{20+j}, v1, 8, v{20+j}\nv_add_u32 v{20+j}, s100, v{20+j}")
    a("s_waitcnt lgkmcnt(0)\ns_barrier")
    stamp(3)
    for j in range(4):
        a(f"ds_read_b128 v[{40+4*j}:{43+4*j}], v14 offset:{64*j}")
    def kread(t):
        base = 56 + 16 * (t % 2)
        for j in range(4):
            a(f"ds_read_b128 v[{base+4*j}:{base+4*j+3}], v{20+j} offset:{4096*t}")
    kread(0); kread(1)
    nv = NV0
    for t in range(4):
        base = 56 + 16 * (t % 2)
        a(f"s_waitcnt lgkmcnt({4 if t < 3 else 0})")
        for j in range(4):
            c = "0" if j == 0 else f"v[{88+4*t}:{91+4*t}]"
            a(f"v_mfma_f32_16x16x32_bf16 v[{88+4*t}:{91+4*t}], v[{40+4*j}:{43+4*j}], v[{base+4*j}:{base+4*j+3}], {c}")
        if t + 2 < 4:
            a("s_nop 1")
            kread(t + 2)
        vload(nv, W); nv += 1
    for h in range(2):
        a(f"v_cndmask_b32 v{24+h}, v{88+h}, v{92+h}, s[92:93]")
    for h in range(2):
        a(f"v_cndmask_b32 v{24+h}, v{24+h}, v{96+h}, s[94:95]")
    for h in range(2):
        a(f"v_cndmask_b32 v{24+h}, v{24+h}, v{100+h}, s[96:97]")
    a("v_cvt_pk_bf16_f32 v26, v24, v25\nv_lshlrev_b32 v24, 16, v26\nv_and_b32 v25, 0xffff0000, v26")
    sc = float_lit(128 ** -0.5)
    a(f"v_mul_f32 v24, {sc}, v24\nv_mul_f32 v25, {sc}, v25")
    a("v_cvt_pk_bf16_f32 v26, v24, v25\nv_lshlrev_b32 v24, 16, v26\nv_and_b32 v25, 0xffff0000, v26")
    a("v_mov_b32 v26, v24\nv_mov_b32 v27, v25")
    row_allreduce("v_max_f32", [26, 27])
    swap_reduce("v_max_f32", [26, 27], [14, 15], 16)
    swap_reduce("v_max_f32", [26, 27], [14, 15], 32)
    a(f"s_lshl_b32 s8, s3, 3\ns_add_u32 s8, s8, {L_MX}\nv_mov_b32 v14, s8\nv_mov_b32 v16, {L_MX}")
    a("ds_write_b64 v14, v[26:27]")
    vload(nv, W); nv += 1
    a("s_waitcnt lgkmcnt(0)\ns_barrier")
    a("ds_read_b128 v[40:43], v16\nds_read_b128 v[44:47], v16 offset:16")
    a("s_waitcnt lgkmcnt(0)")
    a("v_max3_f32 v26, v40, v42, v44\nv_max3_f32 v27, v41, v43, v45\nv_max_f32 v26, v26, v46\nv_max_f32 v27, v27, v47")
    l2e = float_lit(1.4426950408889634)
    a("v_sub_f32 v24, v24, v26\nv_sub_f32 v25, v25, v27")
    a(f"v_mul_f32 v24, {l2e}, v24\nv_mul_f32 v25, {l2e}, v25")
    a("v_exp_f32 v24, v24\nv_exp_f32 v25, v25")
    a(f"s_lshl_b32 s8, s3, 9\ns_add_u32 s8, s8, {L_PT}")
    a("v_and_b32 v15, 3, v0\nv_lshlrev_b32 v15, 6, v15\nv_lshrrev_b32 v17, 2, v0\nv_lshl_add_u32 v15, v17, 2, v15\nv_add_u32 v15, s8, v15")
    a("v_cvt_pk_bf16_f32 v40, v24, v24\nv_cvt_pk_bf16_f32 v41, v25, v25")
    a("ds_write_b32 v15, v40\nds_write_b32 v15, v41 offset:256")
    a("v_lshrrev_b32 v17, 3, v1\nv_lshlrev_b32 v17, 8, v17\nv_lshl_add_u32 v17, v2, 6, v17\nv_add_u32 v17, s8, v17")
    row_allreduce("v_add_f32", [24, 25])
    swap_reduce("v_add_f32", [24, 25], [42, 43], 16)
    swap_reduce("v_add_f32", [24, 25], [42, 43], 32)
    a("ds_write_b64 v14, v[24:25] offset:32")
    a("s_waitcnt lgkmcnt(0)")
    for q in range(4):
        a(f"ds_read_b128 v[{240+4*q}:{243+4*q}], v17 offset:{16*q}")
    vload(nv, W); nv += 1
    a("s_waitcnt lgkmcnt(0)")
    for u in range(16):
        for j in range(4):
            a(f"v_and_b32 v{40+4*u+j}, v{240+u}, v{32+j}")
        if u % 4 == 3 and nv < 16:
            vload(nv, W); nv += 1
    a("s_barrier")
    a("s_cmp_lg_u32 s3, 1\ns_cbranch_scc1 L_noml")
    a("ds_read_b128 v[240:243], v16 offset:32\nds_read_b128 v[244:247], v16 offset:48")
    a("s_waitcnt lgkmcnt(0)")
    a("v_add_f32 v240, v240, v242\nv_add_f32 v244, v244, v246\nv_add_f32 v241, v241, v243\nv_add_f32 v245, v245, v247")
    a("v_add_f32 v249, v240, v244\nv_add_f32 v251, v241, v245\nv_mov_b32 v248, v26\nv_mov_b32 v250, v27")
    tag([248, 249, 250, 251])
    a(f"s_and_b32 s8, s6, 1\ns_lshl_b32 s8, s8, 11\ns_lshl_b32 s9, s7, 7\ns_add_u32 s8, s8, s9\ns_add_u32 s8, s8, {WS_ML}\ns_add_u32 s8, s8, s99")
    a("s_mov_b64 exec, 0xff")
    publish(T, "buffer_store_dwordx4 v[248:251], v39, s[64:67], s8 offen", cond=True, local=True)
    a("s_mov_b64 exec, -1")
    a.label("L_noml")
    stamp(4)
    while nv < 16:
        vload(nv, WVT); nv += 1
    a(f"s_lshl_b32 s13, s6, 14\ns_lshl_b32 s9, s7, 9\ns_add_u32 s13, s13, s9\ns_add_u32 s13, s13, {WS_OPART}\ns_add_u32 s13, s13, s98")
    a("v_lshrrev_b32 v14, 1, v2\nv_mul_u32_u24 v14, 7680, v14\nv_add_u32 v28, v14, v38")
    a("s_cmp_lt_u32 s5, 18\ns_cbranch_scc1 L_F")
    Tbr = T.fork()

    def pv_and_publish(Tk, between, lab, defer=False):
        for u in range(16):
            between(u)
            Tk.wait(vops[u])
            c = "0" if u == 0 else "v[240:243]"
            a(f"v_mfma_f32_16x16x32_bf16 v[240:243], v[{40+4*u}:{43+4*u}], v[{104+4*u}:{107+4*u}], {c}")
        stamp(5)
        a("ds_write_b128 v18, v[240:243]")
        a("s_waitcnt lgkmcnt(0)\ns_barrier")
        d = quarter_publish(Tk, 240, 28, "s13", defer=defer)
        stamp(6)
        return d

    def tile_swap(base, n=6):
        for k in range(n):
            r = base + 8 * k
            a(f"v_swap_b32 v{r+2}, v{r+4}\nv_swap_b32 v{r+3}, v{r+5}")
    ACC = [240, 244, 248, 252, 76, 80]
    def sel_and(st, x0, x1):
        a(f"v_and_b32 v{84+4*st}, v{x0}, v36\nv_and_b32 v{85+4*st}, v{x0}, v37\nv_and_b32 v{86+4*st}, v{x1}, v36\nv_and_b32 v{87+4*st}, v{x1}, v37")
    def stat_fill():
        L = [f"v_sub_f32 v{44+r}, v{60+r}, v29" for r in range(4)]
        L += ["v_add_f32 v52, v44, v45", "v_add_f32 v53, v46, v47", "v_mul_f32 v54, v44, v44", "v_mul_f32 v55, v45, v45",
              "v_fmac_f32 v54, v46, v46", "v_fmac_f32 v55, v47, v47", "v_add_f32 v52, v52, v53", "v_add_f32 v53, v54, v55",
              "v_cmp_gt_u32 vcc, 24, v5", "s_nop 0", "v_cndmask_b32 v52, 0, v52, vcc", "v_cndmask_b32 v53, 0, v53, vcc"]
        for st in (8, 4, 2, 1):
            L += [f"v_add_f32_dpp v52, v52, v52 row_ror:{st} row_mask:0xf bank_mask:0xf", f"v_add_f32_dpp v53, v53, v53 row_ror:{st} row_mask:0xf bank_mask:0xf"]
        L += ["v_mov_b32 v54, v52", "v_mov_b32 v55, v53", "v_permlane16_swap_b32 v52, v54", "v_permlane16_swap_b32 v53, v55", "v_add_f32 v52, v52, v54", "v_add_f32 v53, v53, v55",
              "v_mov_b32 v54, v52", "v_mov_b32 v55, v53", "v_permlane32_swap_b32 v52, v54", "v_permlane32_swap_b32 v53, v55"]
        L += [f"v_bfi_b32 v{r}, s77, v30, v{r}" for r in (52, 53, 54, 55)]
        return L
    def mfma_block(base, nsets, acc, filler=None):
        for k in range(6):
            for st in range(nsets):
                r = base + 24 * st + 4 * k
                c = "0" if st == 0 else f"v[{acc[k]}:{acc[k]+3}]"
                a(f"v_mfma_f32_16x16x32_bf16 v[{acc[k]}:{acc[k]+3}], v[{84+4*st}:{87+4*st}], v[{r}:{r+3}], {c}")
                if filler:
                    for _ in range(2):
                        if filler: a(filler.pop(0))
            if k >= 2:
                kk = k - 2
                a(f"ds_write_b128 v22, v[{acc[kk]}:{acc[kk]+3}] offset:{((kk//2)*16 + (kk%2))*16}")
        while filler: a(filler.pop(0))
        for kk in (4, 5):
            a(f"ds_write_b128 v22, v[{acc[kk]}:{acc[kk]+3}] offset:{((kk//2)*16 + (kk%2))*16}")
    def reduce8_store(sout):
        a("s_mov_b64 exec, 0xffffff")
        a("s_waitcnt lgkmcnt(0)\ns_barrier")
        for p in range(8):
            a(f"ds_read_b128 v[{40+4*p}:{43+4*p}], v23 offset:{1536*p}")
        for p in range(0, 8, 2):
            a(f"s_waitcnt lgkmcnt({6-p})")
            a(f"v_pk_add_f32 v[{40+4*p}:{41+4*p}], v[{40+4*p}:{41+4*p}], v[{44+4*p}:{45+4*p}]\nv_pk_add_f32 v[{42+4*p}:{43+4*p}], v[{42+4*p}:{43+4*p}], v[{46+4*p}:{47+4*p}]")
            if p == 2 or p == 6:
                q = p - 2
                a(f"v_pk_add_f32 v[{40+4*q}:{41+4*q}], v[{40+4*q}:{41+4*q}], v[{48+4*q}:{49+4*q}]\nv_pk_add_f32 v[{42+4*q}:{43+4*q}], v[{42+4*q}:{43+4*q}], v[{50+4*q}:{51+4*q}]")
        a("v_pk_add_f32 v[40:41], v[40:41], v[56:57]\nv_pk_add_f32 v[42:43], v[42:43], v[58:59]")
        tag([40, 41, 42, 43])
        a(f"buffer_store_dwordx4 v[40:43], v39, s[64:67], {sout} offen sc1")
        a("s_mov_b64 exec, -1")
    def red_write_addr():
        a("s_mul_i32 s8, s3, 3072")
        a("v_lshrrev_b32 v14, 3, v1\nv_mul_u32_u24 v22, 1536, v14\nv_and_b32 v14, 1, v2\nv_mul_u32_u24 v14, 768, v14\nv_add_u32 v22, v22, v14\nv_and_b32 v14, 7, v1\nv_lshl_add_u32 v22, v14, 5, v22")
        a("v_add_u32 v22, s8, v22")
        a("v_lshrrev_b32 v14, 3, v1\nv_lshrrev_b32 v15, 1, v2\nv_cmp_eq_u32 vcc, v14, v15\nv_add_u32 v14, 16384, v39\nv_cndmask_b32 v22, v14, v22, vcc")
    def rec_soffset(dst, scol3, sprod, base):
        a(f"s_lshl_b32 s8, {scol3}, 1\ns_and_b32 s9, s3, 1\ns_add_u32 s8, s8, s9\ns_lshl_b32 s8, s8, 18")
        a(f"s_mul_i32 {dst}, {sprod}, 768\ns_add_u32 {dst}, {dst}, s8\ns_lshr_b32 s9, s3, 1\ns_mul_i32 s9, s9, 384\ns_add_u32 {dst}, {dst}, s9\ns_add_u32 {dst}, {dst}, {base}")
    def half8(op, r):
        a(f"{op}_dpp v{r}, v{r}, v{r} quad_perm:[1,0,3,2] row_mask:0xf bank_mask:0xf")
        a(f"{op}_dpp v{r}, v{r}, v{r} quad_perm:[2,3,0,1] row_mask:0xf bank_mask:0xf")
        a(f"{op}_dpp v{r}, v{r}, v{r} row_half_mirror row_mask:0xf bank_mask:0xf")

    T = Tbr.fork()
    a("s_mov_b32 s10, s74\ns_mov_b32 s11, s73")
    a(f"s_bfe_u32 s8, s11, 0x10001\ns_lshl_b32 s8, s8, 11\ns_add_u32 s86, s8, {WS_ML}\ns_add_u32 s86, s86, s99\ns_add_u32 s86, s86, s72")
    a("v_lshlrev_b32 v25, 7, v1")
    nwo = len(woo)
    for k in range(nwo, len(wol)):
        T.issue(wol[k], window=WE + W)
    a("s_sub_u32 s48, s10, 5\ns_and_b32 s8, s48, 15\ns_mul_i32 s87, s8, 11\ns_lshr_b32 s87, s87, 5\ns_mul_i32 s9, s87, 3\ns_sub_u32 s49, s8, s9")
    a("s_mul_i32 s12, s4, 3\ns_add_u32 s12, s12, s87")
    a("s_mul_i32 s8, s12, 192\ns_mul_i32 s9, s3, 48\ns_add_u32 s8, s8, s9\ns_mul_i32 s8, s8, 1152\ns_mul_i32 s9, s49, 384\ns_add_u32 s50, s8, s9")
    a(f"s_add_u32 s51, s50, {16*1152}\ns_add_u32 s84, s50, {32*1152}")
    srd(44, 32, 4608 * 576 * 2)
    a("s_cmp_lt_u32 s10, 5\ns_cselect_b32 s50, 0x7fff0000, s50\ns_cselect_b32 s51, 0x7fff0000, s51\ns_cselect_b32 s84, 0x7fff0000, s84")
    w2l = tile_loads(104, 44, ["s50", "s51", "s84"])
    a(f"s_mul_i32 s100, s3, {NL*2048}\ns_add_u32 s100, s100, 20480")
    for k in range(2 * NL):
        st, cb, rr = k // 6, (k % 6) // 2, k % 2
        imm = rr * 1152 + cb * 128
        a(f"s_add_u32 s101, s100, {1024*k - imm}\ns_mov_b32 m0, s101")
        T.issue(f"buffer_load_dwordx4 v236, s[44:47], {['s50','s51','s84'][st]} offen offset:{imm} nt lds", window=WE + W)
    a("v_bfe_u32 v14, v1, 2, 1\nv_lshrrev_b32 v15, 3, v1")
    a("v_lshlrev_b32 v21, 5, v14\nv_lshl_add_u32 v21, v15, 3, v21\nv_lshl_add_u32 v21, v2, 1, v21\nv_lshlrev_b32 v21, 2, v21")
    a("v_lshlrev_b32 v3, 4, v14\nv_lshl_add_u32 v3, v15, 1, v3\nv_lshrrev_b32 v14, 1, v2\nv_add_u32 v3, v3, v14\nv_and_b32 v14, 1, v2\nv_lshl_add_u32 v3, v14, 5, v3\nv_lshlrev_b32 v3, 2, v3")
    red_write_addr()
    a("s_mul_i32 s8, s3, 384\nv_add_u32 v23, s8, v39")
    rec_soffset("s85", "s80", "s11", WS_Y)
    a(f"s_lshl_b32 s8, s3, 6\ns_add_u32 s8, s8, {L_WT}\nv_lshlrev_b32 v6, 2, v1\nv_add_u32 v6, s8, v6")
    a("v_lshlrev_b32 v7, 5, v4\nv_add_u32 v7, s8, v7")
    a(f"s_lshl_b32 s83, s11, 13\ns_lshl_b32 s8, s3, 7\ns_add_u32 s83, s83, s8\ns_add_u32 s83, s83, {WS_OPART}\ns_add_u32 s83, s83, s98\ns_add_u32 s83, s83, s72")
    a("v_lshlrev_b32 v26, 12, v4\nv_lshl_add_u32 v26, v5, 2, v26")
    rec_soffset("s40", "s49", "s12", WS_OP)
    a("s_add_u32 s12, s99, s72")
    a(f"s_lshl_b32 s41, s87, 10\ns_add_u32 s41, s41, s12\ns_add_u32 s41, s41, {WS_ST}")
    a("v_and_b32 v10, 7, v0\nv_lshlrev_b32 v10, 7, v10")
    a(f"s_mul_i32 s9, s3, 192\ns_add_u32 s12, s12, s9\ns_mul_i32 s56, s87, {6*3072}\ns_add_u32 s56, s56, s12\ns_add_u32 s56, s56, {WS_G}")
    a("s_add_u32 s57, s56, 6144\ns_add_u32 s58, s56, 12288")
    a(f"s_mul_i32 s88, s87, {6*1536}\ns_add_u32 s88, s88, s12\ns_add_u32 s88, s88, {WS_S}\ns_add_u32 s89, s88, 4608")
    a("v_mul_u32_u24 v11, 768, v2\nv_lshl_add_u32 v11, v1, 4, v11")
    a("v_mul_u32_u24 v12, 768, v4\nv_lshl_add_u32 v12, v1, 4, v12")
    a("v_and_b32 v14, 1, v2\nv_cmp_eq_u32 s[42:43], 1, v14")
    a("v_readlane_b32 s8, v29, 0\nv_readlane_b32 s9, v29, 32\nv_mov_b32 v13, s8\nv_mov_b32 v14, s9\nv_cndmask_b32 v13, v13, v14, s[42:43]")
    a("s_mov_b64 s[96:97], s[62:63]")
    dst = pv_and_publish(T, lambda u: None, "L_noopE", defer=True)
    def deferred():
        a(f"s_mov_b64 exec, s[96:97]\n{dst}\ns_mov_b64 exec, -1")
    a("s_cmp_ge_u32 s10, 12\ns_cbranch_scc1 L_E_D")
    gML = Gather([("buffer_load_dwordx4 v[232:235], v25, s[64:67], s86 offen sc1", [232, 233, 234, 235])], tmp=76)
    gO = Gather([(f"buffer_load_dword v{64+s_}, v26, s[64:67], s83 offen offset:{512*s_} sc1", [64+s_]) for s_ in range(8)], tmp=76)
    a("s_cmp_lg_u32 s72, 0\ns_cbranch_scc1 L_dfr1")
    deferred()
    a.label("L_dfr1")
    gML.issue(); gO.issue()
    stamp(16)
    if not woearly: a("s_waitcnt vmcnt(9)")
    tile_swap(168)
    a("s_waitcnt vmcnt(8)")
    stamp(18)
    gML.loop()
    a("s_bitcmp1_b32 s11, 0\ns_cselect_b64 vcc, -1, 0")
    a("v_cndmask_b32 v72, v232, v234, vcc\nv_cndmask_b32 v73, v233, v235, vcc")
    a("v_mov_b32 v74, v72")
    half8("v_max_f32", 74)
    a(f"v_sub_f32 v72, v72, v74\nv_mul_f32 v72, {l2e}, v72\nv_exp_f32 v72, v72")
    a("v_mul_f32 v73, v73, v72")
    half8("v_add_f32", 73)
    a("v_rcp_f32 v73, v73")
    a("v_mul_f32 v72, v72, v73")
    a("ds_write_b32 v6, v72")
    a("s_waitcnt lgkmcnt(0)")
    a("ds_read_b128 v[88:91], v7\nds_read_b128 v[92:95], v7 offset:16")
    stamp(7)
    a("s_waitcnt vmcnt(0)")
    selloop(gO) if sel & 1 else gO.loop()
    stamp(8)
    a("s_waitcnt lgkmcnt(0)")
    a("v_mul_f32 v100, v64, v88\nv_mul_f32 v101, v65, v89")
    for s_ in range(2, 8, 2):
        a(f"v_fmac_f32 v100, v{64+s_}, v{88+s_}\nv_fmac_f32 v101, v{65+s_}, v{89+s_}")
    a("v_add_f32 v100, v100, v101\nv_cvt_pk_bf16_f32 v100, v100, v100")
    for k, off in enumerate([0, 4, 64, 68]):
        a(f"ds_bpermute_b32 v{96+k}, v21, v100 offset:{off}")
    a("s_cmp_eq_u32 s72, 0\ns_cbranch_scc1 L_dfr2")
    deferred()
    a.label("L_dfr2")
    for st in range(2):
        a(f"s_waitcnt lgkmcnt({2-2*st})")
        sel_and(st, 96+2*st, 97+2*st)
    mfma_block(168, 2, ACC)
    reduce8_store("s85")
    stamp(9)
    a("s_cmp_lt_u32 s10, 5\ns_cbranch_scc1 L_fin")
    a("s_branch L_D2")
    a.label("L_E_D")
    deferred()
    a.label("L_D2")
    T.ops = []
    for ins in w2l[2*NL:]:
        a(ins)
    a(f"s_waitcnt vmcnt({18-2*NL})")
    a("v_add_u32 v14, s100, v39")
    for k in range(NL):
        a(f"ds_read2_b64 v[{104+8*k}:{107+8*k}], v14 offset0:0 offset1:128\nds_read2_b64 v[{108+8*k}:{111+8*k}], v14 offset0:1 offset1:129")
        if k < NL - 1: a("v_add_u32 v14, 2048, v14")
    M12 = (0x0fff0fff, 0x0fff0fff)
    gS = Gather([(f"buffer_load_dwordx4 v[{176+4*rg}:{179+4*rg}], v12, s[64:67], s{88+rg//3} offen offset:{1536*(rg%3)} sc1", list(range(176+4*rg, 180+4*rg))) for rg in range(6)], base=[M12]*6, tmp=76)
    gG = Gather([("buffer_load_dwordx4 v[224:227], v10, s[64:67], s41 offen sc1", [224, 225, 226, 227])] +
                [(f"buffer_load_dwordx4 v[{200+4*rg}:{203+4*rg}], v11, s[64:67], s{56+rg//2} offen offset:{3072*(rg%2)} sc1", list(range(200+4*rg, 204+4*rg))) for rg in range(6)],
                base=[(0x3f3f3f3f, 0x3f3f3f3f)] + [M12]*6, tmp=76)
    a("v_mov_b32 v224, 0\nv_mov_b32 v225, 0\nv_mov_b32 v226, 0\nv_mov_b32 v227, 0")
    if dj:
        a(f"s_waitcnt vmcnt({dj})")
        gS.issue(); gG.issue()
        a("s_barrier")
        a("s_waitcnt vmcnt(13)")
        stamp(10)
        tile_swap(104 + 8*NL, 9 - NL)
        a("s_waitcnt vmcnt(7)")
        gS.loop()
    else:
        a("s_waitcnt vmcnt(0)")
        gS.issue()
        a("s_barrier")
        stamp(10)
        tile_swap(104 + 8*NL, 9 - NL)
        a("s_waitcnt vmcnt(0)")
        gS.loop()
        gG.issue()
    def sum6(b0, d):
        L = []
        for h in (0, 2):
            L += [f"v_pk_add_f32 v[{b0+h}:{b0+h+1}], v[{b0+h}:{b0+h+1}], v[{b0+4+h}:{b0+5+h}]",
                  f"v_pk_add_f32 v[{b0+8+h}:{b0+9+h}], v[{b0+8+h}:{b0+9+h}], v[{b0+12+h}:{b0+13+h}]",
                  f"v_pk_add_f32 v[{b0+16+h}:{b0+17+h}], v[{b0+16+h}:{b0+17+h}], v[{b0+20+h}:{b0+21+h}]"]
        for h in (0, 2):
            L += [f"v_pk_add_f32 v[{b0+h}:{b0+h+1}], v[{b0+h}:{b0+h+1}], v[{b0+8+h}:{b0+9+h}]"]
        for h in (0, 2):
            L += [f"v_pk_add_f32 v[{d+h}:{d+h+1}], v[{b0+h}:{b0+h+1}], v[{b0+16+h}:{b0+17+h}]"]
        return L
    for ins in sum6(176, 68): a(ins)
    a("v_permlane32_swap_b32 v68, v70\nv_permlane32_swap_b32 v69, v71")
    stamp(11); cnt_stamp(24)
    a("s_waitcnt vmcnt(0)")
    stamp(20)
    selloop(gG) if sel & 4 else gG.loop()
    stamp(12); cnt_stamp(25)
    sq = sum6(200, 64)
    a("v_cndmask_b32 v72, v224, v226, s[42:43]\nv_cndmask_b32 v73, v225, v227, s[42:43]")
    for i, stp in enumerate((4, 2, 1)):
        a(sq[2*i]); a(sq[2*i+1])
        a(f"v_add_f32_dpp v72, v72, v72 row_ror:{stp} row_mask:0xf bank_mask:0xf\nv_add_f32_dpp v73, v73, v73 row_ror:{stp} row_mask:0xf bank_mask:0xf")
    a(sq[6]); a(sq[7])
    a(f"v_mul_f32 v72, {float_lit(1/576)}, v72\nv_mul_f32 v73, {float_lit(1/576)}, v73")
    a(sq[8]); a(sq[9])
    a("v_fma_f32 v73, -v72, v72, v73\nv_add_f32 v72, v72, v13\nv_max_f32 v73, 0, v73")
    a("v_permlane32_swap_b32 v64, v66\nv_permlane32_swap_b32 v65, v67")
    a("v_cvt_pk_bf16_f32 v74, v73, v72\nv_lshlrev_b32 v73, 16, v74\nv_and_b32 v72, 0xffff0000, v74")
    a(f"v_add_f32 v73, {float_lit(1e-5)}, v73")
    bf16r(73, 73)
    a("v_sqrt_f32 v73, v73")
    for r in range(4):
        a(f"v_fma_f32 v{64+r}, -v72, v{68+r}, v{64+r}")
    bf16r(73, 73)
    a("v_rcp_f32 v73, v73")
    for r in range(4):
        a(f"v_mul_f32 v{64+r}, v{64+r}, v73")
    a("v_cvt_pk_bf16_f32 v68, v64, v65\nv_cvt_pk_bf16_f32 v69, v66, v67")
    a("v_lshlrev_b32 v64, 16, v68\nv_and_b32 v65, 0xffff0000, v68\nv_lshlrev_b32 v66, 16, v69\nv_and_b32 v67, 0xffff0000, v69")
    nl = float_lit(-1.4426950408889634)
    a(f"v_mul_f32 v68, {nl}, v64\nv_mul_f32 v69, {nl}, v65\nv_exp_f32 v68, v68\nv_exp_f32 v69, v69")
    a("v_add_f32 v68, 1.0, v68\nv_add_f32 v69, 1.0, v69\nv_rcp_f32 v68, v68\nv_rcp_f32 v69, v69")
    a("v_mul_f32 v64, v64, v68\nv_mul_f32 v65, v65, v69")
    a("v_cvt_pk_bf16_f32 v68, v64, v65\nv_lshlrev_b32 v64, 16, v68\nv_and_b32 v65, 0xffff0000, v68")
    a("v_mul_f32 v64, v64, v66\nv_mul_f32 v65, v65, v67")
    a("v_cvt_pk_bf16_f32 v102, v64, v64\nv_cvt_pk_bf16_f32 v103, v65, v65")
    for st in range(3):
        a(f"ds_bpermute_b32 v{96+2*st}, v3, v102 offset:{16*st}\nds_bpermute_b32 v{97+2*st}, v3, v103 offset:{16*st}")
    for st in range(3):
        a(f"s_waitcnt lgkmcnt({4-2*st})")
        sel_and(st, 96+2*st, 97+2*st)
    mfma_block(104, 3, ACC)
    reduce8_store("s40")
    stamp(13)
    a("s_branch L_fin")

    a.label("L_F")
    T = Tbr.fork()
    a("s_mul_i32 s10, s5, 11\ns_lshr_b32 s10, s10, 5\ns_cmp_eq_u32 s5, 17\ns_cselect_b32 s10, 5, s10\ns_cmp_eq_u32 s5, 14\ns_cselect_b32 s10, 4, s10")
    a("s_mul_i32 s8, s10, 3\ns_sub_u32 s11, s5, s8")
    a("s_cmp_ge_u32 s3, 2\ns_cselect_b32 s56, s30, s28\ns_cselect_b32 s57, s31, s29\ns_and_b32 s57, s57, 0xffff")
    a(f"s_mov_b32 s58, {576*4608*2}\ns_mov_b32 s59, 0x00020000")
    a("v_lshrrev_b32 v20, 3, v1\nv_lshlrev_b32 v20, 3, v20\nv_lshl_add_u32 v20, v2, 1, v20\nv_mul_u32_u24 v20, 9216, v20\nv_and_b32 v14, 7, v1\nv_lshl_add_u32 v20, v14, 4, v20")
    a("s_mul_i32 s12, s4, 3\ns_add_u32 s12, s12, s11")
    a("s_mul_i32 s8, s10, 96\ns_and_b32 s9, s3, 1\ns_mul_i32 s9, s9, 48\ns_add_u32 s8, s8, s9\ns_mul_i32 s81, s8, 9216\ns_mul_i32 s9, s12, 384\ns_add_u32 s81, s81, s9")
    gl = []
    def gload(t, window):
        st, rr, cb = t // 6, (t % 6) // 3, t % 3
        r = 168 + 24 * st + 8 * cb + 4 * rr
        gl.append(T.issue(f"buffer_load_dwordx4 v[{r}:{r+3}], v20, s[56:59], s81 offen offset:{128*cb} nt", window=window))
        if cb == 2: a(f"s_add_u32 s81, s81, {9216 if rr == 0 else 15*9216}")
    a("v_mul_u32_u24 v21, 1152, v4\nv_lshl_add_u32 v21, v5, 3, v21\ns_mul_i32 s8, s10, 192")
    xres = T.issue("buffer_load_dwordx2 v[26:27], v21, s[68:71], s8 offen")
    a(f"s_lshl_b32 s80, s10, 18\ns_mul_i32 s82, s3, {8*768}\ns_add_u32 s82, s82, s80\ns_add_u32 s82, s82, {WS_Y}\ns_add_u32 s83, s82, 3072")
    a("v_mul_u32_u24 v21, 384, v4\nv_lshl_add_u32 v21, v5, 4, v21")
    red_write_addr()
    a(f"s_lshl_b32 s8, s3, 10\ns_add_u32 s8, s8, {L_RED2}\nv_add_u32 v16, s8, v39")
    a("s_lshr_b32 s8, s3, 1\ns_mul_i32 s8, s8, 6144\ns_and_b32 s9, s3, 1\ns_mul_i32 s9, s9, 768\ns_add_u32 s8, s8, s9\nv_add_u32 v23, s8, v39")
    a(f"s_mul_i32 s84, s3, 768\ns_add_u32 s84, s84, {L_XT}\nv_add_u32 v17, s84, v21")
    a("v_bfe_u32 v14, v1, 2, 1\nv_mul_u32_u24 v24, 384, v14\nv_lshrrev_b32 v14, 3, v1\nv_lshl_add_u32 v24, v14, 5, v24\nv_lshl_add_u32 v24, v2, 3, v24")
    a("s_and_b32 s9, s3, 1\ns_mul_i32 s9, s9, 192\ns_add_u32 s9, s9, s84\nv_add_u32 v24, s9, v24")
    a(f"v_add_u32 v25, {L_H}, v21")
    a("s_mul_i32 s8, s11, 6\ns_add_u32 s8, s8, s10")
    a(f"s_mul_i32 s85, s8, 3072\ns_mul_i32 s9, s3, 768\ns_add_u32 s85, s85, s9\ns_add_u32 s85, s85, s99\ns_add_u32 s85, s85, {WS_G}")
    a(f"s_mul_i32 s87, s8, 1536\ns_lshr_b32 s9, s3, 1\ns_mul_i32 s9, s9, 768\ns_add_u32 s87, s87, s9\ns_add_u32 s87, s87, s99\ns_add_u32 s87, s87, {WS_S}")
    a(f"s_lshl_b32 s86, s11, 10\ns_lshl_b32 s9, s10, 7\ns_add_u32 s86, s86, s9\ns_add_u32 s86, s86, s99\ns_add_u32 s86, s86, {WS_ST}")
    a("v_and_b32 v10, 0x3f803f80, v36\nv_and_b32 v11, 0x3f803f80, v37\nv_mov_b32 v12, v10\nv_mov_b32 v13, v11")
    srd(72, 34, 2304)
    a(f"s_lshl_b32 s9, s12, 5\ns_add_u32 s40, s80, s9\ns_add_u32 s40, s40, {WS_OP}\ns_add_u32 s41, s40, {8*768}\ns_add_u32 s42, s40, {16*768}")
    a("v_lshrrev_b32 v14, 3, v0\nv_mul_u32_u24 v7, 768, v14\nv_and_b32 v14, 7, v0\nv_lshl_add_u32 v7, v14, 2, v7")
    a(f"s_add_u32 s8, s9, {L_H}\nv_lshlrev_b32 v8, 2, v14\nv_add_u32 v8, s8, v8")
    a("s_cmp_ge_u32 s12, 12\ns_cselect_b32 s43, 480, 0\ns_mul_i32 s8, s10, 96\ns_add_u32 s43, s43, s8\ns_lshl_b32 s8, s12, 3\ns_add_u32 s43, s43, s8\ns_lshl_b32 s43, s43, 1")
    a("v_lshlrev_b32 v3, 1, v14")
    ng = [0]
    def betweenF(u):
        if u >= 16 - WFP and ng[0] < 18:
            gload(ng[0], None); ng[0] += 1
    pv_and_publish(T, betweenF, "L_noopF")
    while ng[0] < 18:
        gload(ng[0], WF); ng[0] += 1
    stamp(7)
    M24 = (0xffffff, 0xffffff)
    gY = Gather([(f"buffer_load_dwordx4 v[{104+4*k}:{107+4*k}], v21, s[64:67], {'s82' if k < 4 else 's83'} offen offset:{768*(k%4)} sc1", list(range(104+4*k, 108+4*k))) for k in range(8)],
                base=[M24] * 8, tmp=76)
    T.wait(xres)
    a("v_lshlrev_b32 v100, 16, v26\nv_and_b32 v101, 0xffff0000, v26\nv_lshlrev_b32 v102, 16, v27\nv_and_b32 v103, 0xffff0000, v27")
    SACC = [40, 44, 48, 52, 56, 60]
    for st in range(3):
        for cb in range(3):
            if st == 2 and cb == YCB: gY.issue(T)
            T.wait(gl[6*st + 3 + cb])
            r = 168 + 24 * st + 8 * cb
            a(f"v_swap_b32 v{r+2}, v{r+4}\nv_swap_b32 v{r+3}, v{r+5}")
            for hf in range(2):
                k = 2 * cb + hf
                c = "0" if st == 0 else f"v[{SACC[k]}:{SACC[k]+3}]"
                a(f"v_mfma_f32_16x16x32_bf16 v[{SACC[k]}:{SACC[k]+3}], v[10:13], v[{r+4*hf}:{r+4*hf+3}], {c}")
    if YCB >= 3: gY.issue(T)
    stamp(17)
    for k in range(6):
        a(f"ds_write_b128 v22, v[{SACC[k]}:{SACC[k]+3}] offset:{((k//2)*16 + (k%2))*16}")
    def reduce4(r):
        a("s_mov_b32 exec_lo, -1\ns_mov_b32 exec_hi, 0xffff")
        for p in range(4):
            a(f"ds_read_b128 v[{r+4*p}:{r+4*p+3}], v23 offset:{1536*p}")
        a("s_waitcnt lgkmcnt(2)")
        a(f"v_pk_add_f32 v[{r}:{r+1}], v[{r}:{r+1}], v[{r+4}:{r+5}]\nv_pk_add_f32 v[{r+2}:{r+3}], v[{r+2}:{r+3}], v[{r+6}:{r+7}]")
        a("s_waitcnt lgkmcnt(0)")
        a(f"v_pk_add_f32 v[{r+8}:{r+9}], v[{r+8}:{r+9}], v[{r+12}:{r+13}]\nv_pk_add_f32 v[{r+10}:{r+11}], v[{r+10}:{r+11}], v[{r+14}:{r+15}]")
        a(f"v_pk_add_f32 v[{r}:{r+1}], v[{r}:{r+1}], v[{r+8}:{r+9}]\nv_pk_add_f32 v[{r+2}:{r+3}], v[{r+2}:{r+3}], v[{r+10}:{r+11}]")
        tag([r, r+1, r+2, r+3])
    a("s_waitcnt lgkmcnt(0)\ns_barrier")
    a("s_bitcmp1_b32 s3, 0\ns_cbranch_scc1 L_noS")
    reduce4(136)
    a(f"s_add_u32 s101, s87, {LOCOFF}\nbuffer_store_dwordx4 v[136:139], v39, s[64:67], s101 offen")
    a("s_mov_b64 exec, -1")
    a("s_waitcnt vmcnt(1)\ns_branch L_S1")
    a.label("L_noS")
    a("s_waitcnt vmcnt(0)")
    a.label("L_S1")
    T.ops = []
    selloop(gY) if sel & 2 else gY.loop()
    stamp(8)
    for k in range(0, 8, 2):
        a(f"v_pk_add_f32 v[{104+4*k}:{105+4*k}], v[{104+4*k}:{105+4*k}], v[{108+4*k}:{109+4*k}]\nv_pk_add_f32 v[{106+4*k}:{107+4*k}], v[{106+4*k}:{107+4*k}], v[{110+4*k}:{111+4*k}]")
    for k in (0, 4):
        a(f"v_pk_add_f32 v[{104+4*k}:{105+4*k}], v[{104+4*k}:{105+4*k}], v[{112+4*k}:{113+4*k}]\nv_pk_add_f32 v[{106+4*k}:{107+4*k}], v[{106+4*k}:{107+4*k}], v[{114+4*k}:{115+4*k}]")
    a("v_pk_add_f32 v[40:41], v[104:105], v[120:121]\nv_pk_add_f32 v[42:43], v[106:107], v[122:123]")
    a("ds_write_b128 v16, v[40:43]")
    a("s_waitcnt lgkmcnt(0)\ns_barrier")
    stamp(18)
    for k in range(4):
        a(f"ds_read_b128 v[{40+4*k}:{43+4*k}], v19 offset:{1024*k}")
    a("s_waitcnt lgkmcnt(2)")
    a("v_pk_add_f32 v[40:41], v[40:41], v[44:45]\nv_pk_add_f32 v[42:43], v[42:43], v[46:47]")
    a("s_waitcnt lgkmcnt(0)")
    a("v_pk_add_f32 v[48:49], v[48:49], v[52:53]\nv_pk_add_f32 v[50:51], v[50:51], v[54:55]")
    a("v_pk_add_f32 v[40:41], v[40:41], v[48:49]\nv_pk_add_f32 v[42:43], v[42:43], v[50:51]")
    a("v_cvt_pk_bf16_f32 v44, v40, v41\nv_cvt_pk_bf16_f32 v45, v42, v43")
    a("v_lshlrev_b32 v40, 16, v44\nv_and_b32 v41, 0xffff0000, v44\nv_lshlrev_b32 v42, 16, v45\nv_and_b32 v43, 0xffff0000, v45")
    a("v_pk_add_f32 v[40:41], v[40:41], v[100:101]\nv_pk_add_f32 v[42:43], v[42:43], v[102:103]")
    for r in range(4):
        a(f"v_cvt_pk_bf16_f32 v{48+r}, v{40+r}, v{40+r}")
    a("s_mov_b32 exec_lo, 0xffffff\ns_mov_b32 exec_hi, 0xffffff")
    a("ds_write_b128 v17, v[48:51]")
    a("s_mov_b64 exec, -1")
    a("s_waitcnt lgkmcnt(0)")
    for st in range(3):
        a(f"ds_read_b64 v[{96+2*st}:{97+2*st}], v24 offset:{64*st}")
    for r in range(4):
        a(f"v_and_b32 v{60+r}, 0xffff0000, v{48+r}")
    for st in range(3):
        a(f"s_waitcnt lgkmcnt({2-st})")
        sel_and(st, 96+2*st, 97+2*st)
    stamp(19)
    def stats_block():
        a("s_cmp_lg_u32 s3, 3\ns_cbranch_scc1 L_nost")
        for r in range(4):
            a(f"v_sub_f32 v{44+r}, v{60+r}, v29")
        a("v_add_f32 v52, v44, v45\nv_add_f32 v53, v46, v47\nv_mul_f32 v54, v44, v44\nv_mul_f32 v55, v45, v45")
        a("v_fmac_f32 v54, v46, v46\nv_fmac_f32 v55, v47, v47\nv_add_f32 v52, v52, v53\nv_add_f32 v53, v54, v55")
        a("v_cmp_gt_u32 vcc, 24, v5\nv_cndmask_b32 v52, 0, v52, vcc\nv_cndmask_b32 v53, 0, v53, vcc")
        row_allreduce("v_add_f32", [52, 53])
        swap_reduce("v_add_f32", [52, 53], [54, 55], 16)
        a("v_mov_b32 v54, v52\nv_mov_b32 v55, v53")
        a("v_permlane32_swap_b32 v52, v54\nv_permlane32_swap_b32 v53, v55")
        tag([52, 53, 54, 55])
        a("s_mov_b64 exec, 0xff")
        a(f"s_add_u32 s101, s86, {LOCOFF}\nbuffer_store_dwordx4 v[52:55], v39, s[64:67], s101 offen\nbuffer_store_dwordx4 v[52:55], v39, s[64:67], s86 offen sc1")
        a("s_mov_b64 exec, -1")
        a.label("L_nost")
    mfma_block(168, 3, ACC, filler=stat_fill() if stearly == 2 else None)
    if stearly == 1: stats_block()
    if stearly == 2:
        a("s_cmp_lg_u32 s3, 3\ns_cbranch_scc1 L_nost\ns_mov_b64 exec, 0xff")
        a(f"s_add_u32 s101, s86, {LOCOFF}\nbuffer_store_dwordx4 v[52:55], v39, s[64:67], s101 offen\nbuffer_store_dwordx4 v[52:55], v39, s[64:67], s86 offen sc1")
        a("s_mov_b64 exec, -1")
        a.label("L_nost")
    a("s_waitcnt lgkmcnt(0)\ns_barrier")
    reduce4(104)
    a(f"s_add_u32 s101, s85, {LOCOFF}\nbuffer_store_dwordx4 v[104:107], v39, s[64:67], s101 offen")
    a("s_mov_b64 exec, -1")
    stamp(9)
    if not stearly: stats_block()
    a("s_mov_b32 exec_lo, -1\ns_mov_b32 exec_hi, 0xffff")
    a("buffer_store_dwordx4 v[104:107], v39, s[64:67], s85 offen sc1")
    a("s_bitcmp1_b32 s3, 0\ns_cbranch_scc1 L_fin")
    a("buffer_store_dwordx4 v[136:139], v39, s[64:67], s87 offen sc1")
    a("s_cmp_lg_u32 s3, 0\ns_cbranch_scc1 L_fin")
    a("s_mov_b32 exec_lo, 0xffffff\ns_mov_b32 exec_hi, 0xffffff")
    a("ds_write_b128 v25, v[60:63]")
    a("s_mov_b64 exec, -1")
    a("s_waitcnt lgkmcnt(0)\nds_read_b32 v64, v8")
    gR = Gather([(f"buffer_load_dword v{48+i}, v7, s[64:67], s{40+i} offen sc1", [48+i]) for i in range(3)], tmp=76)
    gR.issue()
    a("s_waitcnt vmcnt(0)")
    selloop(gR) if sel & 8 else gR.loop()
    stamp(12)
    a("v_add_f32 v40, v48, v49\nv_add_f32 v40, v40, v50")
    row_allreduce("v_add_f32", [40], steps=(8,))
    swap_reduce("v_add_f32", [40], [41], 16)
    swap_reduce("v_add_f32", [40], [41], 32)
    bf16r(40, 40)
    a("s_waitcnt lgkmcnt(0)")
    a("v_add_f32 v40, v40, v64\nv_cvt_pk_bf16_f32 v40, v40, v40")
    a("s_mov_b64 exec, 0xff")
    a("buffer_store_short v40, v3, s[72:75], s43 offen")
    a("s_cmp_lg_u32 s2, 0\ns_cbranch_scc1 L_fin")
    a("s_mov_b64 exec, 1\nv_mov_b32 v41, s78\nv_mov_b32 v42, 0")
    a("buffer_store_dword v41, v42, s[64:67], 0 offen sc1")
    a.label("L_fin")
    if dbgtime:
        a("s_mov_b64 exec, 1\ns_memrealtime s[16:17]\ns_waitcnt lgkmcnt(0)")
        a("v_mov_b32 v1, 0\nv_mov_b32 v2, s16\nv_not_b32 v3, v31\nv_sub_u32 v4, v2, v31")
        a("global_atomic_umax v1, v2, s[90:91]\nglobal_atomic_umax v1, v3, s[90:91] offset:4\nglobal_atomic_umax v1, v4, s[90:91] offset:8")
        a("global_atomic_umax v1, v31, s[90:91] offset:12")
    if stamps:
        a("s_mov_b64 exec, -1")
        stamp(14)
        a(f"v_writelane_b32 v31, s79, 15")
        a(f"s_lshl_b32 s8, s2, 2\ns_add_u32 s8, s8, s3\ns_lshl_b32 s8, s8, 8\ns_add_u32 s8, s8, {WS_STAMP}")
        a("buffer_store_dword v31, v9, s[64:67], s8 offen")
    a.label("L_end")
    a("s_endpgm")
    L, n = hazard.fix(a.L)
    if ldnt: L = [l.replace(" sc1", " sc1 nt") if "buffer_load" in l else l for l in L]
    if stnt: L = [l.replace(" sc1", " sc1 nt") if "buffer_store" in l else l for l in L]
    body = "\n".join(L) + "\n"
    if codepf:
        body = body.replace("    .CODEPF_GUARD\n",
            "    s_cmp_ge_u32 s8, (L_end - " + NAME + "_kernel)\n    s_cbranch_scc1 L_nopf\n"
            "    v_add_u32 v31, s8, v3\n" if False else
            "    v_add_u32 v4, s8, v3\n"
            "    v_cmp_gt_u32 vcc, (L_end - " + NAME + "_kernel - 64), v4\n"
            "    s_and_saveexec_b64 s[100:101], vcc\n"
            "    s_cbranch_execz L_nopf\n"
            "    global_load_dword v255, v3, s[98:99]\n"
            "L_nopf:\n"
            "    s_mov_b64 exec, -1\n")
    lds = max(L_END, lds_force)
    return wrap(body, 256, 256, lds, 304 if w2early else 256, accum=256)

import struct
def float_lit(x):
    return "0x%08x" % struct.unpack("<I", struct.pack("<f", x))[0]

if __name__ == "__main__":
    out = sys.argv[1] if len(sys.argv) > 1 else "k.s"
    kw = {}
    for arg in sys.argv[2:]:
        k, v = arg.split("=")
        kw[k] = int(v)
    open(out, "w").write(gen(**kw))
    print("wrote", out, "LDS", L_END, "WS_END", hex(WS_END))
```

```python
import sys, copy
from asmlib import *
import hazard

WS_EPOCH = 0
WS0 = 0x40000
XR = 0x40000
WS_QP = WS0
WS_OPART = WS0 + 0x8000
WS_ML = WS0 + 0x10000
WS_Y = WS0 + 0x11000
WS_OP = WS0 + 0x17000
WS_G = WS0 + 0x1E000
WS_S = WS0 + 0x2C000
WS_ST = WS0 + 0x33000
WS_XID = WS0 + 0x3E000
LOCOFF = 8 * XR
WS_END = WS0 + 16 * XR
WS_STAMP = 0x8000000

L_K = 0
L_RED = 0
L_RED2 = 65536
L_XN = L_RED2 + 4096
L_QB = L_XN + 4 * 768
L_PT = L_QB + 512
L_MX = L_PT + 2048
L_XT = L_MX + 128
L_WT = L_XT + 4 * 768
L_H = L_WT + 256
L_YS = L_H + 768
L_END = L_YS + 64

TAGMASK = 0x3FF
POLL_MAX = 400000

class Tracker:
    def __init__(self, a):
        self.a = a; self.ops = []; self.n = 0
    def issue(self, ins, cond=False, window=None):
        if window is not None:
            cnt = sum(1 for (_, c) in self.ops if not c)
            if cnt >= window:
                self.a(f"s_waitcnt vmcnt({window-1})")
                self._retire_to(window - 1)
        self.a(ins)
        self.n += 1
        self.ops.append((self.n, cond))
        return self.n
    def _retire_to(self, k):
        keep = []; c = 0
        for op in reversed(self.ops):
            if c >= k: break
            keep.append(op)
            if not op[1]: c += 1
        self.ops = list(reversed(keep))
    def wait(self, opid):
        ids = [o for (o, _) in self.ops]
        if opid not in ids: return
        after = sum(1 for (o, c) in self.ops if o > opid and not c)
        self.a(f"s_waitcnt vmcnt({min(after, 63)})")
        self.ops = [(o, c) for (o, c) in self.ops if o > opid]
    def drain(self):
        self.a("s_waitcnt vmcnt(0)"); self.ops = []
    def fork(self):
        t = Tracker(self.a); t.ops = list(self.ops); t.n = self.n; return t

def gen(W=6, WE=12, WF=6, WFP=2, WE2=10, NK0=6, NKQ=0, NV0=6, WVT=10, dual=1, mlearly=0, woearly=1, WOW=2, w2early=0, fearly=0, ack=0, tlb=0, YCB=3, NL=0, stearly=2, dj=3, prog=1, gate=0, USIG=12, sel=0, db=0, fdelay=0, loc=1, dfr=2, mlat=0, XK=2, XV=2, pretouch=0, psleep=0, dbgtime=0, ldnt=0, stnt=0, stsleep=0, stamps=False, lds_force=0, codepf=True):
    a = Asm()
    T = Tracker(a)
    nst = [0]
    def cnt_stamp(i):
        if stamps: a(f"v_writelane_b32 v31, s79, {i}")
    def stamp(i):
        if stamps:
            a(f"s_memrealtime s[90:91]\ns_waitcnt lgkmcnt(0)\nv_writelane_b32 v31, s90, {i}")
    def srd(d, p, size):
        a(f"s_mov_b32 s{d}, s{p}\ns_and_b32 s{d+1}, s{p+1}, 0xffff\ns_mov_b32 s{d+2}, {size}\ns_mov_b32 s{d+3}, 0x00020000")
    def row_allreduce(op, regs, tmp=None, steps=(8, 4, 2, 1)):
        for st in steps:
            for r in regs:
                a(f"{op}_dpp v{r}, v{r}, v{r} row_ror:{st} row_mask:0xf bank_mask:0xf")
    def swap_reduce(op, regs, tmps, which):
        for r, t in zip(regs, tmps):
            a(f"v_mov_b32 v{t}, v{r}")
        for r, t in zip(regs, tmps):
            a(f"v_permlane{which}_swap_b32 v{r}, v{t}")
        for r, t in zip(regs, tmps):
            a(f"{op} v{r}, v{r}, v{t}")
    def bf16r(dst, src):
        a(f"v_cvt_pk_bf16_f32 v{dst}, v{src}, v{src}\nv_and_b32 v{dst}, 0xffff0000, v{dst}")
    def tag(regs, q=False):
        for r in regs:
            a(f"v_bfi_b32 v{r}, {'63' if q else 's77'}, v30, v{r}")
    def untag(regs, acc, first=True, q=False):
        for r in regs:
            a(f"v_xor_b32 v{r}, {'s75' if q else 'v30'}, v{r}")
        rs = list(regs)
        if first:
            if len(rs) >= 2:
                a(f"v_or_b32 v{acc}, v{rs[0]}, v{rs[1]}"); rs = rs[2:]
            else:
                a(f"v_mov_b32 v{acc}, v{rs[0]}"); rs = rs[1:]
        while len(rs) >= 2:
            a(f"v_or3_b32 v{acc}, v{acc}, v{rs[0]}, v{rs[1]}"); rs = rs[2:]
        if rs:
            a(f"v_or_b32 v{acc}, v{acc}, v{rs[0]}")
    def check_retry(acc, retry_label, code, q=False):
        ok = a.newlabel("L_ok")
        a(f"v_and_b32 v{acc}, {'63' if q else 's77'}, v{acc}\nv_cmp_ne_u32 vcc, 0, v{acc}")
        a(f"s_cbranch_vccz {ok}")
        a(f"s_add_u32 s79, s79, 1\ns_cmp_lt_u32 s79, {POLL_MAX}\ns_cbranch_scc1 {retry_label}")
        a.label(ok)

    def publish(Tk, ins, cond=False, local=False, defer=False):
        if local and loc:
            import re
            m = re.search(r"s\[64:67\], (s\d+) offen", ins)
            a(f"s_add_u32 s101, {m.group(1)}, {LOCOFF}")
            Tk.issue(ins.replace(f"s[64:67], {m.group(1)} offen", "s[64:67], s101 offen"), cond=cond)
            if defer: return ins + " sc1"
        Tk.issue(ins + " sc1", cond=cond)
    class Gather:
        def __init__(g, loads, masks=None, base=None, tmp=None, q=False):
            g.loads = loads; g.tmp = tmp; g.q = q
            g.base = base or [(-1, -1)] * len(loads)
        def issue(g, Tk=None):
            cur = (-1, -1); ids = []
            for (ins, _), b in zip(g.loads, g.base):
                if b != cur:
                    a(f"s_mov_b32 exec_lo, {b[0]}\ns_mov_b32 exec_hi, {b[1]}"); cur = b
                if Tk: ids.append(Tk.issue(ins))
                else: a(ins)
            if cur != (-1, -1): a("s_mov_b64 exec, -1")
            return ids
        def check(g):
            mk = '63' if g.q else 's77'
            groups = []
            for (ins, regs), b in zip(g.loads, g.base):
                if groups and groups[-1][0] == b: groups[-1][1].extend(regs)
                else: groups.append((b, list(regs)))
            first = True
            if groups[0][0] != (-1, -1):
                a(f"v_mov_b32 v{g.tmp}, 0")
            for b, regs in groups:
                if b != (-1, -1): a(f"s_mov_b32 exec_lo, {b[0]}\ns_mov_b32 exec_hi, {b[1]}")
                untag(regs, g.tmp, first=first, q=g.q); first = False
                if b != (-1, -1): a("s_mov_b64 exec, -1")
            a(f"v_and_b32 v{g.tmp}, {mk}, v{g.tmp}\nv_cmp_ne_u32 vcc, 0, v{g.tmp}")
        def ploop(g, acc=None, young=0):
            n = len(g.loads)
            lc = a.newlabel("L_pc"); ld = a.newlabel("L_pd"); lr = a.newlabel("L_pr")
            if young:
                a(f"s_waitcnt vmcnt({young})")
            a(f"s_branch {lc}")
            a.label(lr)
            g.issue()
            a.label(lc)
            if g.base[0] != (-1, -1): a(f"v_mov_b32 v{g.tmp}, 0")
            cur = (-1, -1)
            for k, ((ins, regs), b) in enumerate(zip(g.loads, g.base)):
                if b != cur:
                    a(f"s_mov_b32 exec_lo, {b[0]}\ns_mov_b32 exec_hi, {b[1]}"); cur = b
                a(f"s_waitcnt vmcnt({min(63, n - 1 - k + young)})" if False else f"s_waitcnt vmcnt({n - 1 - k})" if not young else f"s_waitcnt vmcnt({max(n - 1 - k, 0)})")
                untag(regs, g.tmp, first=(k == 0), q=g.q)
                if acc: acc(k)
            if cur != (-1, -1): a("s_mov_b64 exec, -1")
            a(f"v_and_b32 v{g.tmp}, {'63' if g.q else 's77'}, v{g.tmp}\nv_cmp_ne_u32 vcc, 0, v{g.tmp}")
            a(f"s_cbranch_vccz {ld}")
            a(f"s_add_u32 s79, s79, 1\ns_cmp_lt_u32 s79, {POLL_MAX}\ns_cbranch_scc1 {lr}")
            a.label(ld)
        def loop(g, sleep=0):
            lc = a.newlabel("L_gc"); ld = a.newlabel("L_gd"); lr = a.newlabel("L_gr")
            a(f"s_branch {lc}")
            a.label(lr)
            if sleep or psleep: a(f"s_sleep {max(sleep, psleep)}")
            g.issue()
            a("s_waitcnt vmcnt(0)")
            a.label(lc)
            g.check()
            a(f"s_cbranch_vccz {ld}")
            a(f"s_add_u32 s79, s79, 1\ns_cmp_lt_u32 s79, {POLL_MAX}\ns_cbranch_scc1 {lr}")
            a.label(ld)
    def selloop(g, sp="s16"):
        n = len(g.loads)
        lc = a.newlabel("L_sc"); ld = a.newlabel("L_sd")
        a(f"s_mov_b32 {sp}, {(1 << n) - 1}")
        a.label(lc)
        cur = (-1, -1)
        for k, ((ins, regs), b) in enumerate(zip(g.loads, g.base)):
            if b != cur:
                a(f"s_mov_b32 exec_lo, {b[0]}\ns_mov_b32 exec_hi, {b[1]}"); cur = b
            l = a.newlabel("L_sk")
            a(f"s_bitcmp1_b32 {sp}, {k}\ns_cbranch_scc0 {l}")
            untag(regs, g.tmp)
            a(f"v_and_b32 v{g.tmp}, s77, v{g.tmp}\nv_cmp_ne_u32 vcc, 0, v{g.tmp}")
            a(f"s_cbranch_vccnz {l}r")
            a(f"s_bitset0_b32 {sp}, {k}\ns_branch {l}")
            a.label(l + "r")
            a(ins)
            a.label(l)
        a("s_mov_b64 exec, -1")
        a(f"s_cmp_eq_u32 {sp}, 0\ns_cbranch_scc1 {ld}")
        a(f"s_add_u32 s79, s79, 1\ns_cmp_lt_u32 s79, {POLL_MAX}\ns_waitcnt vmcnt(0)\ns_cbranch_scc1 {lc}")
        a.label(ld)
    def poll2(gA, gB, fin, dbbit, young=0):
        n = len(gA.loads)
        if not (db & dbbit):
            a(f"s_waitcnt vmcnt({young})")
            gA.loop(); fin(0); return
        l0 = a.newlabel("L_p2"); la = a.newlabel("L_p2a"); lb = a.newlabel("L_p2b"); le = a.newlabel("L_p2e")
        a.label(l0)
        gB.issue()
        a(f"s_waitcnt vmcnt({n})")
        gA.check()
        a(f"s_cbranch_vccz {la}")
        gA.issue()
        a(f"s_waitcnt vmcnt({n})")
        gB.check()
        a(f"s_cbranch_vccz {lb}")
        a(f"s_add_u32 s79, s79, 1\ns_cmp_lt_u32 s79, {POLL_MAX}\ns_cbranch_scc1 {l0}")
        a.label(lb)
        fin(1)
        a(f"s_branch {le}")
        a.label(la)
        fin(0)
        a.label(le)
    def quarter_publish(Tk, r, vaddr, soff, q=False, defer=False):
        a("s_mov_b64 exec, s[62:63]")
        for k in range(4):
            a(f"ds_read_b128 v[{r+4*k}:{r+4*k+3}], v19 offset:{1024*k}")
        a("s_waitcnt lgkmcnt(2)")
        a(f"v_pk_add_f32 v[{r}:{r+1}], v[{r}:{r+1}], v[{r+4}:{r+5}]\nv_pk_add_f32 v[{r+2}:{r+3}], v[{r+2}:{r+3}], v[{r+6}:{r+7}]")
        a("s_waitcnt lgkmcnt(0)")
        a(f"v_pk_add_f32 v[{r+8}:{r+9}], v[{r+8}:{r+9}], v[{r+12}:{r+13}]\nv_pk_add_f32 v[{r+10}:{r+11}], v[{r+10}:{r+11}], v[{r+14}:{r+15}]")
        a(f"v_pk_add_f32 v[{r}:{r+1}], v[{r}:{r+1}], v[{r+8}:{r+9}]\nv_pk_add_f32 v[{r+2}:{r+3}], v[{r+2}:{r+3}], v[{r+10}:{r+11}]")
        tag([r, r+1, r+2, r+3], q=q)
        d = publish(Tk, f"buffer_store_dwordx4 v[{r}:{r+3}], v{vaddr}, s[64:67], {soff} offen", local=not q, defer=defer)
        a("s_mov_b64 exec, -1")
        return d
    MK = [16, 18, 20, 22, 24, 26, 28, 30]
    MK2 = [32, 34, 36, 38, 44, 46, 92, 94]
    def tile_loads(base, srdn, soff, rc="v"):
        L = []
        for st in range(len(soff)):
            for cb in range(3):
                for rr in range(2):
                    r = base + 24 * st + 8 * cb + 4 * rr
                    L.append(f"buffer_load_dwordx4 {rc}[{r}:{r+3}], v236, s[{srdn}:{srdn+3}], {soff[st]} offen offset:{rr*1152+cb*128} nt")
        return L
    a("s_cmp_ge_u32 s2, 256\ns_cbranch_scc1 L_end")
    a("s_load_dwordx16 s[16:31], s[0:1], 0\ns_load_dwordx8 s[32:39], s[0:1], 64")
    if stamps:
        a("s_memrealtime s[90:91]\nv_mov_b32 v31, 0")
    if dbgtime:
        a("s_memrealtime s[90:91]\ns_memtime s[92:93]\ns_waitcnt lgkmcnt(0)\nv_mov_b32 v31, s90\nv_mov_b32 v253, s92\ns_mov_b32 s90, s36\ns_mov_b32 s91, s37")
    a("v_lshrrev_b32 v1, 6, v0\nv_and_b32 v0, 63, v0")
    a("v_readfirstlane_b32 s3, v1")
    if codepf:
        a("s_getpc_b64 s[98:99]")
        a("v_lshlrev_b32 v3, 7, v0")
        a("s_lshl_b32 s8, s3, 13\ns_add_u32 s98, s98, s8\ns_addc_u32 s99, s99, 0")
        a(".CODEPF_GUARD")
    a("s_and_b32 s4, s2, 7\ns_lshr_b32 s5, s2, 3")
    a("s_lshr_b32 s6, s5, 4\ns_lshl_b32 s7, s4, 1\ns_add_u32 s6, s6, s7")
    a("s_and_b32 s7, s5, 15")
    a(f"s_lshl_b32 s99, s4, 18\ns_mul_i32 s98, s4, {0x40000-0x8000}")
    a("v_and_b32 v1, 15, v0\nv_lshrrev_b32 v2, 4, v0")
    a("v_lshrrev_b32 v4, 5, v0\nv_and_b32 v5, 31, v0")
    a("v_mul_u32_u24 v6, 36, v5\nv_mul_u32_u24 v7, 1152, v4\nv_add_u32 v6, v6, v7")
    a("v_lshl_add_u32 v7, v5, 1, v7")
    a("v_mul_u32_u24 v8, 8192, v2\nv_lshl_add_u32 v8, v1, 4, v8")
    a("s_mov_b32 s77, 0x3ff\ns_mov_b32 s79, 0")
    a("s_waitcnt lgkmcnt(0)")
    if stamps:
        a("v_writelane_b32 v31, s90, 0")
    a("s_load_dword s78, s[38:39], 0")
    if pretouch == 2:
        a(f"s_lshl_b32 s8, s5, 13\ns_lshl_b32 s9, s3, 11\ns_add_u32 s8, s8, s9\ns_add_u32 s8, s8, s99\ns_add_u32 s8, s8, {WS0}")
        a("s_add_u32 s88, s38, s8\ns_addc_u32 s89, s39, 0")
        for k in range(16):
            a(f"s_load_dword s{83 + k % 5}, s[88:89], {128*k}")
    srd(68, 16, 2304)
    srd(48, 22, 576 * 4096 * 2)
    srd(64, 38, 256 << 20)
    x0 = T.issue("buffer_load_dwordx4 v[60:63], v6, s[68:71], 0 offen")
    x1 = T.issue("buffer_load_dwordx4 v[64:67], v6, s[68:71], 0 offen offset:16")
    x2 = T.issue("buffer_load_dword v68, v6, s[68:71], 0 offen offset:32")
    a("s_lshr_b32 s9, s7, 1\ns_mul_i32 s10, s9, 144")
    xr = []
    for k in range(3):
        xr.append(T.issue(f"buffer_load_ushort v{69+k}, v7, s[68:71], s10 offen offset:{64*k}"))
    a("s_and_b32 s8, s7, 1\ns_lshl_b32 s11, s6, 1\ns_add_u32 s11, s8, s11")
    a("s_lshl_b32 s8, s11, 8")
    a("s_mul_i32 s12, s9, 72\ns_lshl_b32 s10, s3, 2\ns_add_u32 s12, s12, s10\ns_lshl_b32 s12, s12, 13\ns_add_u32 s8, s8, s12")
    wq = []
    for i in range(5):
        if i == 4:
            a("s_cmp_ge_u32 s3, 2\ns_cselect_b32 s8, 0x7fffffff, s8")
        wq.append(T.issue(f"buffer_load_dwordx4 v[{40+4*i}:{43+4*i}], v8, s[48:51], s8 offen nt"))
        if i < 4: a(f"s_add_u32 s8, s8, {16*8192}")
    a(f"s_lshl_b32 s13, s11, 3\ns_add_u32 s13, s13, s9\ns_lshl_b32 s13, s13, 10\ns_add_u32 s13, s13, {WS_QP}\ns_add_u32 s13, s13, s98")
    srd(40, 18, 64 << 20); srd(44, 20, 64 << 20)
    if pretouch == 1:
        a("s_cmp_lg_u32 s3, 2\ns_cbranch_scc1 L_nopt")
        a(f"s_lshl_b32 s8, s5, 13\ns_add_u32 s8, s8, s99\ns_add_u32 s8, s8, {WS0}\nv_lshlrev_b32 v14, 7, v0")
        T.issue("buffer_load_dword v254, v14, s[64:67], s8 offen sc1", cond=True)
        a.label("L_nopt")
    a("s_lshr_b32 s8, s7, 3\ns_lshl_b32 s14, s8, 25\ns_lshl_b32 s9, s6, 21\ns_add_u32 s14, s14, s9")
    a("s_and_b32 s9, s7, 7\ns_lshl_b32 s9, s9, 14\ns_add_u32 s14, s14, s9\ns_lshl_b32 s9, s3, 12\ns_add_u32 s14, s14, s9")
    a(f"s_add_u32 s14, s14, {6144*256}\ns_mov_b32 s15, s14")
    for k in range(4):
        a(f"v_add_u32 v{10+k}, {4*k}, v2\nv_xor_b32 v{10+k}, v{10+k}, v1\nv_lshlrev_b32 v{10+k}, 4, v{10+k}\nv_lshl_add_u32 v{10+k}, v2, 8, v{10+k}")
    a("s_lshl_b32 s100, s3, 14")
    kops = []
    def kload(i, window):
        if i % 4 == 0:
            a(f"s_add_u32 s101, s100, {(i//4)*4096}\ns_mov_b32 m0, s101")
        kops.append(T.issue(f"buffer_load_dwordx4 v{10+i%4}, s[40:43], s14 offen offset:{(i%4)*1024} nt lds", window=window))
        if i % 4 == 3:
            a("s_add_u32 s14, s14, 131072")
    for i in range(NK0):
        kload(i, None)
    a("s_sub_u32 s74, s5, 18")
    srd(52, 24, 4096 * 576 * 2)
    a("v_lshrrev_b32 v236, 3, v1\nv_lshlrev_b32 v236, 3, v236\nv_lshl_add_u32 v236, v2, 1, v236\nv_mul_u32_u24 v236, 1152, v236\nv_and_b32 v14, 7, v1\nv_lshl_add_u32 v236, v14, 4, v236")
    a("s_and_b32 s8, s74, 15\ns_mul_i32 s73, s8, 11\ns_lshr_b32 s73, s73, 5")
    a("s_mul_i32 s9, s73, 3\ns_sub_u32 s80, s8, s9")
    a("s_lshl_b32 s8, s4, 2\ns_add_u32 s73, s73, s8")
    a("s_lshl_b32 s8, s73, 7\ns_lshl_b32 s9, s3, 5\ns_add_u32 s8, s8, s9\ns_mul_i32 s8, s8, 1152\ns_mul_i32 s9, s80, 384\ns_add_u32 s81, s8, s9")
    a("s_cmp_ge_u32 s74, 12\ns_cselect_b32 s81, 0x7fff0000, s81")
    a(f"s_add_u32 s82, s81, {16*1152}")
    wol = tile_loads(168, 52, ["s81", "s82"])
    if w2early:
        srd(60, 32, 4608 * 576 * 2)
        a("s_and_b32 s8, s74, 15\ns_mul_i32 s72, s4, 14\ns_add_u32 s72, s72, s8")
        a("s_mul_i32 s8, s72, 171\ns_lshr_b32 s8, s8, 9\ns_mul_i32 s9, s8, 3\ns_sub_u32 s9, s72, s9")
        a("s_lshl_b32 s8, s8, 7\ns_lshl_b32 s12, s3, 5\ns_add_u32 s8, s8, s12\ns_mul_i32 s8, s8, 1152\ns_mul_i32 s9, s9, 384\ns_add_u32 s83, s8, s9")
        a("s_cmp_ge_u32 s74, 14\ns_cselect_b32 s83, 0x7fff0000, s83\ns_cmp_ge_u32 s72, 108\ns_cselect_b32 s83, 0x7fff0000, s83")
        a(f"s_add_u32 s84, s83, {16*1152}")
        wol = wol + tile_loads(0, 60, ["s83", "s84"], rc="a")
    if fearly:
        a("s_mov_b32 s85, 1152\ns_mov_b32 s86, -1024\ns_mov_b32 s87, 17024")
        a("s_cmp_ge_u32 s5, 18\ns_cbranch_scc1 L_xE")
        a("s_cmp_ge_u32 s3, 2\ns_cselect_b32 s52, s30, s28\ns_cselect_b32 s53, s31, s29\ns_and_b32 s53, s53, 0xffff")
        a(f"s_mov_b32 s54, {576*4608*2}")
        a("v_mul_u32_u24 v236, 9216, v2\nv_lshl_add_u32 v236, v1, 4, v236")
        a(f"s_mul_i32 s81, s4, {72*9216}\ns_lshl_b32 s9, s5, 9\ns_add_u32 s81, s81, s9\ns_and_b32 s9, s3, 1\ns_lshl_b32 s9, s9, 8\ns_add_u32 s81, s81, s9")
        a(f"s_mov_b32 s85, {4*9216}\ns_mov_b32 s86, {4*9216}\ns_mov_b32 s87, {4*9216}")
        a.label("L_xE")
        wol = []
        for k in range(12):
            inc = "s87" if k == 5 else ("s85" if k % 2 == 0 else "s86")
            wol.append(f"buffer_load_dwordx4 v[{168+4*k}:{171+4*k}], v236, s[52:55], s81 offen nt\ns_add_u32 s81, s81, {inc}")
    if tlb:
        srd(60, 32, 4608 * 576 * 2)
        a("s_cmp_ge_u32 s3, 2\ns_cselect_b32 s56, s30, s28\ns_cselect_b32 s57, s31, s29\ns_and_b32 s57, s57, 0xffff")
        a(f"s_mov_b32 s58, {576*4608*2}\ns_mov_b32 s59, 0x00020000")
        a("v_lshlrev_b32 v14, 16, v0")
        a(f"s_mul_i32 s8, s4, {72*9216}\ns_lshl_b32 s9, s5, 9\ns_add_u32 s8, s8, s9\ns_cmp_ge_u32 s5, 18\ns_cselect_b32 s8, 0x7fff0000, s8")
        a("s_and_b32 s9, s74, 15\ns_mul_i32 s12, s4, 14\ns_add_u32 s12, s12, s9\ns_mul_i32 s12, s12, 49152\ns_cmp_lt_u32 s5, 18\ns_cselect_b32 s12, 0x7fff0000, s12")
        a("s_mov_b64 exec, 0x7ff")
        T.issue("buffer_load_dword v252, v14, s[56:59], s8 offen nt")
        a("s_mov_b64 exec, 0xf")
        T.issue("buffer_load_dword v253, v14, s[60:63], s12 offen nt")
        a("s_mov_b64 exec, 0xff")
        T.issue("buffer_load_dword v254, v14, s[44:47], s15 offen nt")
        a("s_mov_b64 exec, -1")
    woo = []
    cnt = [0]
    def extra(window, every=2):
        cnt[0] += 1
        if woearly and cnt[0] % every == 0 and len(woo) < len(wol):
            woo.append(T.issue(wol[len(woo)], window=window))
    if woearly: W = W + WOW; WVT = WVT + WOW
    a("v_and_b32 v14, 1, v1\nv_cmp_eq_u32 vcc, 1, v14\nv_mov_b32 v15, 0xffff\nv_mov_b32 v16, 0xffff0000\nv_cndmask_b32 v14, v15, v16, vcc")
    a("v_bfe_u32 v15, v1, 1, 2")
    for j in range(4):
        a(f"v_cmp_eq_u32 vcc, {j}, v15\nv_cndmask_b32 v{32+j}, 0, v14, vcc")
    a("v_and_b32 v15, 1, v15")
    a("v_cmp_eq_u32 vcc, 0, v15\nv_cndmask_b32 v36, 0, v14, vcc\nv_cmp_eq_u32 vcc, 1, v15\nv_cndmask_b32 v37, 0, v14, vcc")
    a("v_cmp_eq_u32 s[92:93], 1, v2\nv_cmp_eq_u32 s[94:95], 2, v2\nv_cmp_eq_u32 s[96:97], 3, v2")
    a("v_lshrrev_b32 v14, 1, v2\nv_lshlrev_b32 v38, 9, v14\nv_lshl_add_u32 v38, v1, 5, v38\nv_and_b32 v14, 1, v2\nv_lshl_add_u32 v38, v14, 4, v38")
    a("v_lshlrev_b32 v39, 4, v0")
    a("v_lshlrev_b32 v9, 2, v0")
    T.wait(x2)
    for k in range(9):
        a(f"v_and_b32 v{73+2*k}, 0xffff0000, v{60+k}\nv_lshlrev_b32 v{72+2*k}, 16, v{60+k}")
    a("v_add_f32 v14, v72, v73")
    a("v_add_f32 v15, v74, v75")
    for k in range(4, 18, 2):
        a(f"v_add_f32 v14, v14, v{72+k}\nv_add_f32 v15, v15, v{73+k}")
    a("v_add_f32 v14, v14, v15")
    row_allreduce("v_add_f32", [14])
    swap_reduce("v_add_f32", [14], [15], 16)
    a(f"v_mul_f32 v14, {float_lit(1/576)}, v14")
    a("v_mov_b32 v29, v14")
    a("v_mov_b32 v15, 0\nv_mov_b32 v16, 0")
    for k in range(0, 18, 2):
        a(f"v_sub_f32 v{72+k}, v{72+k}, v14\nv_sub_f32 v{73+k}, v{73+k}, v14")
        a(f"v_fmac_f32 v15, v{72+k}, v{72+k}\nv_fmac_f32 v16, v{73+k}, v{73+k}")
    a("v_add_f32 v15, v15, v16")
    row_allreduce("v_add_f32", [15])
    swap_reduce("v_add_f32", [15], [16], 16)
    a(f"v_mul_f32 v15, {float_lit(1/576)}, v15")
    bf16r(15, 15)
    a(f"v_add_f32 v15, {float_lit(1e-5)}, v15")
    bf16r(15, 15)
    a("v_sqrt_f32 v15, v15")
    bf16r(15, 15)
    a("v_rcp_f32 v15, v15")
    bf16r(14, 14)
    T.wait(xr[2])
    a(f"s_mul_i32 s8, s3, 768\ns_add_u32 s8, s8, {L_XN}")
    a("v_mul_u32_u24 v16, 384, v4\nv_lshl_add_u32 v16, v5, 2, v16\nv_add_u32 v16, s8, v16")
    for k in range(3):
        r = 69 + k
        a(f"v_lshlrev_b32 v{r}, 16, v{r}\nv_sub_f32 v{r}, v{r}, v14")
        bf16r(r, r)
        a(f"v_mul_f32 v{r}, v{r}, v15\nv_cvt_pk_bf16_f32 v{r}, v{r}, v{r}")
        a(f"ds_write_b32 v16, v{r} offset:{128*k}")
    a("v_lshrrev_b32 v17, 3, v1\nv_mul_u32_u24 v17, 384, v17\nv_lshl_add_u32 v17, v2, 2, v17\ns_lshl_b32 s9, s3, 4\ns_add_u32 s8, s8, s9\nv_add_u32 v17, s8, v17")
    a("s_waitcnt lgkmcnt(0)")
    a("s_add_u32 s78, s78, 1\ns_and_b32 s76, s78, 0x3ff\nv_mov_b32 v30, s76\ns_and_b32 s75, s78, 63")
    if loc:
        a("s_getreg_b32 s72, hwreg(HW_REG_XCC_ID)\ns_and_b32 s72, s72, 15\ns_lshl_b32 s8, s78, 4\ns_or_b32 s72, s72, s8")
        a("s_cmp_lg_u32 s3, 0\ns_cbranch_scc1 L_noxid")
        a(f"s_lshl_b32 s8, s5, 2\ns_add_u32 s8, s8, s99\ns_add_u32 s8, s8, {WS_XID}\nv_mov_b32 v65, s72\nv_mov_b32 v66, 0\ns_mov_b64 exec, 1")
        T.issue("buffer_store_dword v65, v66, s[64:67], s8 offen sc1", cond=True)
        a("s_mov_b64 exec, -1")
        a.label("L_noxid")
    for i in range(5):
        a(f"ds_read_b32 v{60+i}, v17 offset:{64*i}")
    a("s_waitcnt lgkmcnt(0)")
    stamp(1)
    for i in range(5):
        for j in range(4):
            a(f"v_and_b32 v{72+4*i+j}, v{60+i}, v{32+j}")
    for i in range(5):
        T.wait(wq[i])
        c = "0" if i == 0 else "v[96:99]"
        a(f"v_mfma_f32_16x16x32_bf16 v[96:99], v[{72+4*i}:{75+4*i}], v[{40+4*i}:{43+4*i}], {c}")
    for i in range(NK0, NK0 + NKQ):
        kload(i, None)
    a(f"s_lshl_b32 s8, s3, 10\ns_add_u32 s8, s8, {L_RED2}\nv_add_u32 v18, s8, v39")
    a(f"v_add_u32 v19, {L_RED2}, v39")
    a("ds_write_b128 v18, v[96:99]")
    a("s_lshr_b32 s8, s3, 1\ns_lshl_b32 s8, s8, 5\ns_and_b32 s9, s3, 1\ns_lshl_b32 s9, s9, 3\ns_add_u32 s8, s8, s9\ns_mov_b64 s[62:63], 0x00ff00ff\ns_lshl_b64 s[62:63], s[62:63], s8")
    a("s_waitcnt lgkmcnt(0)\ns_barrier")
    quarter_publish(T, 72, 38, "s13", q=True)
    stamp(2)
    for i in range(NK0 + NKQ, 16):
        kload(i, W); extra(W, XK)
    a("s_lshr_b32 s8, s3, 1\ns_lshl_b32 s9, s6, 1\ns_add_u32 s8, s8, s9\ns_lshl_b32 s8, s8, 13")
    a("s_lshr_b32 s9, s7, 3\ns_lshl_b32 s9, s9, 9\ns_add_u32 s8, s8, s9\ns_and_b32 s9, s3, 1\ns_lshl_b32 s9, s9, 8\ns_add_u32 s8, s8, s9")
    a(f"s_add_u32 s8, s8, {WS_QP}\ns_add_u32 s8, s8, s98\ns_add_u32 s9, s8, 4096")
    def qgather(Tk, window=None):
        ids = []
        for r in range(8):
            ids.append(Tk.issue(f"buffer_load_dword v{40+r}, v9, s[64:67], {'s8' if r < 4 else 's9'} offen offset:{(r%4)*1024} sc1"))
        return ids
    if loc:
        a(f"s_add_u32 s10, s99, {WS_XID}\nv_lshlrev_b32 v14, 2, v5")
        T.issue("buffer_load_dword v49, v14, s[64:67], s10 offen sc1")
    qg = qgather(T)
    vops = []
    def vload(i, window):
        if i >= 16: return
        vops.append(T.issue(f"buffer_load_dwordx4 v[{104+4*i}:{107+4*i}], v39, s[44:47], s15 offen offset:{(i%4)*1024} nt", window=window))
        if i % 4 == 3:
            a("s_add_u32 s15, s15, 131072")
        extra(window, XV)
    for i in range(NV0):
        vload(i, max(W, NV0) + 8 if i >= W else W + 8)
    T.wait(qg[-1])
    a("s_branch L_qchk")
    a.label("L_qretry")
    a("s_sleep 1")
    Tr = T.fork(); qgather(Tr); a("s_waitcnt vmcnt(0)")
    a.label("L_qchk")
    untag(list(range(40, 48)), 48, q=True)
    check_retry(48, "L_qretry", 1, q=True)
    if loc:
        a(f"v_cmp_ne_u32 vcc, s72, v49\ns_cmp_eq_u64 vcc, 0\ns_cselect_b32 s72, {LOCOFF}, 0")
    for r in range(0, 8, 2):
        a(f"v_add_f32 v{40+r}, v{40+r}, v{41+r}")
    a("v_add_f32 v40, v40, v42\nv_add_f32 v44, v44, v46\nv_add_f32 v40, v40, v44")
    a("v_cvt_pk_bf16_f32 v40, v40, v40")
    a(f"s_lshl_b32 s8, s3, 7\ns_add_u32 s8, s8, {L_QB}\nv_lshlrev_b32 v14, 1, v0\nv_add_u32 v14, s8, v14")
    a("ds_write_b16 v14, v40")
    a(f"v_and_b32 v14, 1, v1\nv_lshlrev_b32 v14, 8, v14\nv_lshl_add_u32 v14, v2, 4, v14\nv_add_u32 v14, {L_QB}, v14")
    for j in range(4):
        a(f"v_add_u32 v{20+j}, {4*j}, v2\nv_xor_b32 v{20+j}, v{20+j}, v1\nv_lshlrev_b32 v{20+j}, 4, v{20+j}\nv_lshl_add_u32 v{20+j}, v1, 8, v{20+j}\nv_add_u32 v{20+j}, s100, v{20+j}")
    a("s_waitcnt lgkmcnt(0)\ns_barrier")
    stamp(3)
    for j in range(4):
        a(f"ds_read_b128 v[{40+4*j}:{43+4*j}], v14 offset:{64*j}")
    def kread(t):
        base = 56 + 16 * (t % 2)
        for j in range(4):
            a(f"ds_read_b128 v[{base+4*j}:{base+4*j+3}], v{20+j} offset:{4096*t}")
    kread(0); kread(1)
    nv = NV0
    for t in range(4):
        base = 56 + 16 * (t % 2)
        a(f"s_waitcnt lgkmcnt({4 if t < 3 else 0})")
        for j in range(4):
            c = "0" if j == 0 else f"v[{88+4*t}:{91+4*t}]"
            a(f"v_mfma_f32_16x16x32_bf16 v[{88+4*t}:{91+4*t}], v[{40+4*j}:{43+4*j}], v[{base+4*j}:{base+4*j+3}], {c}")
        if t + 2 < 4:
            a("s_nop 1")
            kread(t + 2)
        vload(nv, W); nv += 1
    for h in range(2):
        a(f"v_cndmask_b32 v{24+h}, v{88+h}, v{92+h}, s[92:93]")
    for h in range(2):
        a(f"v_cndmask_b32 v{24+h}, v{24+h}, v{96+h}, s[94:95]")
    for h in range(2):
        a(f"v_cndmask_b32 v{24+h}, v{24+h}, v{100+h}, s[96:97]")
    a("v_cvt_pk_bf16_f32 v26, v24, v25\nv_lshlrev_b32 v24, 16, v26\nv_and_b32 v25, 0xffff0000, v26")
    sc = float_lit(128 ** -0.5)
    a(f"v_mul_f32 v24, {sc}, v24\nv_mul_f32 v25, {sc}, v25")
    a("v_cvt_pk_bf16_f32 v26, v24, v25\nv_lshlrev_b32 v24, 16, v26\nv_and_b32 v25, 0xffff0000, v26")
    a("v_mov_b32 v26, v24\nv_mov_b32 v27, v25")
    row_allreduce("v_max_f32", [26, 27])
    swap_reduce("v_max_f32", [26, 27], [14, 15], 16)
    swap_reduce("v_max_f32", [26, 27], [14, 15], 32)
    a(f"s_lshl_b32 s8, s3, 3\ns_add_u32 s8, s8, {L_MX}\nv_mov_b32 v14, s8\nv_mov_b32 v16, {L_MX}")
    a("ds_write_b64 v14, v[26:27]")
    vload(nv, W); nv += 1
    a("s_waitcnt lgkmcnt(0)\ns_barrier")
    a("ds_read_b128 v[40:43], v16\nds_read_b128 v[44:47], v16 offset:16")
    a("s_waitcnt lgkmcnt(0)")
    a("v_max3_f32 v26, v40, v42, v44\nv_max3_f32 v27, v41, v43, v45\nv_max_f32 v26, v26, v46\nv_max_f32 v27, v27, v47")
    l2e = float_lit(1.4426950408889634)
    a("v_sub_f32 v24, v24, v26\nv_sub_f32 v25, v25, v27")
    a(f"v_mul_f32 v24, {l2e}, v24\nv_mul_f32 v25, {l2e}, v25")
    a("v_exp_f32 v24, v24\nv_exp_f32 v25, v25")
    a(f"s_lshl_b32 s8, s3, 9\ns_add_u32 s8, s8, {L_PT}")
    a("v_and_b32 v15, 3, v0\nv_lshlrev_b32 v15, 6, v15\nv_lshrrev_b32 v17, 2, v0\nv_lshl_add_u32 v15, v17, 2, v15\nv_add_u32 v15, s8, v15")
    a("v_cvt_pk_bf16_f32 v40, v24, v24\nv_cvt_pk_bf16_f32 v41, v25, v25")
    a("ds_write_b32 v15, v40\nds_write_b32 v15, v41 offset:256")
    a("v_lshrrev_b32 v17, 3, v1\nv_lshlrev_b32 v17, 8, v17\nv_lshl_add_u32 v17, v2, 6, v17\nv_add_u32 v17, s8, v17")
    row_allreduce("v_add_f32", [24, 25])
    swap_reduce("v_add_f32", [24, 25], [42, 43], 16)
    swap_reduce("v_add_f32", [24, 25], [42, 43], 32)
    a("ds_write_b64 v14, v[24:25] offset:32")
    a("s_waitcnt lgkmcnt(0)")
    for q in range(4):
        a(f"ds_read_b128 v[{240+4*q}:{243+4*q}], v17 offset:{16*q}")
    vload(nv, W); nv += 1
    a("s_waitcnt lgkmcnt(0)")
    for u in range(16):
        for j in range(4):
            a(f"v_and_b32 v{40+4*u+j}, v{240+u}, v{32+j}")
        if u % 4 == 3 and nv < 16:
            vload(nv, W); nv += 1
    a("s_barrier")
    a("s_cmp_lg_u32 s3, 1\ns_cbranch_scc1 L_noml")
    a("ds_read_b128 v[240:243], v16 offset:32\nds_read_b128 v[244:247], v16 offset:48")
    a("s_waitcnt lgkmcnt(0)")
    a("v_add_f32 v240, v240, v242\nv_add_f32 v244, v244, v246\nv_add_f32 v241, v241, v243\nv_add_f32 v245, v245, v247")
    a("v_add_f32 v249, v240, v244\nv_add_f32 v251, v241, v245\nv_mov_b32 v248, v26\nv_mov_b32 v250, v27")
    tag([248, 249, 250, 251])
    a(f"s_and_b32 s8, s6, 1\ns_lshl_b32 s8, s8, 11\ns_lshl_b32 s9, s7, 7\ns_add_u32 s8, s8, s9\ns_add_u32 s8, s8, {WS_ML}\ns_add_u32 s8, s8, s99")
    a("s_mov_b64 exec, 0xff")
    publish(T, "buffer_store_dwordx4 v[248:251], v39, s[64:67], s8 offen", cond=True, local=True)
    a("s_mov_b64 exec, -1")
    a.label("L_noml")
    stamp(4)
    while nv < 16:
        vload(nv, WVT); nv += 1
    a(f"s_lshl_b32 s13, s6, 14\ns_lshl_b32 s9, s7, 9\ns_add_u32 s13, s13, s9\ns_add_u32 s13, s13, {WS_OPART}\ns_add_u32 s13, s13, s98")
    a("v_lshrrev_b32 v14, 1, v2\nv_mul_u32_u24 v14, 7680, v14\nv_add_u32 v28, v14, v38")
    if gate:
        a(f"s_add_u32 s60, s99, {WS_XID + 0x100 + LOCOFF}\ns_mov_b32 s61, s72\nv_mov_b32 v238, s78\ns_lshl_b32 s8, s5, 2\nv_mov_b32 v239, s8")
    a("s_cmp_lt_u32 s5, 18\ns_cbranch_scc1 L_F")
    Tbr = T.fork()

    def pv_and_publish(Tk, between, lab, defer=False):
        for u in range(16):
            between(u)
            Tk.wait(vops[u])
            if gate and u == USIG:
                l = a.newlabel("L_sig")
                a(f"s_cmp_lg_u32 s3, 0\ns_cbranch_scc1 {l}\ns_mov_b64 exec, 1")
                Tk.issue("buffer_store_dword v238, v239, s[64:67], s60 offen", cond=True)
                a("s_mov_b64 exec, -1")
                a.label(l)
            c = "0" if u == 0 else "v[240:243]"
            a(f"v_mfma_f32_16x16x32_bf16 v[240:243], v[{40+4*u}:{43+4*u}], v[{104+4*u}:{107+4*u}], {c}")
        stamp(5)
        a("ds_write_b128 v18, v[240:243]")
        a("s_waitcnt lgkmcnt(0)\ns_barrier")
        d = quarter_publish(Tk, 240, 28, "s13", defer=defer)
        stamp(6)
        return d

    def tile_swap(base, n=6):
        for k in range(n):
            r = base + 8 * k
            a(f"v_swap_b32 v{r+2}, v{r+4}\nv_swap_b32 v{r+3}, v{r+5}")
    ACC = [240, 244, 248, 252, 76, 80]
    def sel_and(st, x0, x1):
        a(f"v_and_b32 v{84+4*st}, v{x0}, v36\nv_and_b32 v{85+4*st}, v{x0}, v37\nv_and_b32 v{86+4*st}, v{x1}, v36\nv_and_b32 v{87+4*st}, v{x1}, v37")
    def stat_fill():
        L = [f"v_sub_f32 v{44+r}, v{60+r}, v29" for r in range(4)]
        L += ["v_add_f32 v52, v44, v45", "v_add_f32 v53, v46, v47", "v_mul_f32 v54, v44, v44", "v_mul_f32 v55, v45, v45",
              "v_fmac_f32 v54, v46, v46", "v_fmac_f32 v55, v47, v47", "v_add_f32 v52, v52, v53", "v_add_f32 v53, v54, v55",
              "v_cmp_gt_u32 vcc, 24, v5", "s_nop 0", "v_cndmask_b32 v52, 0, v52, vcc", "v_cndmask_b32 v53, 0, v53, vcc"]
        for st in (8, 4, 2, 1):
            L += [f"v_add_f32_dpp v52, v52, v52 row_ror:{st} row_mask:0xf bank_mask:0xf", f"v_add_f32_dpp v53, v53, v53 row_ror:{st} row_mask:0xf bank_mask:0xf"]
        L += ["v_mov_b32 v54, v52", "v_mov_b32 v55, v53", "v_permlane16_swap_b32 v52, v54", "v_permlane16_swap_b32 v53, v55", "v_add_f32 v52, v52, v54", "v_add_f32 v53, v53, v55",
              "v_mov_b32 v54, v52", "v_mov_b32 v55, v53", "v_permlane32_swap_b32 v52, v54", "v_permlane32_swap_b32 v53, v55"]
        L += [f"v_bfi_b32 v{r}, s77, v30, v{r}" for r in (52, 53, 54, 55)]
        return L
    def mfma_block(base, nsets, acc, filler=None):
        for k in range(6):
            for st in range(nsets):
                r = base + 24 * st + 4 * k
                c = "0" if st == 0 else f"v[{acc[k]}:{acc[k]+3}]"
                a(f"v_mfma_f32_16x16x32_bf16 v[{acc[k]}:{acc[k]+3}], v[{84+4*st}:{87+4*st}], v[{r}:{r+3}], {c}")
                if filler:
                    for _ in range(2):
                        if filler: a(filler.pop(0))
            if k >= 2:
                kk = k - 2
                a(f"ds_write_b128 v22, v[{acc[kk]}:{acc[kk]+3}] offset:{((kk//2)*16 + (kk%2))*16}")
        while filler: a(filler.pop(0))
        for kk in (4, 5):
            a(f"ds_write_b128 v22, v[{acc[kk]}:{acc[kk]+3}] offset:{((kk//2)*16 + (kk%2))*16}")
    def reduce8_store(sout):
        a("s_mov_b64 exec, 0xffffff")
        a("s_waitcnt lgkmcnt(0)\ns_barrier")
        for p in range(8):
            a(f"ds_read_b128 v[{40+4*p}:{43+4*p}], v23 offset:{1536*p}")
        for p in range(0, 8, 2):
            a(f"s_waitcnt lgkmcnt({6-p})")
            a(f"v_pk_add_f32 v[{40+4*p}:{41+4*p}], v[{40+4*p}:{41+4*p}], v[{44+4*p}:{45+4*p}]\nv_pk_add_f32 v[{42+4*p}:{43+4*p}], v[{42+4*p}:{43+4*p}], v[{46+4*p}:{47+4*p}]")
            if p == 2 or p == 6:
                q = p - 2
                a(f"v_pk_add_f32 v[{40+4*q}:{41+4*q}], v[{40+4*q}:{41+4*q}], v[{48+4*q}:{49+4*q}]\nv_pk_add_f32 v[{42+4*q}:{43+4*q}], v[{42+4*q}:{43+4*q}], v[{50+4*q}:{51+4*q}]")
        a("v_pk_add_f32 v[40:41], v[40:41], v[56:57]\nv_pk_add_f32 v[42:43], v[42:43], v[58:59]")
        tag([40, 41, 42, 43])
        a(f"buffer_store_dwordx4 v[40:43], v39, s[64:67], {sout} offen sc1")
        a("s_mov_b64 exec, -1")
    def red_write_addr():
        a("s_mul_i32 s8, s3, 3072")
        a("v_lshrrev_b32 v14, 3, v1\nv_mul_u32_u24 v22, 1536, v14\nv_and_b32 v14, 1, v2\nv_mul_u32_u24 v14, 768, v14\nv_add_u32 v22, v22, v14\nv_and_b32 v14, 7, v1\nv_lshl_add_u32 v22, v14, 5, v22")
        a("v_add_u32 v22, s8, v22")
        a("v_lshrrev_b32 v14, 3, v1\nv_lshrrev_b32 v15, 1, v2\nv_cmp_eq_u32 vcc, v14, v15\nv_add_u32 v14, 16384, v39\nv_cndmask_b32 v22, v14, v22, vcc")
    def rec_soffset(dst, scol3, sprod, base):
        a(f"s_lshl_b32 s8, {scol3}, 1\ns_and_b32 s9, s3, 1\ns_add_u32 s8, s8, s9\ns_lshl_b32 s8, s8, 18")
        a(f"s_mul_i32 {dst}, {sprod}, 768\ns_add_u32 {dst}, {dst}, s8\ns_lshr_b32 s9, s3, 1\ns_mul_i32 s9, s9, 384\ns_add_u32 {dst}, {dst}, s9\ns_add_u32 {dst}, {dst}, {base}")
    def half8(op, r):
        a(f"{op}_dpp v{r}, v{r}, v{r} quad_perm:[1,0,3,2] row_mask:0xf bank_mask:0xf")
        a(f"{op}_dpp v{r}, v{r}, v{r} quad_perm:[2,3,0,1] row_mask:0xf bank_mask:0xf")
        a(f"{op}_dpp v{r}, v{r}, v{r} row_half_mirror row_mask:0xf bank_mask:0xf")

    T = Tbr.fork()
    a("s_mov_b32 s10, s74\ns_mov_b32 s11, s73")
    a(f"s_bfe_u32 s8, s11, 0x10001\ns_lshl_b32 s8, s8, 11\ns_add_u32 s86, s8, {WS_ML}\ns_add_u32 s86, s86, s99\ns_add_u32 s86, s86, s72")
    a("v_lshlrev_b32 v25, 7, v1")
    nwo = len(woo)
    for k in range(nwo, len(wol)):
        T.issue(wol[k], window=WE + W)
    a("s_sub_u32 s48, s10, 5\ns_and_b32 s8, s48, 15\ns_mul_i32 s87, s8, 11\ns_lshr_b32 s87, s87, 5\ns_mul_i32 s9, s87, 3\ns_sub_u32 s49, s8, s9")
    a("s_mul_i32 s12, s4, 3\ns_add_u32 s12, s12, s87")
    a("s_mul_i32 s8, s12, 192\ns_mul_i32 s9, s3, 48\ns_add_u32 s8, s8, s9\ns_mul_i32 s8, s8, 1152\ns_mul_i32 s9, s49, 384\ns_add_u32 s50, s8, s9")
    a(f"s_add_u32 s51, s50, {16*1152}\ns_add_u32 s84, s50, {32*1152}")
    srd(44, 32, 4608 * 576 * 2)
    a("s_cmp_lt_u32 s10, 5\ns_cselect_b32 s50, 0x7fff0000, s50\ns_cselect_b32 s51, 0x7fff0000, s51\ns_cselect_b32 s84, 0x7fff0000, s84")
    w2l = tile_loads(104, 44, ["s50", "s51", "s84"])
    a(f"s_mul_i32 s100, s3, {NL*2048}\ns_add_u32 s100, s100, 20480")
    for k in range(2 * NL):
        st, cb, rr = k // 6, (k % 6) // 2, k % 2
        imm = rr * 1152 + cb * 128
        a(f"s_add_u32 s101, s100, {1024*k - imm}\ns_mov_b32 m0, s101")
        T.issue(f"buffer_load_dwordx4 v236, s[44:47], {['s50','s51','s84'][st]} offen offset:{imm} nt lds", window=WE + W)
    a("v_bfe_u32 v14, v1, 2, 1\nv_lshrrev_b32 v15, 3, v1")
    a("v_lshlrev_b32 v21, 5, v14\nv_lshl_add_u32 v21, v15, 3, v21\nv_lshl_add_u32 v21, v2, 1, v21\nv_lshlrev_b32 v21, 2, v21")
    a("v_lshlrev_b32 v3, 4, v14\nv_lshl_add_u32 v3, v15, 1, v3\nv_lshrrev_b32 v14, 1, v2\nv_add_u32 v3, v3, v14\nv_and_b32 v14, 1, v2\nv_lshl_add_u32 v3, v14, 5, v3\nv_lshlrev_b32 v3, 2, v3")
    red_write_addr()
    a("s_mul_i32 s8, s3, 384\nv_add_u32 v23, s8, v39")
    rec_soffset("s85", "s80", "s11", WS_Y)
    a(f"s_lshl_b32 s8, s3, 6\ns_add_u32 s8, s8, {L_WT}\nv_lshlrev_b32 v6, 2, v1\nv_add_u32 v6, s8, v6")
    a("v_lshlrev_b32 v7, 5, v4\nv_add_u32 v7, s8, v7")
    a(f"s_lshl_b32 s83, s11, 13\ns_lshl_b32 s8, s3, 7\ns_add_u32 s83, s83, s8\ns_add_u32 s83, s83, {WS_OPART}\ns_add_u32 s83, s83, s98\ns_add_u32 s83, s83, s72")
    a("v_lshlrev_b32 v26, 12, v4\nv_lshl_add_u32 v26, v5, 2, v26")
    rec_soffset("s40", "s49", "s12", WS_OP)
    a("s_add_u32 s12, s99, s72")
    a(f"s_lshl_b32 s41, s87, 10\ns_add_u32 s41, s41, s12\ns_add_u32 s41, s41, {WS_ST}")
    a("v_and_b32 v10, 7, v0\nv_lshlrev_b32 v10, 7, v10")
    a(f"s_mul_i32 s9, s3, 192\ns_add_u32 s12, s12, s9\ns_mul_i32 s56, s87, {6*3072}\ns_add_u32 s56, s56, s12\ns_add_u32 s56, s56, {WS_G}")
    a("s_add_u32 s57, s56, 6144\ns_add_u32 s58, s56, 12288")
    a(f"s_mul_i32 s88, s87, {6*1536}\ns_add_u32 s88, s88, s12\ns_add_u32 s88, s88, {WS_S}\ns_add_u32 s89, s88, 4608")
    a("v_mul_u32_u24 v11, 768, v2\nv_lshl_add_u32 v11, v1, 4, v11")
    a("v_mul_u32_u24 v12, 768, v4\nv_lshl_add_u32 v12, v1, 4, v12")
    a("v_and_b32 v14, 1, v2\nv_cmp_eq_u32 s[42:43], 1, v14")
    a("v_readlane_b32 s8, v29, 0\nv_readlane_b32 s9, v29, 32\nv_mov_b32 v13, s8\nv_mov_b32 v14, s9\nv_cndmask_b32 v13, v13, v14, s[42:43]")
    a("s_mov_b64 s[96:97], s[62:63]")
    dst = pv_and_publish(T, lambda u: None, "L_noopE", defer=True)
    def deferred():
        a(f"s_mov_b64 exec, s[96:97]\n{dst}\ns_mov_b64 exec, -1")
    a("s_cmp_ge_u32 s10, 12\ns_cbranch_scc1 L_E_D")
    gML = Gather([("buffer_load_dwordx4 v[232:235], v25, s[64:67], s86 offen sc1", [232, 233, 234, 235])], tmp=76)
    gO = Gather([(f"buffer_load_dword v{64+s_}, v26, s[64:67], s83 offen offset:{512*s_} sc1", [64+s_]) for s_ in range(8)], tmp=76)
    a("s_cmp_lg_u32 s72, 0\ns_cbranch_scc1 L_dfr1")
    deferred()
    a.label("L_dfr1")
    gML.issue(); gO.issue()
    stamp(16)
    if not woearly: a("s_waitcnt vmcnt(9)")
    tile_swap(168)
    a("s_waitcnt vmcnt(8)")
    stamp(18)
    gML.loop()
    a("s_bitcmp1_b32 s11, 0\ns_cselect_b64 vcc, -1, 0")
    a("v_cndmask_b32 v72, v232, v234, vcc\nv_cndmask_b32 v73, v233, v235, vcc")
    a("v_mov_b32 v74, v72")
    half8("v_max_f32", 74)
    a(f"v_sub_f32 v72, v72, v74\nv_mul_f32 v72, {l2e}, v72\nv_exp_f32 v72, v72")
    a("v_mul_f32 v73, v73, v72")
    half8("v_add_f32", 73)
    a("v_rcp_f32 v73, v73")
    a("v_mul_f32 v72, v72, v73")
    a("ds_write_b32 v6, v72")
    a("s_waitcnt lgkmcnt(0)")
    a("ds_read_b128 v[88:91], v7\nds_read_b128 v[92:95], v7 offset:16")
    stamp(7)
    if prog:
        a("s_waitcnt lgkmcnt(0)")
        gO.ploop(acc=lambda k: a(f"v_mul_f32 v100, v64, v88" if k == 0 else f"v_fmac_f32 v100, v{64+k}, v{88+k}"))
        stamp(8)
        a("v_cvt_pk_bf16_f32 v100, v100, v100")
    else:
        a("s_waitcnt vmcnt(0)")
        gO.loop()
        stamp(8)
        a("s_waitcnt lgkmcnt(0)")
        a("v_mul_f32 v100, v64, v88\nv_mul_f32 v101, v65, v89")
        for s_ in range(2, 8, 2):
            a(f"v_fmac_f32 v100, v{64+s_}, v{88+s_}\nv_fmac_f32 v101, v{65+s_}, v{89+s_}")
        a("v_add_f32 v100, v100, v101\nv_cvt_pk_bf16_f32 v100, v100, v100")
    for k, off in enumerate([0, 4, 64, 68]):
        a(f"ds_bpermute_b32 v{96+k}, v21, v100 offset:{off}")
    a("s_cmp_eq_u32 s72, 0\ns_cbranch_scc1 L_dfr2")
    deferred()
    a.label("L_dfr2")
    for st in range(2):
        a(f"s_waitcnt lgkmcnt({2-2*st})")
        sel_and(st, 96+2*st, 97+2*st)
    mfma_block(168, 2, ACC)
    reduce8_store("s85")
    stamp(9)
    a("s_cmp_lt_u32 s10, 5\ns_cbranch_scc1 L_fin")
    a("s_branch L_D2")
    a.label("L_E_D")
    deferred()
    a.label("L_D2")
    T.ops = []
    for ins in w2l[2*NL:]:
        a(ins)
    a(f"s_waitcnt vmcnt({18-2*NL})")
    a("v_add_u32 v14, s100, v39")
    for k in range(NL):
        a(f"ds_read2_b64 v[{104+8*k}:{107+8*k}], v14 offset0:0 offset1:128\nds_read2_b64 v[{108+8*k}:{111+8*k}], v14 offset0:1 offset1:129")
        if k < NL - 1: a("v_add_u32 v14, 2048, v14")
    M12 = (0x0fff0fff, 0x0fff0fff)
    gS = Gather([(f"buffer_load_dwordx4 v[{176+4*rg}:{179+4*rg}], v12, s[64:67], s{88+rg//3} offen offset:{1536*(rg%3)} sc1", list(range(176+4*rg, 180+4*rg))) for rg in range(6)], base=[M12]*6, tmp=76)
    gG = Gather([("buffer_load_dwordx4 v[224:227], v10, s[64:67], s41 offen sc1", [224, 225, 226, 227])] +
                [(f"buffer_load_dwordx4 v[{200+4*rg}:{203+4*rg}], v11, s[64:67], s{56+rg//2} offen offset:{3072*(rg%2)} sc1", list(range(200+4*rg, 204+4*rg))) for rg in range(6)],
                base=[(0x3f3f3f3f, 0x3f3f3f3f)] + [M12]*6, tmp=76)
    a("v_mov_b32 v224, 0\nv_mov_b32 v225, 0\nv_mov_b32 v226, 0\nv_mov_b32 v227, 0")
    if dj:
        a(f"s_waitcnt vmcnt({dj})")
        gS.issue(); gG.issue()
        a("s_barrier")
        a("s_waitcnt vmcnt(13)")
        stamp(10)
        tile_swap(104 + 8*NL, 9 - NL)
        a("s_waitcnt vmcnt(7)")
        gS.loop()
    else:
        a("s_waitcnt vmcnt(0)")
        gS.issue()
        a("s_barrier")
        stamp(10)
        tile_swap(104 + 8*NL, 9 - NL)
        a("s_waitcnt vmcnt(0)")
        gS.loop()
        gG.issue()
    def sum6(b0, d):
        L = []
        for h in (0, 2):
            L += [f"v_pk_add_f32 v[{b0+h}:{b0+h+1}], v[{b0+h}:{b0+h+1}], v[{b0+4+h}:{b0+5+h}]",
                  f"v_pk_add_f32 v[{b0+8+h}:{b0+9+h}], v[{b0+8+h}:{b0+9+h}], v[{b0+12+h}:{b0+13+h}]",
                  f"v_pk_add_f32 v[{b0+16+h}:{b0+17+h}], v[{b0+16+h}:{b0+17+h}], v[{b0+20+h}:{b0+21+h}]"]
        for h in (0, 2):
            L += [f"v_pk_add_f32 v[{b0+h}:{b0+h+1}], v[{b0+h}:{b0+h+1}], v[{b0+8+h}:{b0+9+h}]"]
        for h in (0, 2):
            L += [f"v_pk_add_f32 v[{d+h}:{d+h+1}], v[{b0+h}:{b0+h+1}], v[{b0+16+h}:{b0+17+h}]"]
        return L
    for ins in sum6(176, 68): a(ins)
    a("v_permlane32_swap_b32 v68, v70\nv_permlane32_swap_b32 v69, v71")
    stamp(11); cnt_stamp(24)
    if prog:
        def accG(k):
            if k == 0:
                a("s_mov_b64 exec, -1")
                a("v_cndmask_b32 v72, v224, v226, s[42:43]\nv_cndmask_b32 v73, v225, v227, s[42:43]")
                row_allreduce("v_add_f32", [72, 73], steps=(4, 2, 1))
                a(f"v_mul_f32 v72, {float_lit(1/576)}, v72\nv_mul_f32 v73, {float_lit(1/576)}, v73")
            elif k == 2:
                a("v_pk_add_f32 v[64:65], v[200:201], v[204:205]\nv_pk_add_f32 v[66:67], v[202:203], v[206:207]")
            elif k > 2:
                b0 = 200 + 4 * (k - 1)
                a(f"v_pk_add_f32 v[64:65], v[64:65], v[{b0}:{b0+1}]\nv_pk_add_f32 v[66:67], v[66:67], v[{b0+2}:{b0+3}]")
        gG.ploop(acc=accG)
        stamp(12); cnt_stamp(25)
    else:
        a("s_waitcnt vmcnt(0)")
        stamp(20)
        selloop(gG) if sel & 4 else gG.loop()
        stamp(12); cnt_stamp(25)
        sq = sum6(200, 64)
        a("v_cndmask_b32 v72, v224, v226, s[42:43]\nv_cndmask_b32 v73, v225, v227, s[42:43]")
        for i, stp in enumerate((4, 2, 1)):
            a(sq[2*i]); a(sq[2*i+1])
            a(f"v_add_f32_dpp v72, v72, v72 row_ror:{stp} row_mask:0xf bank_mask:0xf\nv_add_f32_dpp v73, v73, v73 row_ror:{stp} row_mask:0xf bank_mask:0xf")
        a(sq[6]); a(sq[7])
        a(f"v_mul_f32 v72, {float_lit(1/576)}, v72\nv_mul_f32 v73, {float_lit(1/576)}, v73")
        a(sq[8]); a(sq[9])
    a("v_fma_f32 v73, -v72, v72, v73\nv_add_f32 v72, v72, v13\nv_max_f32 v73, 0, v73")
    a("v_permlane32_swap_b32 v64, v66\nv_permlane32_swap_b32 v65, v67")
    a("v_cvt_pk_bf16_f32 v74, v73, v72\nv_lshlrev_b32 v73, 16, v74\nv_and_b32 v72, 0xffff0000, v74")
    a(f"v_add_f32 v73, {float_lit(1e-5)}, v73")
    bf16r(73, 73)
    a("v_sqrt_f32 v73, v73")
    for r in range(4):
        a(f"v_fma_f32 v{64+r}, -v72, v{68+r}, v{64+r}")
    bf16r(73, 73)
    a("v_rcp_f32 v73, v73")
    for r in range(4):
        a(f"v_mul_f32 v{64+r}, v{64+r}, v73")
    a("v_cvt_pk_bf16_f32 v68, v64, v65\nv_cvt_pk_bf16_f32 v69, v66, v67")
    a("v_lshlrev_b32 v64, 16, v68\nv_and_b32 v65, 0xffff0000, v68\nv_lshlrev_b32 v66, 16, v69\nv_and_b32 v67, 0xffff0000, v69")
    nl = float_lit(-1.4426950408889634)
    a(f"v_mul_f32 v68, {nl}, v64\nv_mul_f32 v69, {nl}, v65\nv_exp_f32 v68, v68\nv_exp_f32 v69, v69")
    a("v_add_f32 v68, 1.0, v68\nv_add_f32 v69, 1.0, v69\nv_rcp_f32 v68, v68\nv_rcp_f32 v69, v69")
    a("v_mul_f32 v64, v64, v68\nv_mul_f32 v65, v65, v69")
    a("v_cvt_pk_bf16_f32 v68, v64, v65\nv_lshlrev_b32 v64, 16, v68\nv_and_b32 v65, 0xffff0000, v68")
    a("v_mul_f32 v64, v64, v66\nv_mul_f32 v65, v65, v67")
    a("v_cvt_pk_bf16_f32 v102, v64, v64\nv_cvt_pk_bf16_f32 v103, v65, v65")
    for st in range(3):
        a(f"ds_bpermute_b32 v{96+2*st}, v3, v102 offset:{16*st}\nds_bpermute_b32 v{97+2*st}, v3, v103 offset:{16*st}")
    for st in range(3):
        a(f"s_waitcnt lgkmcnt({4-2*st})")
        sel_and(st, 96+2*st, 97+2*st)
    mfma_block(104, 3, ACC)
    reduce8_store("s40")
    stamp(13)
    a("s_branch L_fin")

    a.label("L_F")
    T = Tbr.fork()
    a("s_mul_i32 s10, s5, 11\ns_lshr_b32 s10, s10, 5\ns_cmp_eq_u32 s5, 17\ns_cselect_b32 s10, 5, s10\ns_cmp_eq_u32 s5, 14\ns_cselect_b32 s10, 4, s10")
    a("s_mul_i32 s8, s10, 3\ns_sub_u32 s11, s5, s8")
    a("s_cmp_ge_u32 s3, 2\ns_cselect_b32 s56, s30, s28\ns_cselect_b32 s57, s31, s29\ns_and_b32 s57, s57, 0xffff")
    a(f"s_mov_b32 s58, {576*4608*2}\ns_mov_b32 s59, 0x00020000")
    a("v_lshrrev_b32 v20, 3, v1\nv_lshlrev_b32 v20, 3, v20\nv_lshl_add_u32 v20, v2, 1, v20\nv_mul_u32_u24 v20, 9216, v20\nv_and_b32 v14, 7, v1\nv_lshl_add_u32 v20, v14, 4, v20")
    a("s_mul_i32 s12, s4, 3\ns_add_u32 s12, s12, s11")
    a("s_mul_i32 s8, s10, 96\ns_and_b32 s9, s3, 1\ns_mul_i32 s9, s9, 48\ns_add_u32 s8, s8, s9\ns_mul_i32 s81, s8, 9216\ns_mul_i32 s9, s12, 384\ns_add_u32 s81, s81, s9")
    gl = []
    def gload(t, window):
        st, rr, cb = t // 6, (t % 6) // 3, t % 3
        r = 168 + 24 * st + 8 * cb + 4 * rr
        gl.append(T.issue(f"buffer_load_dwordx4 v[{r}:{r+3}], v20, s[56:59], s81 offen offset:{128*cb} nt", window=window))
        if cb == 2: a(f"s_add_u32 s81, s81, {9216 if rr == 0 else 15*9216}")
    a("v_mul_u32_u24 v21, 1152, v4\nv_lshl_add_u32 v21, v5, 3, v21\ns_mul_i32 s8, s10, 192")
    xres = T.issue("buffer_load_dwordx2 v[26:27], v21, s[68:71], s8 offen")
    a(f"s_lshl_b32 s80, s10, 18\ns_mul_i32 s82, s3, {8*768}\ns_add_u32 s82, s82, s80\ns_add_u32 s82, s82, {WS_Y}\ns_add_u32 s83, s82, 3072")
    a("v_mul_u32_u24 v21, 384, v4\nv_lshl_add_u32 v21, v5, 4, v21")
    red_write_addr()
    a(f"s_lshl_b32 s8, s3, 10\ns_add_u32 s8, s8, {L_RED2}\nv_add_u32 v16, s8, v39")
    a("s_lshr_b32 s8, s3, 1\ns_mul_i32 s8, s8, 6144\ns_and_b32 s9, s3, 1\ns_mul_i32 s9, s9, 768\ns_add_u32 s8, s8, s9\nv_add_u32 v23, s8, v39")
    a(f"s_mul_i32 s84, s3, 768\ns_add_u32 s84, s84, {L_XT}\nv_add_u32 v17, s84, v21")
    a("v_bfe_u32 v14, v1, 2, 1\nv_mul_u32_u24 v24, 384, v14\nv_lshrrev_b32 v14, 3, v1\nv_lshl_add_u32 v24, v14, 5, v24\nv_lshl_add_u32 v24, v2, 3, v24")
    a("s_and_b32 s9, s3, 1\ns_mul_i32 s9, s9, 192\ns_add_u32 s9, s9, s84\nv_add_u32 v24, s9, v24")
    a(f"v_add_u32 v25, {L_H}, v21")
    a("s_mul_i32 s8, s11, 6\ns_add_u32 s8, s8, s10")
    a(f"s_mul_i32 s85, s8, 3072\ns_mul_i32 s9, s3, 768\ns_add_u32 s85, s85, s9\ns_add_u32 s85, s85, s99\ns_add_u32 s85, s85, {WS_G}")
    a(f"s_mul_i32 s87, s8, 1536\ns_lshr_b32 s9, s3, 1\ns_mul_i32 s9, s9, 768\ns_add_u32 s87, s87, s9\ns_add_u32 s87, s87, s99\ns_add_u32 s87, s87, {WS_S}")
    a(f"s_lshl_b32 s86, s11, 10\ns_lshl_b32 s9, s10, 7\ns_add_u32 s86, s86, s9\ns_add_u32 s86, s86, s99\ns_add_u32 s86, s86, {WS_ST}")
    a("v_and_b32 v10, 0x3f803f80, v36\nv_and_b32 v11, 0x3f803f80, v37\nv_mov_b32 v12, v10\nv_mov_b32 v13, v11")
    srd(72, 34, 2304)
    a(f"s_lshl_b32 s9, s12, 5\ns_add_u32 s40, s80, s9\ns_add_u32 s40, s40, {WS_OP}\ns_add_u32 s41, s40, {8*768}\ns_add_u32 s42, s40, {16*768}")
    a("v_lshrrev_b32 v14, 3, v0\nv_mul_u32_u24 v7, 768, v14\nv_and_b32 v14, 7, v0\nv_lshl_add_u32 v7, v14, 2, v7")
    a(f"s_add_u32 s8, s9, {L_H}\nv_lshlrev_b32 v8, 2, v14\nv_add_u32 v8, s8, v8")
    a("s_cmp_ge_u32 s12, 12\ns_cselect_b32 s43, 480, 0\ns_mul_i32 s8, s10, 96\ns_add_u32 s43, s43, s8\ns_lshl_b32 s8, s12, 3\ns_add_u32 s43, s43, s8\ns_lshl_b32 s43, s43, 1")
    a("v_lshlrev_b32 v3, 1, v14")
    ng = [0]
    def betweenF(u):
        if u >= 16 - WFP and ng[0] < 18:
            gload(ng[0], None); ng[0] += 1
    pv_and_publish(T, betweenF, "L_noopF")
    if gate:
        a("s_cmp_eq_u32 s61, 0\ns_cbranch_scc1 L_gate_done\nv_lshlrev_b32 v14, 2, v5")
        a.label("L_gate")
        a("buffer_load_dword v15, v14, s[64:67], s60 offen sc1\ns_waitcnt vmcnt(0)")
        a("v_cmp_ne_u32 vcc, s78, v15\ns_cbranch_vccz L_gate_done")
        a(f"s_add_u32 s79, s79, 1\ns_cmp_lt_u32 s79, {POLL_MAX}\ns_cbranch_scc1 L_gate")
        a.label("L_gate_done")
    while ng[0] < 18:
        gload(ng[0], WF); ng[0] += 1
    stamp(7)
    M24 = (0xffffff, 0xffffff)
    gY = Gather([(f"buffer_load_dwordx4 v[{104+4*k}:{107+4*k}], v21, s[64:67], {'s82' if k < 4 else 's83'} offen offset:{768*(k%4)} sc1", list(range(104+4*k, 108+4*k))) for k in range(8)],
                base=[M24] * 8, tmp=76)
    T.wait(xres)
    a("v_lshlrev_b32 v100, 16, v26\nv_and_b32 v101, 0xffff0000, v26\nv_lshlrev_b32 v102, 16, v27\nv_and_b32 v103, 0xffff0000, v27")
    SACC = [40, 44, 48, 52, 56, 60]
    for st in range(3):
        for cb in range(3):
            if st == 2 and cb == YCB: gY.issue(T)
            T.wait(gl[6*st + 3 + cb])
            r = 168 + 24 * st + 8 * cb
            a(f"v_swap_b32 v{r+2}, v{r+4}\nv_swap_b32 v{r+3}, v{r+5}")
            for hf in range(2):
                k = 2 * cb + hf
                c = "0" if st == 0 else f"v[{SACC[k]}:{SACC[k]+3}]"
                a(f"v_mfma_f32_16x16x32_bf16 v[{SACC[k]}:{SACC[k]+3}], v[10:13], v[{r+4*hf}:{r+4*hf+3}], {c}")
    if YCB >= 3: gY.issue(T)
    stamp(17)
    for k in range(6):
        a(f"ds_write_b128 v22, v[{SACC[k]}:{SACC[k]+3}] offset:{((k//2)*16 + (k%2))*16}")
    def reduce4(r):
        a("s_mov_b32 exec_lo, -1\ns_mov_b32 exec_hi, 0xffff")
        for p in range(4):
            a(f"ds_read_b128 v[{r+4*p}:{r+4*p+3}], v23 offset:{1536*p}")
        a("s_waitcnt lgkmcnt(2)")
        a(f"v_pk_add_f32 v[{r}:{r+1}], v[{r}:{r+1}], v[{r+4}:{r+5}]\nv_pk_add_f32 v[{r+2}:{r+3}], v[{r+2}:{r+3}], v[{r+6}:{r+7}]")
        a("s_waitcnt lgkmcnt(0)")
        a(f"v_pk_add_f32 v[{r+8}:{r+9}], v[{r+8}:{r+9}], v[{r+12}:{r+13}]\nv_pk_add_f32 v[{r+10}:{r+11}], v[{r+10}:{r+11}], v[{r+14}:{r+15}]")
        a(f"v_pk_add_f32 v[{r}:{r+1}], v[{r}:{r+1}], v[{r+8}:{r+9}]\nv_pk_add_f32 v[{r+2}:{r+3}], v[{r+2}:{r+3}], v[{r+10}:{r+11}]")
        tag([r, r+1, r+2, r+3])
    a("s_waitcnt lgkmcnt(0)\ns_barrier")
    a("s_bitcmp1_b32 s3, 0\ns_cbranch_scc1 L_noS")
    reduce4(136)
    a(f"s_add_u32 s101, s87, {LOCOFF}\nbuffer_store_dwordx4 v[136:139], v39, s[64:67], s101 offen")
    a("s_mov_b64 exec, -1")
    a("s_waitcnt vmcnt(1)\ns_branch L_S1")
    a.label("L_noS")
    a("s_waitcnt vmcnt(0)")
    a.label("L_S1")
    T.ops = []
    if prog:
        def accY(k):
            b0 = 104 + 4 * k
            if k == 1: a("v_pk_add_f32 v[40:41], v[104:105], v[108:109]\nv_pk_add_f32 v[42:43], v[106:107], v[110:111]")
            elif k > 1: a(f"v_pk_add_f32 v[40:41], v[40:41], v[{b0}:{b0+1}]\nv_pk_add_f32 v[42:43], v[42:43], v[{b0+2}:{b0+3}]")
        gY.ploop(acc=accY)
        stamp(8)
    else:
        selloop(gY) if sel & 2 else gY.loop()
        stamp(8)
        for k in range(0, 8, 2):
            a(f"v_pk_add_f32 v[{104+4*k}:{105+4*k}], v[{104+4*k}:{105+4*k}], v[{108+4*k}:{109+4*k}]\nv_pk_add_f32 v[{106+4*k}:{107+4*k}], v[{106+4*k}:{107+4*k}], v[{110+4*k}:{111+4*k}]")
        for k in (0, 4):
            a(f"v_pk_add_f32 v[{104+4*k}:{105+4*k}], v[{104+4*k}:{105+4*k}], v[{112+4*k}:{113+4*k}]\nv_pk_add_f32 v[{106+4*k}:{107+4*k}], v[{106+4*k}:{107+4*k}], v[{114+4*k}:{115+4*k}]")
        a("v_pk_add_f32 v[40:41], v[104:105], v[120:121]\nv_pk_add_f32 v[42:43], v[106:107], v[122:123]")
    a("ds_write_b128 v16, v[40:43]")
    a("s_waitcnt lgkmcnt(0)\ns_barrier")
    stamp(18)
    for k in range(4):
        a(f"ds_read_b128 v[{40+4*k}:{43+4*k}], v19 offset:{1024*k}")
    a("s_waitcnt lgkmcnt(2)")
    a("v_pk_add_f32 v[40:41], v[40:41], v[44:45]\nv_pk_add_f32 v[42:43], v[42:43], v[46:47]")
    a("s_waitcnt lgkmcnt(0)")
    a("v_pk_add_f32 v[48:49], v[48:49], v[52:53]\nv_pk_add_f32 v[50:51], v[50:51], v[54:55]")
    a("v_pk_add_f32 v[40:41], v[40:41], v[48:49]\nv_pk_add_f32 v[42:43], v[42:43], v[50:51]")
    a("v_cvt_pk_bf16_f32 v44, v40, v41\nv_cvt_pk_bf16_f32 v45, v42, v43")
    a("v_lshlrev_b32 v40, 16, v44\nv_and_b32 v41, 0xffff0000, v44\nv_lshlrev_b32 v42, 16, v45\nv_and_b32 v43, 0xffff0000, v45")
    a("v_pk_add_f32 v[40:41], v[40:41], v[100:101]\nv_pk_add_f32 v[42:43], v[42:43], v[102:103]")
    for r in range(4):
        a(f"v_cvt_pk_bf16_f32 v{48+r}, v{40+r}, v{40+r}")
    a("s_mov_b32 exec_lo, 0xffffff\ns_mov_b32 exec_hi, 0xffffff")
    a("ds_write_b128 v17, v[48:51]")
    a("s_mov_b64 exec, -1")
    a("s_waitcnt lgkmcnt(0)")
    for st in range(3):
        a(f"ds_read_b64 v[{96+2*st}:{97+2*st}], v24 offset:{64*st}")
    for r in range(4):
        a(f"v_and_b32 v{60+r}, 0xffff0000, v{48+r}")
    for st in range(3):
        a(f"s_waitcnt lgkmcnt({2-st})")
        sel_and(st, 96+2*st, 97+2*st)
    stamp(19)
    def stats_block():
        a("s_cmp_lg_u32 s3, 3\ns_cbranch_scc1 L_nost")
        for r in range(4):
            a(f"v_sub_f32 v{44+r}, v{60+r}, v29")
        a("v_add_f32 v52, v44, v45\nv_add_f32 v53, v46, v47\nv_mul_f32 v54, v44, v44\nv_mul_f32 v55, v45, v45")
        a("v_fmac_f32 v54, v46, v46\nv_fmac_f32 v55, v47, v47\nv_add_f32 v52, v52, v53\nv_add_f32 v53, v54, v55")
        a("v_cmp_gt_u32 vcc, 24, v5\nv_cndmask_b32 v52, 0, v52, vcc\nv_cndmask_b32 v53, 0, v53, vcc")
        row_allreduce("v_add_f32", [52, 53])
        swap_reduce("v_add_f32", [52, 53], [54, 55], 16)
        a("v_mov_b32 v54, v52\nv_mov_b32 v55, v53")
        a("v_permlane32_swap_b32 v52, v54\nv_permlane32_swap_b32 v53, v55")
        tag([52, 53, 54, 55])
        a("s_mov_b64 exec, 0xff")
        a(f"s_add_u32 s101, s86, {LOCOFF}\nbuffer_store_dwordx4 v[52:55], v39, s[64:67], s101 offen\nbuffer_store_dwordx4 v[52:55], v39, s[64:67], s86 offen sc1")
        a("s_mov_b64 exec, -1")
        a.label("L_nost")
    mfma_block(168, 3, ACC, filler=stat_fill() if stearly == 2 else None)
    if stearly == 1: stats_block()
    if stearly == 2:
        a("s_cmp_lg_u32 s3, 3\ns_cbranch_scc1 L_nost\ns_mov_b64 exec, 0xff")
        a(f"s_add_u32 s101, s86, {LOCOFF}\nbuffer_store_dwordx4 v[52:55], v39, s[64:67], s101 offen\nbuffer_store_dwordx4 v[52:55], v39, s[64:67], s86 offen sc1")
        a("s_mov_b64 exec, -1")
        a.label("L_nost")
    a("s_waitcnt lgkmcnt(0)\ns_barrier")
    reduce4(104)
    a(f"s_add_u32 s101, s85, {LOCOFF}\nbuffer_store_dwordx4 v[104:107], v39, s[64:67], s101 offen")
    a("s_mov_b64 exec, -1")
    stamp(9)
    if not stearly: stats_block()
    a("s_mov_b32 exec_lo, -1\ns_mov_b32 exec_hi, 0xffff")
    a("buffer_store_dwordx4 v[104:107], v39, s[64:67], s85 offen sc1")
    a("s_bitcmp1_b32 s3, 0\ns_cbranch_scc1 L_fin")
    a("buffer_store_dwordx4 v[136:139], v39, s[64:67], s87 offen sc1")
    a("s_cmp_lg_u32 s3, 0\ns_cbranch_scc1 L_fin")
    a("s_mov_b32 exec_lo, 0xffffff\ns_mov_b32 exec_hi, 0xffffff")
    a("ds_write_b128 v25, v[60:63]")
    a("s_mov_b64 exec, -1")
    a("s_waitcnt lgkmcnt(0)\nds_read_b32 v64, v8")
    gR = Gather([(f"buffer_load_dword v{48+i}, v7, s[64:67], s{40+i} offen sc1", [48+i]) for i in range(3)], tmp=76)
    gR.issue()
    a("s_waitcnt vmcnt(0)")
    selloop(gR) if sel & 8 else gR.loop()
    stamp(12)
    a("v_add_f32 v40, v48, v49\nv_add_f32 v40, v40, v50")
    row_allreduce("v_add_f32", [40], steps=(8,))
    swap_reduce("v_add_f32", [40], [41], 16)
    swap_reduce("v_add_f32", [40], [41], 32)
    bf16r(40, 40)
    a("s_waitcnt lgkmcnt(0)")
    a("v_add_f32 v40, v40, v64\nv_cvt_pk_bf16_f32 v40, v40, v40")
    a("s_mov_b64 exec, 0xff")
    a("buffer_store_short v40, v3, s[72:75], s43 offen")
    a("s_cmp_lg_u32 s2, 0\ns_cbranch_scc1 L_fin")
    a("s_mov_b64 exec, 1\nv_mov_b32 v41, s78\nv_mov_b32 v42, 0")
    a("buffer_store_dword v41, v42, s[64:67], 0 offen sc1")
    a.label("L_fin")
    if dbgtime:
        a("s_mov_b64 exec, 1\ns_memrealtime s[16:17]\ns_waitcnt lgkmcnt(0)")
        a("v_mov_b32 v1, 0\nv_mov_b32 v2, s16\nv_not_b32 v3, v31\nv_sub_u32 v4, v2, v31")
        a("global_atomic_umax v1, v2, s[90:91]\nglobal_atomic_umax v1, v3, s[90:91] offset:4\nglobal_atomic_umax v1, v4, s[90:91] offset:8")
        a("global_atomic_umax v1, v31, s[90:91] offset:12")
    if stamps:
        a("s_mov_b64 exec, -1")
        stamp(14)
        a(f"v_writelane_b32 v31, s79, 15")
        a(f"s_lshl_b32 s8, s2, 2\ns_add_u32 s8, s8, s3\ns_lshl_b32 s8, s8, 8\ns_add_u32 s8, s8, {WS_STAMP}")
        a("buffer_store_dword v31, v9, s[64:67], s8 offen")
    a.label("L_end")
    a("s_endpgm")
    L, n = hazard.fix(a.L)
    if ldnt: L = [l.replace(" sc1", " sc1 nt") if "buffer_load" in l else l for l in L]
    if stnt: L = [l.replace(" sc1", " sc1 nt") if "buffer_store" in l else l for l in L]
    body = "\n".join(L) + "\n"
    if codepf:
        body = body.replace("    .CODEPF_GUARD\n",
            "    s_cmp_ge_u32 s8, (L_end - " + NAME + "_kernel)\n    s_cbranch_scc1 L_nopf\n"
            "    v_add_u32 v31, s8, v3\n" if False else
            "    v_add_u32 v4, s8, v3\n"
            "    v_cmp_gt_u32 vcc, (L_end - " + NAME + "_kernel - 64), v4\n"
            "    s_and_saveexec_b64 s[100:101], vcc\n"
            "    s_cbranch_execz L_nopf\n"
            "    global_load_dword v255, v3, s[98:99]\n"
            "L_nopf:\n"
            "    s_mov_b64 exec, -1\n")
    lds = max(L_END, lds_force)
    return wrap(body, 256, 256, lds, 304 if w2early else 256, accum=256)

import struct
def float_lit(x):
    return "0x%08x" % struct.unpack("<I", struct.pack("<f", x))[0]

if __name__ == "__main__":
    out = sys.argv[1] if len(sys.argv) > 1 else "k.s"
    kw = {}
    for arg in sys.argv[2:]:
        k, v = arg.split("=")
        kw[k] = int(v)
    open(out, "w").write(gen(**kw))
    print("wrote", out, "LDS", L_END, "WS_END", hex(WS_END))
```

```python
import sys, copy
from asmlib import *
import hazard

WS_EPOCH = 0
WS0 = 0x40000
XR = 0x40000
WS_QP = WS0
WS_OPART = WS0 + 0x8000
WS_ML = WS0 + 0x10000
WS_Y = WS0 + 0x11000
WS_OP = WS0 + 0x17000
WS_G = WS0 + 0x1E000
WS_S = WS0 + 0x2C000
WS_ST = WS0 + 0x33000
WS_XID = WS0 + 0x3E000
WS_GD = 0x2000
LOCOFF = 0 * XR
WS_END = WS0 + 16 * XR
WS_STAMP = 0x8000000

L_K = 0
L_RED = 0
L_RED2 = 65536
L_XN = L_RED2 + 4096
L_QB = L_XN + 4 * 768
L_PT = L_QB + 512
L_MX = L_PT + 2048
L_XT = L_MX + 128
L_WT = L_XT + 4 * 768
L_H = L_WT + 256
L_YS = L_H + 768
L_END = L_YS + 64

TAGMASK = 0x3FF
POLL_MAX = 4000000

class Tracker:
    def __init__(self, a):
        self.a = a; self.ops = []; self.n = 0
    def issue(self, ins, cond=False, window=None):
        if window is not None:
            cnt = sum(1 for (_, c) in self.ops if not c)
            if cnt >= window:
                self.a(f"s_waitcnt vmcnt({window-1})")
                self._retire_to(window - 1)
        self.a(ins)
        self.n += 1
        self.ops.append((self.n, cond))
        return self.n
    def _retire_to(self, k):
        keep = []; c = 0
        for op in reversed(self.ops):
            if c >= k: break
            keep.append(op)
            if not op[1]: c += 1
        self.ops = list(reversed(keep))
    def wait(self, opid):
        ids = [o for (o, _) in self.ops]
        if opid not in ids: return
        after = sum(1 for (o, c) in self.ops if o > opid and not c)
        self.a(f"s_waitcnt vmcnt({min(after, 63)})")
        self.ops = [(o, c) for (o, c) in self.ops if o > opid]
    def drain(self):
        self.a("s_waitcnt vmcnt(0)"); self.ops = []
    def fork(self):
        t = Tracker(self.a); t.ops = list(self.ops); t.n = self.n; return t

def gen(W=6, WE=12, WF=6, WFP=2, WE2=10, NK0=6, NKQ=0, NV0=6, WVT=10, dual=1, mlearly=0, woearly=1, WOW=2, w2early=0, fearly=0, ack=0, tlb=0, YCB=3, NL=0, stearly=2, dj=3, prog=1, gate=0, USIG=12, GMAX=16, ygate=0, locnt=0, G1=0, sel=0, db=0, fdelay=0, loc=1, dfr=2, mlat=0, XK=2, XV=2, pretouch=0, psleep=0, dbgtime=0, ldnt=0, stnt=0, stsleep=0, stamps=False, lds_force=0, codepf=True):
    a = Asm()
    T = Tracker(a)
    nst = [0]
    def cnt_stamp(i):
        if stamps: a(f"v_writelane_b32 v31, s79, {i}")
    def stamp(i):
        if stamps:
            a(f"s_memrealtime s[90:91]\ns_waitcnt lgkmcnt(0)\nv_writelane_b32 v31, s90, {i}")
    def srd(d, p, size):
        a(f"s_mov_b32 s{d}, s{p}\ns_and_b32 s{d+1}, s{p+1}, 0xffff\ns_mov_b32 s{d+2}, {size}\ns_mov_b32 s{d+3}, 0x00020000")
    def row_allreduce(op, regs, tmp=None, steps=(8, 4, 2, 1)):
        for st in steps:
            for r in regs:
                a(f"{op}_dpp v{r}, v{r}, v{r} row_ror:{st} row_mask:0xf bank_mask:0xf")
    def swap_reduce(op, regs, tmps, which):
        for r, t in zip(regs, tmps):
            a(f"v_mov_b32 v{t}, v{r}")
        for r, t in zip(regs, tmps):
            a(f"v_permlane{which}_swap_b32 v{r}, v{t}")
        for r, t in zip(regs, tmps):
            a(f"{op} v{r}, v{r}, v{t}")
    def bf16r(dst, src):
        a(f"v_cvt_pk_bf16_f32 v{dst}, v{src}, v{src}\nv_and_b32 v{dst}, 0xffff0000, v{dst}")
    def tag(regs, q=False):
        for r in regs:
            a(f"v_bfi_b32 v{r}, {'63' if q else 's77'}, v30, v{r}")
    def untag(regs, acc, first=True, q=False):
        for r in regs:
            a(f"v_xor_b32 v{r}, {'s75' if q else 'v30'}, v{r}")
        rs = list(regs)
        if first:
            if len(rs) >= 2:
                a(f"v_or_b32 v{acc}, v{rs[0]}, v{rs[1]}"); rs = rs[2:]
            else:
                a(f"v_mov_b32 v{acc}, v{rs[0]}"); rs = rs[1:]
        while len(rs) >= 2:
            a(f"v_or3_b32 v{acc}, v{acc}, v{rs[0]}, v{rs[1]}"); rs = rs[2:]
        if rs:
            a(f"v_or_b32 v{acc}, v{acc}, v{rs[0]}")
    def check_retry(acc, retry_label, code, q=False):
        ok = a.newlabel("L_ok")
        a(f"v_and_b32 v{acc}, {'63' if q else 's77'}, v{acc}\nv_cmp_ne_u32 vcc, 0, v{acc}")
        a(f"s_cbranch_vccz {ok}")
        a(f"s_add_u32 s79, s79, 1\ns_cmp_lt_u32 s79, {POLL_MAX}\ns_cbranch_scc1 {retry_label}")
        a.label(ok)

    def pub(ins):
        l = a.newlabel("L_pub")
        a(ins)
        a(f"s_cmp_lg_u32 s61, 0\ns_cbranch_scc1 {l}")
        a(ins + " sc1")
        a.label(l)
    def publish(Tk, ins, cond=False, local=False, defer=False):
        if local:
            l = a.newlabel("L_pub")
            Tk.issue(ins, cond=cond)
            a(f"s_cmp_lg_u32 s61, 0\ns_cbranch_scc1 {l}")
            Tk.issue(ins + " sc1", cond=True)
            a.label(l)
        else:
            Tk.issue(ins + " sc1", cond=cond)
    class Gather:
        def __init__(g, loads, masks=None, base=None, tmp=None, q=False):
            g.loads = loads; g.tmp = tmp; g.q = q
            g.base = base or [(-1, -1)] * len(loads)
        def issue(g, Tk=None):
            cur = (-1, -1); ids = []
            for (ins, _), b in zip(g.loads, g.base):
                if b != cur:
                    a(f"s_mov_b32 exec_lo, {b[0]}\ns_mov_b32 exec_hi, {b[1]}"); cur = b
                if Tk: ids.append(Tk.issue(ins))
                else: a(ins)
            if cur != (-1, -1): a("s_mov_b64 exec, -1")
            return ids
        def check(g):
            mk = '63' if g.q else 's77'
            groups = []
            for (ins, regs), b in zip(g.loads, g.base):
                if groups and groups[-1][0] == b: groups[-1][1].extend(regs)
                else: groups.append((b, list(regs)))
            first = True
            if groups[0][0] != (-1, -1):
                a(f"v_mov_b32 v{g.tmp}, 0")
            for b, regs in groups:
                if b != (-1, -1): a(f"s_mov_b32 exec_lo, {b[0]}\ns_mov_b32 exec_hi, {b[1]}")
                untag(regs, g.tmp, first=first, q=g.q); first = False
                if b != (-1, -1): a("s_mov_b64 exec, -1")
            a(f"v_and_b32 v{g.tmp}, {mk}, v{g.tmp}\nv_cmp_ne_u32 vcc, 0, v{g.tmp}")
        def ploop(g, acc=None, young=0):
            n = len(g.loads)
            lc = a.newlabel("L_pc"); ld = a.newlabel("L_pd"); lr = a.newlabel("L_pr")
            if young:
                a(f"s_waitcnt vmcnt({young})")
            a(f"s_branch {lc}")
            a.label(lr)
            g.issue()
            a.label(lc)
            if g.base[0] != (-1, -1): a(f"v_mov_b32 v{g.tmp}, 0")
            cur = (-1, -1)
            for k, ((ins, regs), b) in enumerate(zip(g.loads, g.base)):
                if b != cur:
                    a(f"s_mov_b32 exec_lo, {b[0]}\ns_mov_b32 exec_hi, {b[1]}"); cur = b
                a(f"s_waitcnt vmcnt({min(63, n - 1 - k + young)})" if False else f"s_waitcnt vmcnt({n - 1 - k})" if not young else f"s_waitcnt vmcnt({max(n - 1 - k, 0)})")
                untag(regs, g.tmp, first=(k == 0), q=g.q)
                if acc: acc(k)
            if cur != (-1, -1): a("s_mov_b64 exec, -1")
            a(f"v_and_b32 v{g.tmp}, {'63' if g.q else 's77'}, v{g.tmp}\nv_cmp_ne_u32 vcc, 0, v{g.tmp}")
            a(f"s_cbranch_vccz {ld}")
            a(f"s_add_u32 s79, s79, 1\ns_cmp_lt_u32 s79, {POLL_MAX}\ns_cbranch_scc1 {lr}")
            a.label(ld)
        def loop(g, sleep=0):
            lc = a.newlabel("L_gc"); ld = a.newlabel("L_gd"); lr = a.newlabel("L_gr")
            a(f"s_branch {lc}")
            a.label(lr)
            if sleep or psleep: a(f"s_sleep {max(sleep, psleep)}")
            g.issue()
            a("s_waitcnt vmcnt(0)")
            a.label(lc)
            g.check()
            a(f"s_cbranch_vccz {ld}")
            a(f"s_add_u32 s79, s79, 1\ns_cmp_lt_u32 s79, {POLL_MAX}\ns_cbranch_scc1 {lr}")
            a.label(ld)
    def selloop(g, sp="s16"):
        n = len(g.loads)
        lc = a.newlabel("L_sc"); ld = a.newlabel("L_sd")
        a(f"s_mov_b32 {sp}, {(1 << n) - 1}")
        a.label(lc)
        cur = (-1, -1)
        for k, ((ins, regs), b) in enumerate(zip(g.loads, g.base)):
            if b != cur:
                a(f"s_mov_b32 exec_lo, {b[0]}\ns_mov_b32 exec_hi, {b[1]}"); cur = b
            l = a.newlabel("L_sk")
            a(f"s_bitcmp1_b32 {sp}, {k}\ns_cbranch_scc0 {l}")
            untag(regs, g.tmp)
            a(f"v_and_b32 v{g.tmp}, s77, v{g.tmp}\nv_cmp_ne_u32 vcc, 0, v{g.tmp}")
            a(f"s_cbranch_vccnz {l}r")
            a(f"s_bitset0_b32 {sp}, {k}\ns_branch {l}")
            a.label(l + "r")
            a(ins)
            a.label(l)
        a("s_mov_b64 exec, -1")
        a(f"s_cmp_eq_u32 {sp}, 0\ns_cbranch_scc1 {ld}")
        a(f"s_add_u32 s79, s79, 1\ns_cmp_lt_u32 s79, {POLL_MAX}\ns_waitcnt vmcnt(0)\ns_cbranch_scc1 {lc}")
        a.label(ld)
    def poll2(gA, gB, fin, dbbit, young=0):
        n = len(gA.loads)
        if not (db & dbbit):
            a(f"s_waitcnt vmcnt({young})")
            gA.loop(); fin(0); return
        l0 = a.newlabel("L_p2"); la = a.newlabel("L_p2a"); lb = a.newlabel("L_p2b"); le = a.newlabel("L_p2e")
        a.label(l0)
        gB.issue()
        a(f"s_waitcnt vmcnt({n})")
        gA.check()
        a(f"s_cbranch_vccz {la}")
        gA.issue()
        a(f"s_waitcnt vmcnt({n})")
        gB.check()
        a(f"s_cbranch_vccz {lb}")
        a(f"s_add_u32 s79, s79, 1\ns_cmp_lt_u32 s79, {POLL_MAX}\ns_cbranch_scc1 {l0}")
        a.label(lb)
        fin(1)
        a(f"s_branch {le}")
        a.label(la)
        fin(0)
        a.label(le)
    def quarter_publish(Tk, r, vaddr, soff, q=False, defer=False):
        a("s_mov_b64 exec, s[62:63]")
        for k in range(4):
            a(f"ds_read_b128 v[{r+4*k}:{r+4*k+3}], v19 offset:{1024*k}")
        a("s_waitcnt lgkmcnt(2)")
        a(f"v_pk_add_f32 v[{r}:{r+1}], v[{r}:{r+1}], v[{r+4}:{r+5}]\nv_pk_add_f32 v[{r+2}:{r+3}], v[{r+2}:{r+3}], v[{r+6}:{r+7}]")
        a("s_waitcnt lgkmcnt(0)")
        a(f"v_pk_add_f32 v[{r+8}:{r+9}], v[{r+8}:{r+9}], v[{r+12}:{r+13}]\nv_pk_add_f32 v[{r+10}:{r+11}], v[{r+10}:{r+11}], v[{r+14}:{r+15}]")
        a(f"v_pk_add_f32 v[{r}:{r+1}], v[{r}:{r+1}], v[{r+8}:{r+9}]\nv_pk_add_f32 v[{r+2}:{r+3}], v[{r+2}:{r+3}], v[{r+10}:{r+11}]")
        tag([r, r+1, r+2, r+3], q=q)
        d = publish(Tk, f"buffer_store_dwordx4 v[{r}:{r+3}], v{vaddr}, s[64:67], {soff} offen", local=not q, defer=defer)
        a("s_mov_b64 exec, -1")
        return d
    MK = [16, 18, 20, 22, 24, 26, 28, 30]
    MK2 = [32, 34, 36, 38, 44, 46, 92, 94]
    def tile_loads(base, srdn, soff, rc="v"):
        L = []
        for st in range(len(soff)):
            for cb in range(3):
                for rr in range(2):
                    r = base + 24 * st + 8 * cb + 4 * rr
                    L.append(f"buffer_load_dwordx4 {rc}[{r}:{r+3}], v236, s[{srdn}:{srdn+3}], {soff[st]} offen offset:{rr*1152+cb*128} nt")
        return L
    a("s_cmp_ge_u32 s2, 256\ns_cbranch_scc1 L_end")
    a("s_load_dwordx16 s[16:31], s[0:1], 0\ns_load_dwordx8 s[32:39], s[0:1], 64")
    if stamps:
        a("s_memrealtime s[90:91]\nv_mov_b32 v31, 0")
    if dbgtime:
        a("s_memrealtime s[90:91]\ns_memtime s[92:93]\ns_waitcnt lgkmcnt(0)\nv_mov_b32 v31, s90\nv_mov_b32 v253, s92\ns_mov_b32 s90, s36\ns_mov_b32 s91, s37")
    a("v_lshrrev_b32 v1, 6, v0\nv_and_b32 v0, 63, v0")
    a("v_readfirstlane_b32 s3, v1")
    if codepf:
        a("s_getpc_b64 s[98:99]")
        a("v_lshlrev_b32 v3, 7, v0")
        a("s_lshl_b32 s8, s3, 13\ns_add_u32 s98, s98, s8\ns_addc_u32 s99, s99, 0")
        a(".CODEPF_GUARD")
    a("s_and_b32 s4, s2, 7\ns_lshr_b32 s5, s2, 3")
    a("s_lshr_b32 s6, s5, 4\ns_lshl_b32 s7, s4, 1\ns_add_u32 s6, s6, s7")
    a("s_and_b32 s7, s5, 15")
    a(f"s_lshl_b32 s99, s4, 18\ns_mul_i32 s98, s4, {0x40000-0x8000}")
    a("v_and_b32 v1, 15, v0\nv_lshrrev_b32 v2, 4, v0")
    a("v_lshrrev_b32 v4, 5, v0\nv_and_b32 v5, 31, v0")
    a("v_mul_u32_u24 v6, 36, v5\nv_mul_u32_u24 v7, 1152, v4\nv_add_u32 v6, v6, v7")
    a("v_lshl_add_u32 v7, v5, 1, v7")
    a("v_mul_u32_u24 v8, 8192, v2\nv_lshl_add_u32 v8, v1, 4, v8")
    a("s_mov_b32 s77, 0x3ff\ns_mov_b32 s79, 0")
    a("s_waitcnt lgkmcnt(0)")
    if stamps:
        a("v_writelane_b32 v31, s90, 0")
    a("s_load_dword s78, s[38:39], 0")
    if pretouch == 2:
        a(f"s_lshl_b32 s8, s5, 13\ns_lshl_b32 s9, s3, 11\ns_add_u32 s8, s8, s9\ns_add_u32 s8, s8, s99\ns_add_u32 s8, s8, {WS0}")
        a("s_add_u32 s88, s38, s8\ns_addc_u32 s89, s39, 0")
        for k in range(16):
            a(f"s_load_dword s{83 + k % 5}, s[88:89], {128*k}")
    srd(68, 16, 2304)
    srd(48, 22, 576 * 4096 * 2)
    srd(64, 38, 256 << 20)
    x0 = T.issue("buffer_load_dwordx4 v[60:63], v6, s[68:71], 0 offen")
    x1 = T.issue("buffer_load_dwordx4 v[64:67], v6, s[68:71], 0 offen offset:16")
    x2 = T.issue("buffer_load_dword v68, v6, s[68:71], 0 offen offset:32")
    a("s_lshr_b32 s9, s7, 1\ns_mul_i32 s10, s9, 144")
    xr = []
    for k in range(3):
        xr.append(T.issue(f"buffer_load_ushort v{69+k}, v7, s[68:71], s10 offen offset:{64*k}"))
    a("s_and_b32 s8, s7, 1\ns_lshl_b32 s11, s6, 1\ns_add_u32 s11, s8, s11")
    a("s_lshl_b32 s8, s11, 8")
    a("s_mul_i32 s12, s9, 72\ns_lshl_b32 s10, s3, 2\ns_add_u32 s12, s12, s10\ns_lshl_b32 s12, s12, 13\ns_add_u32 s8, s8, s12")
    wq = []
    for i in range(5):
        if i == 4:
            a("s_cmp_ge_u32 s3, 2\ns_cselect_b32 s8, 0x7fffffff, s8")
        wq.append(T.issue(f"buffer_load_dwordx4 v[{40+4*i}:{43+4*i}], v8, s[48:51], s8 offen nt"))
        if i < 4: a(f"s_add_u32 s8, s8, {16*8192}")
    a(f"s_lshl_b32 s13, s11, 3\ns_add_u32 s13, s13, s9\ns_lshl_b32 s13, s13, 10\ns_add_u32 s13, s13, {WS_QP}\ns_add_u32 s13, s13, s98")
    srd(40, 18, 64 << 20); srd(44, 20, 64 << 20)
    if pretouch == 1:
        a("s_cmp_lg_u32 s3, 2\ns_cbranch_scc1 L_nopt")
        a(f"s_lshl_b32 s8, s5, 13\ns_add_u32 s8, s8, s99\ns_add_u32 s8, s8, {WS0}\nv_lshlrev_b32 v14, 7, v0")
        T.issue("buffer_load_dword v254, v14, s[64:67], s8 offen sc1", cond=True)
        a.label("L_nopt")
    a("s_lshr_b32 s8, s7, 3\ns_lshl_b32 s14, s8, 25\ns_lshl_b32 s9, s6, 21\ns_add_u32 s14, s14, s9")
    a("s_and_b32 s9, s7, 7\ns_lshl_b32 s9, s9, 14\ns_add_u32 s14, s14, s9\ns_lshl_b32 s9, s3, 12\ns_add_u32 s14, s14, s9")
    a(f"s_add_u32 s14, s14, {6144*256}\ns_mov_b32 s15, s14")
    for k in range(4):
        a(f"v_add_u32 v{10+k}, {4*k}, v2\nv_xor_b32 v{10+k}, v{10+k}, v1\nv_lshlrev_b32 v{10+k}, 4, v{10+k}\nv_lshl_add_u32 v{10+k}, v2, 8, v{10+k}")
    a("s_lshl_b32 s100, s3, 14")
    kops = []
    def kload(i, window):
        if i % 4 == 0:
            a(f"s_add_u32 s101, s100, {(i//4)*4096}\ns_mov_b32 m0, s101")
        kops.append(T.issue(f"buffer_load_dwordx4 v{10+i%4}, s[40:43], s14 offen offset:{(i%4)*1024} nt lds", window=window))
        if i % 4 == 3:
            a("s_add_u32 s14, s14, 131072")
    for i in range(NK0):
        kload(i, None)
    a("s_sub_u32 s74, s5, 18")
    srd(52, 24, 4096 * 576 * 2)
    a("v_lshrrev_b32 v236, 3, v1\nv_lshlrev_b32 v236, 3, v236\nv_lshl_add_u32 v236, v2, 1, v236\nv_mul_u32_u24 v236, 1152, v236\nv_and_b32 v14, 7, v1\nv_lshl_add_u32 v236, v14, 4, v236")
    a("s_and_b32 s8, s74, 15\ns_mul_i32 s73, s8, 11\ns_lshr_b32 s73, s73, 5")
    a("s_mul_i32 s9, s73, 3\ns_sub_u32 s80, s8, s9")
    a("s_lshl_b32 s8, s4, 2\ns_add_u32 s73, s73, s8")
    a("s_lshl_b32 s8, s73, 7\ns_lshl_b32 s9, s3, 5\ns_add_u32 s8, s8, s9\ns_mul_i32 s8, s8, 1152\ns_mul_i32 s9, s80, 384\ns_add_u32 s81, s8, s9")
    a("s_cmp_ge_u32 s74, 12\ns_cselect_b32 s81, 0x7fff0000, s81")
    a(f"s_add_u32 s82, s81, {16*1152}")
    wol = tile_loads(168, 52, ["s81", "s82"])
    if w2early:
        srd(60, 32, 4608 * 576 * 2)
        a("s_and_b32 s8, s74, 15\ns_mul_i32 s72, s4, 14\ns_add_u32 s72, s72, s8")
        a("s_mul_i32 s8, s72, 171\ns_lshr_b32 s8, s8, 9\ns_mul_i32 s9, s8, 3\ns_sub_u32 s9, s72, s9")
        a("s_lshl_b32 s8, s8, 7\ns_lshl_b32 s12, s3, 5\ns_add_u32 s8, s8, s12\ns_mul_i32 s8, s8, 1152\ns_mul_i32 s9, s9, 384\ns_add_u32 s83, s8, s9")
        a("s_cmp_ge_u32 s74, 14\ns_cselect_b32 s83, 0x7fff0000, s83\ns_cmp_ge_u32 s72, 108\ns_cselect_b32 s83, 0x7fff0000, s83")
        a(f"s_add_u32 s84, s83, {16*1152}")
        wol = wol + tile_loads(0, 60, ["s83", "s84"], rc="a")
    if fearly:
        a("s_mov_b32 s85, 1152\ns_mov_b32 s86, -1024\ns_mov_b32 s87, 17024")
        a("s_cmp_ge_u32 s5, 18\ns_cbranch_scc1 L_xE")
        a("s_cmp_ge_u32 s3, 2\ns_cselect_b32 s52, s30, s28\ns_cselect_b32 s53, s31, s29\ns_and_b32 s53, s53, 0xffff")
        a(f"s_mov_b32 s54, {576*4608*2}")
        a("v_mul_u32_u24 v236, 9216, v2\nv_lshl_add_u32 v236, v1, 4, v236")
        a(f"s_mul_i32 s81, s4, {72*9216}\ns_lshl_b32 s9, s5, 9\ns_add_u32 s81, s81, s9\ns_and_b32 s9, s3, 1\ns_lshl_b32 s9, s9, 8\ns_add_u32 s81, s81, s9")
        a(f"s_mov_b32 s85, {4*9216}\ns_mov_b32 s86, {4*9216}\ns_mov_b32 s87, {4*9216}")
        a.label("L_xE")
        wol = []
        for k in range(12):
            inc = "s87" if k == 5 else ("s85" if k % 2 == 0 else "s86")
            wol.append(f"buffer_load_dwordx4 v[{168+4*k}:{171+4*k}], v236, s[52:55], s81 offen nt\ns_add_u32 s81, s81, {inc}")
    if tlb:
        srd(60, 32, 4608 * 576 * 2)
        a("s_cmp_ge_u32 s3, 2\ns_cselect_b32 s56, s30, s28\ns_cselect_b32 s57, s31, s29\ns_and_b32 s57, s57, 0xffff")
        a(f"s_mov_b32 s58, {576*4608*2}\ns_mov_b32 s59, 0x00020000")
        a("v_lshlrev_b32 v14, 16, v0")
        a(f"s_mul_i32 s8, s4, {72*9216}\ns_lshl_b32 s9, s5, 9\ns_add_u32 s8, s8, s9\ns_cmp_ge_u32 s5, 18\ns_cselect_b32 s8, 0x7fff0000, s8")
        a("s_and_b32 s9, s74, 15\ns_mul_i32 s12, s4, 14\ns_add_u32 s12, s12, s9\ns_mul_i32 s12, s12, 49152\ns_cmp_lt_u32 s5, 18\ns_cselect_b32 s12, 0x7fff0000, s12")
        a("s_mov_b64 exec, 0x7ff")
        T.issue("buffer_load_dword v252, v14, s[56:59], s8 offen nt")
        a("s_mov_b64 exec, 0xf")
        T.issue("buffer_load_dword v253, v14, s[60:63], s12 offen nt")
        a("s_mov_b64 exec, 0xff")
        T.issue("buffer_load_dword v254, v14, s[44:47], s15 offen nt")
        a("s_mov_b64 exec, -1")
    woo = []
    cnt = [0]
    def extra(window, every=2):
        cnt[0] += 1
        if woearly and cnt[0] % every == 0 and len(woo) < len(wol):
            woo.append(T.issue(wol[len(woo)], window=window))
    if woearly: W = W + WOW; WVT = WVT + WOW
    a("v_and_b32 v14, 1, v1\nv_cmp_eq_u32 vcc, 1, v14\nv_mov_b32 v15, 0xffff\nv_mov_b32 v16, 0xffff0000\nv_cndmask_b32 v14, v15, v16, vcc")
    a("v_bfe_u32 v15, v1, 1, 2")
    for j in range(4):
        a(f"v_cmp_eq_u32 vcc, {j}, v15\nv_cndmask_b32 v{32+j}, 0, v14, vcc")
    a("v_and_b32 v15, 1, v15")
    a("v_cmp_eq_u32 vcc, 0, v15\nv_cndmask_b32 v36, 0, v14, vcc\nv_cmp_eq_u32 vcc, 1, v15\nv_cndmask_b32 v37, 0, v14, vcc")
    a("v_cmp_eq_u32 s[92:93], 1, v2\nv_cmp_eq_u32 s[94:95], 2, v2\nv_cmp_eq_u32 s[96:97], 3, v2")
    a("v_lshrrev_b32 v14, 1, v2\nv_lshlrev_b32 v38, 9, v14\nv_lshl_add_u32 v38, v1, 5, v38\nv_and_b32 v14, 1, v2\nv_lshl_add_u32 v38, v14, 4, v38")
    a("v_lshlrev_b32 v39, 4, v0")
    a("v_lshlrev_b32 v9, 2, v0")
    T.wait(x2)
    for k in range(9):
        a(f"v_and_b32 v{73+2*k}, 0xffff0000, v{60+k}\nv_lshlrev_b32 v{72+2*k}, 16, v{60+k}")
    a("v_add_f32 v14, v72, v73")
    a("v_add_f32 v15, v74, v75")
    for k in range(4, 18, 2):
        a(f"v_add_f32 v14, v14, v{72+k}\nv_add_f32 v15, v15, v{73+k}")
    a("v_add_f32 v14, v14, v15")
    row_allreduce("v_add_f32", [14])
    swap_reduce("v_add_f32", [14], [15], 16)
    a(f"v_mul_f32 v14, {float_lit(1/576)}, v14")
    a("v_mov_b32 v29, v14")
    a("v_mov_b32 v15, 0\nv_mov_b32 v16, 0")
    for k in range(0, 18, 2):
        a(f"v_sub_f32 v{72+k}, v{72+k}, v14\nv_sub_f32 v{73+k}, v{73+k}, v14")
        a(f"v_fmac_f32 v15, v{72+k}, v{72+k}\nv_fmac_f32 v16, v{73+k}, v{73+k}")
    a("v_add_f32 v15, v15, v16")
    row_allreduce("v_add_f32", [15])
    swap_reduce("v_add_f32", [15], [16], 16)
    a(f"v_mul_f32 v15, {float_lit(1/576)}, v15")
    bf16r(15, 15)
    a(f"v_add_f32 v15, {float_lit(1e-5)}, v15")
    bf16r(15, 15)
    a("v_sqrt_f32 v15, v15")
    bf16r(15, 15)
    a("v_rcp_f32 v15, v15")
    bf16r(14, 14)
    T.wait(xr[2])
    a(f"s_mul_i32 s8, s3, 768\ns_add_u32 s8, s8, {L_XN}")
    a("v_mul_u32_u24 v16, 384, v4\nv_lshl_add_u32 v16, v5, 2, v16\nv_add_u32 v16, s8, v16")
    for k in range(3):
        r = 69 + k
        a(f"v_lshlrev_b32 v{r}, 16, v{r}\nv_sub_f32 v{r}, v{r}, v14")
        bf16r(r, r)
        a(f"v_mul_f32 v{r}, v{r}, v15\nv_cvt_pk_bf16_f32 v{r}, v{r}, v{r}")
        a(f"ds_write_b32 v16, v{r} offset:{128*k}")
    a("v_lshrrev_b32 v17, 3, v1\nv_mul_u32_u24 v17, 384, v17\nv_lshl_add_u32 v17, v2, 2, v17\ns_lshl_b32 s9, s3, 4\ns_add_u32 s8, s8, s9\nv_add_u32 v17, s8, v17")
    a("s_waitcnt lgkmcnt(0)")
    a("s_add_u32 s78, s78, 1\ns_and_b32 s76, s78, 0x3ff\nv_mov_b32 v30, s76\ns_and_b32 s75, s78, 63")
    if loc:
        a("s_getreg_b32 s72, hwreg(HW_REG_XCC_ID)\ns_and_b32 s72, s72, 15\ns_lshl_b32 s8, s78, 4\ns_or_b32 s72, s72, s8")
        a("s_cmp_lg_u32 s3, 0\ns_cbranch_scc1 L_noxid")
        a(f"s_lshl_b32 s8, s5, 2\ns_add_u32 s8, s8, s99\ns_add_u32 s8, s8, {WS_XID}\nv_mov_b32 v65, s72\nv_mov_b32 v66, 0\ns_mov_b64 exec, 1")
        T.issue("buffer_store_dword v65, v66, s[64:67], s8 offen sc1", cond=True)
        a("s_mov_b64 exec, -1")
        a.label("L_noxid")
    for i in range(5):
        a(f"ds_read_b32 v{60+i}, v17 offset:{64*i}")
    a("s_waitcnt lgkmcnt(0)")
    stamp(1)
    for i in range(5):
        for j in range(4):
            a(f"v_and_b32 v{72+4*i+j}, v{60+i}, v{32+j}")
    for i in range(5):
        T.wait(wq[i])
        c = "0" if i == 0 else "v[96:99]"
        a(f"v_mfma_f32_16x16x32_bf16 v[96:99], v[{72+4*i}:{75+4*i}], v[{40+4*i}:{43+4*i}], {c}")
    for i in range(NK0, NK0 + NKQ):
        kload(i, None)
    a(f"s_lshl_b32 s8, s3, 10\ns_add_u32 s8, s8, {L_RED2}\nv_add_u32 v18, s8, v39")
    a(f"v_add_u32 v19, {L_RED2}, v39")
    a("ds_write_b128 v18, v[96:99]")
    a("s_lshr_b32 s8, s3, 1\ns_lshl_b32 s8, s8, 5\ns_and_b32 s9, s3, 1\ns_lshl_b32 s9, s9, 3\ns_add_u32 s8, s8, s9\ns_mov_b64 s[62:63], 0x00ff00ff\ns_lshl_b64 s[62:63], s[62:63], s8")
    a("s_waitcnt lgkmcnt(0)\ns_barrier")
    quarter_publish(T, 72, 38, "s13", q=True)
    stamp(2)
    for i in range(NK0 + NKQ, 16):
        kload(i, W); extra(W, XK)
    a("s_lshr_b32 s8, s3, 1\ns_lshl_b32 s9, s6, 1\ns_add_u32 s8, s8, s9\ns_lshl_b32 s8, s8, 13")
    a("s_lshr_b32 s9, s7, 3\ns_lshl_b32 s9, s9, 9\ns_add_u32 s8, s8, s9\ns_and_b32 s9, s3, 1\ns_lshl_b32 s9, s9, 8\ns_add_u32 s8, s8, s9")
    a(f"s_add_u32 s8, s8, {WS_QP}\ns_add_u32 s8, s8, s98\ns_add_u32 s9, s8, 4096")
    def qgather(Tk, window=None):
        ids = []
        for r in range(8):
            ids.append(Tk.issue(f"buffer_load_dword v{40+r}, v9, s[64:67], {'s8' if r < 4 else 's9'} offen offset:{(r%4)*1024} sc1"))
        return ids
    if loc:
        a(f"s_add_u32 s10, s99, {WS_XID}\nv_lshlrev_b32 v50, 2, v5")
        T.issue("buffer_load_dword v49, v50, s[64:67], s10 offen sc1")
    qg = qgather(T)
    vops = []
    def vload(i, window):
        if i >= 16: return
        if G1 and i == G1:
            a("s_cmp_eq_u32 s61, 0\ns_cbranch_scc1 L_g1_done\ns_mov_b32 s12, 0")
            a.label("L_g1")
            a("buffer_load_dword v231, v237, s[64:67], s60 offen offset:256 sc1\ns_waitcnt vmcnt(0)")
            a("v_cmp_ne_u32 vcc, s78, v231\ns_cbranch_vccz L_g1_done")
            a("s_add_u32 s12, s12, 1\ns_cmp_lt_u32 s12, 256\ns_cbranch_scc1 L_g1")
            a.label("L_g1_done")
        vops.append(T.issue(f"buffer_load_dwordx4 v[{104+4*i}:{107+4*i}], v39, s[44:47], s15 offen offset:{(i%4)*1024} nt", window=window))
        if i % 4 == 3:
            a("s_add_u32 s15, s15, 131072")
        extra(window, XV)
    for i in range(NV0):
        vload(i, max(W, NV0) + 8 if i >= W else W + 8)
    T.wait(qg[-1])
    a("s_branch L_qchk")
    a.label("L_qretry")
    a("s_sleep 1")
    a("buffer_load_dword v49, v50, s[64:67], s10 offen sc1")
    Tr = T.fork(); qgather(Tr); a("s_waitcnt vmcnt(0)")
    a.label("L_qchk")
    untag(list(range(40, 48)), 48, q=True)
    a("v_xor_b32 v49, s72, v49\nv_cmp_lt_u32 vcc, 15, v49\nv_cndmask_b32 v51, 0, 1, vcc\nv_or_b32 v48, v48, v51")
    check_retry(48, "L_qretry", 1, q=True)
    if loc:
        a("v_cmp_ne_u32 vcc, 0, v49\ns_cmp_eq_u64 vcc, 0\ns_cselect_b32 s61, 1, 0\ns_mov_b32 s72, 0")
    if gate:
        a(f"s_add_u32 s60, s99, {WS_XID + 0x100 + LOCOFF}\nv_mov_b32 v238, s78\ns_lshl_b32 s8, s5, 2\nv_mov_b32 v239, s8")
    if G1:
        a("v_mov_b32 v237, v50\ns_cmp_lg_u32 s3, 0\ns_cbranch_scc1 L_sig1\ns_mov_b64 exec, 1")
        T.issue("buffer_store_dword v238, v239, s[64:67], s60 offen offset:256", cond=True)
        a("s_mov_b64 exec, -1")
        a.label("L_sig1")
    for r in range(0, 8, 2):
        a(f"v_add_f32 v{40+r}, v{40+r}, v{41+r}")
    a("v_add_f32 v40, v40, v42\nv_add_f32 v44, v44, v46\nv_add_f32 v40, v40, v44")
    a("v_cvt_pk_bf16_f32 v40, v40, v40")
    a(f"s_lshl_b32 s8, s3, 7\ns_add_u32 s8, s8, {L_QB}\nv_lshlrev_b32 v14, 1, v0\nv_add_u32 v14, s8, v14")
    a("ds_write_b16 v14, v40")
    a(f"v_and_b32 v14, 1, v1\nv_lshlrev_b32 v14, 8, v14\nv_lshl_add_u32 v14, v2, 4, v14\nv_add_u32 v14, {L_QB}, v14")
    for j in range(4):
        a(f"v_add_u32 v{20+j}, {4*j}, v2\nv_xor_b32 v{20+j}, v{20+j}, v1\nv_lshlrev_b32 v{20+j}, 4, v{20+j}\nv_lshl_add_u32 v{20+j}, v1, 8, v{20+j}\nv_add_u32 v{20+j}, s100, v{20+j}")
    a("s_waitcnt lgkmcnt(0)\ns_barrier")
    stamp(3)
    for j in range(4):
        a(f"ds_read_b128 v[{40+4*j}:{43+4*j}], v14 offset:{64*j}")
    def kread(t):
        base = 56 + 16 * (t % 2)
        for j in range(4):
            a(f"ds_read_b128 v[{base+4*j}:{base+4*j+3}], v{20+j} offset:{4096*t}")
    kread(0); kread(1)
    nv = NV0
    for t in range(4):
        base = 56 + 16 * (t % 2)
        a(f"s_waitcnt lgkmcnt({4 if t < 3 else 0})")
        for j in range(4):
            c = "0" if j == 0 else f"v[{88+4*t}:{91+4*t}]"
            a(f"v_mfma_f32_16x16x32_bf16 v[{88+4*t}:{91+4*t}], v[{40+4*j}:{43+4*j}], v[{base+4*j}:{base+4*j+3}], {c}")
        if t + 2 < 4:
            a("s_nop 1")
            kread(t + 2)
        vload(nv, W); nv += 1
    for h in range(2):
        a(f"v_cndmask_b32 v{24+h}, v{88+h}, v{92+h}, s[92:93]")
    for h in range(2):
        a(f"v_cndmask_b32 v{24+h}, v{24+h}, v{96+h}, s[94:95]")
    for h in range(2):
        a(f"v_cndmask_b32 v{24+h}, v{24+h}, v{100+h}, s[96:97]")
    a("v_cvt_pk_bf16_f32 v26, v24, v25\nv_lshlrev_b32 v24, 16, v26\nv_and_b32 v25, 0xffff0000, v26")
    sc = float_lit(128 ** -0.5)
    a(f"v_mul_f32 v24, {sc}, v24\nv_mul_f32 v25, {sc}, v25")
    a("v_cvt_pk_bf16_f32 v26, v24, v25\nv_lshlrev_b32 v24, 16, v26\nv_and_b32 v25, 0xffff0000, v26")
    a("v_mov_b32 v26, v24\nv_mov_b32 v27, v25")
    row_allreduce("v_max_f32", [26, 27])
    swap_reduce("v_max_f32", [26, 27], [14, 15], 16)
    swap_reduce("v_max_f32", [26, 27], [14, 15], 32)
    a(f"s_lshl_b32 s8, s3, 3\ns_add_u32 s8, s8, {L_MX}\nv_mov_b32 v14, s8\nv_mov_b32 v16, {L_MX}")
    a("ds_write_b64 v14, v[26:27]")
    vload(nv, W); nv += 1
    a("s_waitcnt lgkmcnt(0)\ns_barrier")
    a("ds_read_b128 v[40:43], v16\nds_read_b128 v[44:47], v16 offset:16")
    a("s_waitcnt lgkmcnt(0)")
    a("v_max3_f32 v26, v40, v42, v44\nv_max3_f32 v27, v41, v43, v45\nv_max_f32 v26, v26, v46\nv_max_f32 v27, v27, v47")
    l2e = float_lit(1.4426950408889634)
    a("v_sub_f32 v24, v24, v26\nv_sub_f32 v25, v25, v27")
    a(f"v_mul_f32 v24, {l2e}, v24\nv_mul_f32 v25, {l2e}, v25")
    a("v_exp_f32 v24, v24\nv_exp_f32 v25, v25")
    a(f"s_lshl_b32 s8, s3, 9\ns_add_u32 s8, s8, {L_PT}")
    a("v_and_b32 v15, 3, v0\nv_lshlrev_b32 v15, 6, v15\nv_lshrrev_b32 v17, 2, v0\nv_lshl_add_u32 v15, v17, 2, v15\nv_add_u32 v15, s8, v15")
    a("v_cvt_pk_bf16_f32 v40, v24, v24\nv_cvt_pk_bf16_f32 v41, v25, v25")
    a("ds_write_b32 v15, v40\nds_write_b32 v15, v41 offset:256")
    a("v_lshrrev_b32 v17, 3, v1\nv_lshlrev_b32 v17, 8, v17\nv_lshl_add_u32 v17, v2, 6, v17\nv_add_u32 v17, s8, v17")
    row_allreduce("v_add_f32", [24, 25])
    swap_reduce("v_add_f32", [24, 25], [42, 43], 16)
    swap_reduce("v_add_f32", [24, 25], [42, 43], 32)
    a("ds_write_b64 v14, v[24:25] offset:32")
    a("s_waitcnt lgkmcnt(0)")
    for q in range(4):
        a(f"ds_read_b128 v[{240+4*q}:{243+4*q}], v17 offset:{16*q}")
    vload(nv, W); nv += 1
    a("s_waitcnt lgkmcnt(0)")
    for u in range(16):
        for j in range(4):
            a(f"v_and_b32 v{40+4*u+j}, v{240+u}, v{32+j}")
        if u % 4 == 3 and nv < 16:
            vload(nv, W); nv += 1
    a("s_barrier")
    a("s_cmp_lg_u32 s3, 1\ns_cbranch_scc1 L_noml")
    a("ds_read_b128 v[240:243], v16 offset:32\nds_read_b128 v[244:247], v16 offset:48")
    a("s_waitcnt lgkmcnt(0)")
    a("v_add_f32 v240, v240, v242\nv_add_f32 v244, v244, v246\nv_add_f32 v241, v241, v243\nv_add_f32 v245, v245, v247")
    a("v_add_f32 v249, v240, v244\nv_add_f32 v251, v241, v245\nv_mov_b32 v248, v26\nv_mov_b32 v250, v27")
    tag([248, 249, 250, 251])
    a(f"s_and_b32 s8, s6, 1\ns_lshl_b32 s8, s8, 11\ns_lshl_b32 s9, s7, 7\ns_add_u32 s8, s8, s9\ns_add_u32 s8, s8, {WS_ML}\ns_add_u32 s8, s8, s99")
    a("s_mov_b64 exec, 0xff")
    publish(T, "buffer_store_dwordx4 v[248:251], v39, s[64:67], s8 offen", cond=True, local=True)
    a("s_mov_b64 exec, -1")
    a.label("L_noml")
    stamp(4)
    while nv < 16:
        vload(nv, WVT); nv += 1
    a(f"s_lshl_b32 s13, s6, 14\ns_lshl_b32 s9, s7, 9\ns_add_u32 s13, s13, s9\ns_add_u32 s13, s13, {WS_OPART}\ns_add_u32 s13, s13, s98")
    a("v_lshrrev_b32 v14, 1, v2\nv_mul_u32_u24 v14, 7680, v14\nv_add_u32 v28, v14, v38")
    a("s_cmp_lt_u32 s5, 18\ns_cbranch_scc1 L_F")
    Tbr = T.fork()

    def pv_and_publish(Tk, between, lab, defer=False):
        for u in range(16):
            between(u)
            Tk.wait(vops[u])
            if gate and u == USIG:
                l = a.newlabel("L_sig")
                a(f"s_cmp_lg_u32 s3, 0\ns_cbranch_scc1 {l}\ns_mov_b64 exec, 1")
                Tk.issue("buffer_store_dword v238, v239, s[64:67], s60 offen", cond=True)
                a("s_mov_b64 exec, -1")
                a.label(l)
            c = "0" if u == 0 else "v[240:243]"
            a(f"v_mfma_f32_16x16x32_bf16 v[240:243], v[{40+4*u}:{43+4*u}], v[{104+4*u}:{107+4*u}], {c}")
        stamp(5)
        a("ds_write_b128 v18, v[240:243]")
        a("s_waitcnt lgkmcnt(0)\ns_barrier")
        d = quarter_publish(Tk, 240, 28, "s13", defer=defer)
        stamp(6)
        return d

    def tile_swap(base, n=6):
        for k in range(n):
            r = base + 8 * k
            a(f"v_swap_b32 v{r+2}, v{r+4}\nv_swap_b32 v{r+3}, v{r+5}")
    ACC = [240, 244, 248, 252, 76, 80]
    def sel_and(st, x0, x1):
        a(f"v_and_b32 v{84+4*st}, v{x0}, v36\nv_and_b32 v{85+4*st}, v{x0}, v37\nv_and_b32 v{86+4*st}, v{x1}, v36\nv_and_b32 v{87+4*st}, v{x1}, v37")
    def stat_fill():
        L = [f"v_sub_f32 v{44+r}, v{60+r}, v29" for r in range(4)]
        L += ["v_add_f32 v52, v44, v45", "v_add_f32 v53, v46, v47", "v_mul_f32 v54, v44, v44", "v_mul_f32 v55, v45, v45",
              "v_fmac_f32 v54, v46, v46", "v_fmac_f32 v55, v47, v47", "v_add_f32 v52, v52, v53", "v_add_f32 v53, v54, v55",
              "v_cmp_gt_u32 vcc, 24, v5", "s_nop 0", "v_cndmask_b32 v52, 0, v52, vcc", "v_cndmask_b32 v53, 0, v53, vcc"]
        for st in (8, 4, 2, 1):
            L += [f"v_add_f32_dpp v52, v52, v52 row_ror:{st} row_mask:0xf bank_mask:0xf", f"v_add_f32_dpp v53, v53, v53 row_ror:{st} row_mask:0xf bank_mask:0xf"]
        L += ["v_mov_b32 v54, v52", "v_mov_b32 v55, v53", "v_permlane16_swap_b32 v52, v54", "v_permlane16_swap_b32 v53, v55", "v_add_f32 v52, v52, v54", "v_add_f32 v53, v53, v55",
              "v_mov_b32 v54, v52", "v_mov_b32 v55, v53", "v_permlane32_swap_b32 v52, v54", "v_permlane32_swap_b32 v53, v55"]
        L += [f"v_bfi_b32 v{r}, s77, v30, v{r}" for r in (52, 53, 54, 55)]
        return L
    def mfma_block(base, nsets, acc, filler=None):
        for k in range(6):
            for st in range(nsets):
                r = base + 24 * st + 4 * k
                c = "0" if st == 0 else f"v[{acc[k]}:{acc[k]+3}]"
                a(f"v_mfma_f32_16x16x32_bf16 v[{acc[k]}:{acc[k]+3}], v[{84+4*st}:{87+4*st}], v[{r}:{r+3}], {c}")
                if filler:
                    for _ in range(2):
                        if filler: a(filler.pop(0))
            if k >= 2:
                kk = k - 2
                a(f"ds_write_b128 v22, v[{acc[kk]}:{acc[kk]+3}] offset:{((kk//2)*16 + (kk%2))*16}")
        while filler: a(filler.pop(0))
        for kk in (4, 5):
            a(f"ds_write_b128 v22, v[{acc[kk]}:{acc[kk]+3}] offset:{((kk//2)*16 + (kk%2))*16}")
    def reduce8_store(sout):
        a("s_mov_b64 exec, 0xffffff")
        a("s_waitcnt lgkmcnt(0)\ns_barrier")
        for p in range(8):
            a(f"ds_read_b128 v[{40+4*p}:{43+4*p}], v23 offset:{1536*p}")
        for p in range(0, 8, 2):
            a(f"s_waitcnt lgkmcnt({6-p})")
            a(f"v_pk_add_f32 v[{40+4*p}:{41+4*p}], v[{40+4*p}:{41+4*p}], v[{44+4*p}:{45+4*p}]\nv_pk_add_f32 v[{42+4*p}:{43+4*p}], v[{42+4*p}:{43+4*p}], v[{46+4*p}:{47+4*p}]")
            if p == 2 or p == 6:
                q = p - 2
                a(f"v_pk_add_f32 v[{40+4*q}:{41+4*q}], v[{40+4*q}:{41+4*q}], v[{48+4*q}:{49+4*q}]\nv_pk_add_f32 v[{42+4*q}:{43+4*q}], v[{42+4*q}:{43+4*q}], v[{50+4*q}:{51+4*q}]")
        a("v_pk_add_f32 v[40:41], v[40:41], v[56:57]\nv_pk_add_f32 v[42:43], v[42:43], v[58:59]")
        tag([40, 41, 42, 43])
        a(f"buffer_store_dwordx4 v[40:43], v39, s[64:67], {sout} offen sc1")
        a("s_mov_b64 exec, -1")
    def red_write_addr():
        a("s_mul_i32 s8, s3, 3072")
        a("v_lshrrev_b32 v14, 3, v1\nv_mul_u32_u24 v22, 1536, v14\nv_and_b32 v14, 1, v2\nv_mul_u32_u24 v14, 768, v14\nv_add_u32 v22, v22, v14\nv_and_b32 v14, 7, v1\nv_lshl_add_u32 v22, v14, 5, v22")
        a("v_add_u32 v22, s8, v22")
        a("v_lshrrev_b32 v14, 3, v1\nv_lshrrev_b32 v15, 1, v2\nv_cmp_eq_u32 vcc, v14, v15\nv_add_u32 v14, 16384, v39\nv_cndmask_b32 v22, v14, v22, vcc")
    def rec_soffset(dst, scol3, sprod, base):
        a(f"s_lshl_b32 s8, {scol3}, 1\ns_and_b32 s9, s3, 1\ns_add_u32 s8, s8, s9\ns_lshl_b32 s8, s8, 18")
        a(f"s_mul_i32 {dst}, {sprod}, 768\ns_add_u32 {dst}, {dst}, s8\ns_lshr_b32 s9, s3, 1\ns_mul_i32 s9, s9, 384\ns_add_u32 {dst}, {dst}, s9\ns_add_u32 {dst}, {dst}, {base}")
    def half8(op, r):
        a(f"{op}_dpp v{r}, v{r}, v{r} quad_perm:[1,0,3,2] row_mask:0xf bank_mask:0xf")
        a(f"{op}_dpp v{r}, v{r}, v{r} quad_perm:[2,3,0,1] row_mask:0xf bank_mask:0xf")
        a(f"{op}_dpp v{r}, v{r}, v{r} row_half_mirror row_mask:0xf bank_mask:0xf")

    T = Tbr.fork()
    a("s_mov_b32 s10, s74\ns_mov_b32 s11, s73")
    a(f"s_bfe_u32 s8, s11, 0x10001\ns_lshl_b32 s8, s8, 11\ns_add_u32 s86, s8, {WS_ML}\ns_add_u32 s86, s86, s99\ns_add_u32 s86, s86, s72")
    a("v_lshlrev_b32 v25, 7, v1")
    nwo = len(woo)
    for k in range(nwo, len(wol)):
        T.issue(wol[k], window=WE + W)
    a("s_sub_u32 s48, s10, 5\ns_and_b32 s8, s48, 15\ns_mul_i32 s87, s8, 11\ns_lshr_b32 s87, s87, 5\ns_mul_i32 s9, s87, 3\ns_sub_u32 s49, s8, s9")
    a("s_mul_i32 s12, s4, 3\ns_add_u32 s12, s12, s87")
    a("s_mul_i32 s8, s12, 192\ns_mul_i32 s9, s3, 48\ns_add_u32 s8, s8, s9\ns_mul_i32 s8, s8, 1152\ns_mul_i32 s9, s49, 384\ns_add_u32 s50, s8, s9")
    a(f"s_add_u32 s51, s50, {16*1152}\ns_add_u32 s84, s50, {32*1152}")
    srd(44, 32, 4608 * 576 * 2)
    a("s_cmp_lt_u32 s10, 5\ns_cselect_b32 s50, 0x7fff0000, s50\ns_cselect_b32 s51, 0x7fff0000, s51\ns_cselect_b32 s84, 0x7fff0000, s84")
    w2l = tile_loads(104, 44, ["s50", "s51", "s84"])
    a(f"s_mul_i32 s100, s3, {NL*2048}\ns_add_u32 s100, s100, 20480")
    for k in range(2 * NL):
        st, cb, rr = k // 6, (k % 6) // 2, k % 2
        imm = rr * 1152 + cb * 128
        a(f"s_add_u32 s101, s100, {1024*k - imm}\ns_mov_b32 m0, s101")
        T.issue(f"buffer_load_dwordx4 v236, s[44:47], {['s50','s51','s84'][st]} offen offset:{imm} nt lds", window=WE + W)
    a("v_bfe_u32 v14, v1, 2, 1\nv_lshrrev_b32 v15, 3, v1")
    a("v_lshlrev_b32 v21, 5, v14\nv_lshl_add_u32 v21, v15, 3, v21\nv_lshl_add_u32 v21, v2, 1, v21\nv_lshlrev_b32 v21, 2, v21")
    a("v_lshlrev_b32 v3, 4, v14\nv_lshl_add_u32 v3, v15, 1, v3\nv_lshrrev_b32 v14, 1, v2\nv_add_u32 v3, v3, v14\nv_and_b32 v14, 1, v2\nv_lshl_add_u32 v3, v14, 5, v3\nv_lshlrev_b32 v3, 2, v3")
    red_write_addr()
    a("s_mul_i32 s8, s3, 384\nv_add_u32 v23, s8, v39")
    rec_soffset("s85", "s80", "s11", WS_Y)
    a(f"s_lshl_b32 s8, s3, 6\ns_add_u32 s8, s8, {L_WT}\nv_lshlrev_b32 v6, 2, v1\nv_add_u32 v6, s8, v6")
    a("v_lshlrev_b32 v7, 5, v4\nv_add_u32 v7, s8, v7")
    a(f"s_lshl_b32 s83, s11, 13\ns_lshl_b32 s8, s3, 7\ns_add_u32 s83, s83, s8\ns_add_u32 s83, s83, {WS_OPART}\ns_add_u32 s83, s83, s98\ns_add_u32 s83, s83, s72")
    a("v_lshlrev_b32 v26, 12, v4\nv_lshl_add_u32 v26, v5, 2, v26")
    rec_soffset("s40", "s49", "s12", WS_OP)
    a("s_add_u32 s12, s99, s72")
    a(f"s_lshl_b32 s41, s87, 10\ns_add_u32 s41, s41, s12\ns_add_u32 s41, s41, {WS_ST}")
    a("v_and_b32 v10, 7, v0\nv_lshlrev_b32 v10, 7, v10")
    a(f"s_mul_i32 s9, s3, 192\ns_add_u32 s12, s12, s9\ns_mul_i32 s56, s87, {6*3072}\ns_add_u32 s56, s56, s12\ns_add_u32 s56, s56, {WS_G}")
    a("s_add_u32 s57, s56, 6144\ns_add_u32 s58, s56, 12288")
    a(f"s_mul_i32 s88, s87, {6*1536}\ns_add_u32 s88, s88, s12\ns_add_u32 s88, s88, {WS_S}\ns_add_u32 s89, s88, 4608")
    a("v_mul_u32_u24 v11, 768, v2\nv_lshl_add_u32 v11, v1, 4, v11")
    a("v_mul_u32_u24 v12, 768, v4\nv_lshl_add_u32 v12, v1, 4, v12")
    a("v_and_b32 v14, 1, v2\nv_cmp_eq_u32 s[42:43], 1, v14")
    a("v_readlane_b32 s8, v29, 0\nv_readlane_b32 s9, v29, 32\nv_mov_b32 v13, s8\nv_mov_b32 v14, s9\nv_cndmask_b32 v13, v13, v14, s[42:43]")
    pv_and_publish(T, lambda u: None, "L_noopE")
    a("s_cmp_ge_u32 s10, 12\ns_cbranch_scc1 L_E_D")
    gML = Gather([("buffer_load_dwordx4 v[232:235], v25, s[64:67], s86 offen sc1", [232, 233, 234, 235])], tmp=76)
    gO = Gather([(f"buffer_load_dword v{64+s_}, v26, s[64:67], s83 offen offset:{512*s_} sc1", [64+s_]) for s_ in range(8)], tmp=76)
    gML.issue(); gO.issue()
    stamp(16)
    if not woearly: a("s_waitcnt vmcnt(9)")
    tile_swap(168)
    a("s_waitcnt vmcnt(8)")
    stamp(18)
    gML.loop()
    a("s_bitcmp1_b32 s11, 0\ns_cselect_b64 vcc, -1, 0")
    a("v_cndmask_b32 v72, v232, v234, vcc\nv_cndmask_b32 v73, v233, v235, vcc")
    a("v_mov_b32 v74, v72")
    half8("v_max_f32", 74)
    a(f"v_sub_f32 v72, v72, v74\nv_mul_f32 v72, {l2e}, v72\nv_exp_f32 v72, v72")
    a("v_mul_f32 v73, v73, v72")
    half8("v_add_f32", 73)
    a("v_rcp_f32 v73, v73")
    a("v_mul_f32 v72, v72, v73")
    a("ds_write_b32 v6, v72")
    a("s_waitcnt lgkmcnt(0)")
    a("ds_read_b128 v[88:91], v7\nds_read_b128 v[92:95], v7 offset:16")
    stamp(7)
    if prog:
        a("s_waitcnt lgkmcnt(0)")
        gO.ploop(acc=lambda k: a(f"v_mul_f32 v100, v64, v88" if k == 0 else f"v_fmac_f32 v100, v{64+k}, v{88+k}"))
        stamp(8)
        a("v_cvt_pk_bf16_f32 v100, v100, v100")
    else:
        a("s_waitcnt vmcnt(0)")
        gO.loop()
        stamp(8)
        a("s_waitcnt lgkmcnt(0)")
        a("v_mul_f32 v100, v64, v88\nv_mul_f32 v101, v65, v89")
        for s_ in range(2, 8, 2):
            a(f"v_fmac_f32 v100, v{64+s_}, v{88+s_}\nv_fmac_f32 v101, v{65+s_}, v{89+s_}")
        a("v_add_f32 v100, v100, v101\nv_cvt_pk_bf16_f32 v100, v100, v100")
    for k, off in enumerate([0, 4, 64, 68]):
        a(f"ds_bpermute_b32 v{96+k}, v21, v100 offset:{off}")
    for st in range(2):
        a(f"s_waitcnt lgkmcnt({2-2*st})")
        sel_and(st, 96+2*st, 97+2*st)
    mfma_block(168, 2, ACC)
    reduce8_store("s85")
    if ygate:
        a("s_cmp_lg_u32 s3, 0\ns_cbranch_scc1 L_y2\ns_mov_b64 exec, 1")
        a("buffer_store_dword v238, v239, s[64:67], s60 offen offset:128\ns_mov_b64 exec, -1")
        a.label("L_y2")
    stamp(9)
    a("s_cmp_lt_u32 s10, 5\ns_cbranch_scc1 L_fin")
    a("s_branch L_D2")
    a.label("L_E_D")
    if gate == 2:
        a("s_cmp_lg_u32 s10, 13\ns_cbranch_scc1 L_lead_done\ns_cmp_lg_u32 s3, 0\ns_cbranch_scc1 L_lead_done\ns_cmp_eq_u32 s72, 0\ns_cbranch_scc1 L_lead_done")
        a("v_lshlrev_b32 v14, 2, v5")
        a.label("L_lead")
        a("buffer_load_dword v15, v14, s[64:67], s60 offen sc1\ns_waitcnt vmcnt(0)")
        a("v_cmp_ne_u32 vcc, s78, v15\ns_cbranch_vccz L_lead_ok")
        a(f"s_add_u32 s79, s79, 1\ns_cmp_lt_u32 s79, {POLL_MAX}\ns_cbranch_scc1 L_lead")
        a.label("L_lead_ok")
        a(f"s_lshl_b32 s8, s4, 2\ns_add_u32 s8, s8, {WS_GD}\nv_mov_b32 v14, 0\ns_mov_b64 exec, 1")
        a("buffer_store_dword v238, v14, s[64:67], s8 offen sc1\ns_mov_b64 exec, -1")
        a.label("L_lead_done")
    a.label("L_D2")
    T.ops = []
    for ins in w2l[2*NL:]:
        a(ins)
    a(f"s_waitcnt vmcnt({18-2*NL})")
    a("v_add_u32 v14, s100, v39")
    for k in range(NL):
        a(f"ds_read2_b64 v[{104+8*k}:{107+8*k}], v14 offset0:0 offset1:128\nds_read2_b64 v[{108+8*k}:{111+8*k}], v14 offset0:1 offset1:129")
        if k < NL - 1: a("v_add_u32 v14, 2048, v14")
    M12 = (0x0fff0fff, 0x0fff0fff)
    gS = Gather([(f"buffer_load_dwordx4 v[{176+4*rg}:{179+4*rg}], v12, s[64:67], s{88+rg//3} offen offset:{1536*(rg%3)} sc1", list(range(176+4*rg, 180+4*rg))) for rg in range(6)], base=[M12]*6, tmp=76)
    gG = Gather([("buffer_load_dwordx4 v[224:227], v10, s[64:67], s41 offen sc1", [224, 225, 226, 227])] +
                [(f"buffer_load_dwordx4 v[{200+4*rg}:{203+4*rg}], v11, s[64:67], s{56+rg//2} offen offset:{3072*(rg%2)} sc1", list(range(200+4*rg, 204+4*rg))) for rg in range(6)],
                base=[(0x3f3f3f3f, 0x3f3f3f3f)] + [M12]*6, tmp=76)
    a("v_mov_b32 v224, 0\nv_mov_b32 v225, 0\nv_mov_b32 v226, 0\nv_mov_b32 v227, 0")
    if dj:
        a(f"s_waitcnt vmcnt({dj})")
        gS.issue(); gG.issue()
        a("s_barrier")
        a("s_waitcnt vmcnt(13)")
        stamp(10)
        tile_swap(104 + 8*NL, 9 - NL)
        a("s_waitcnt vmcnt(7)")
        gS.loop()
    else:
        a("s_waitcnt vmcnt(0)")
        gS.issue()
        a("s_barrier")
        stamp(10)
        tile_swap(104 + 8*NL, 9 - NL)
        a("s_waitcnt vmcnt(0)")
        gS.loop()
        gG.issue()
    def sum6(b0, d):
        L = []
        for h in (0, 2):
            L += [f"v_pk_add_f32 v[{b0+h}:{b0+h+1}], v[{b0+h}:{b0+h+1}], v[{b0+4+h}:{b0+5+h}]",
                  f"v_pk_add_f32 v[{b0+8+h}:{b0+9+h}], v[{b0+8+h}:{b0+9+h}], v[{b0+12+h}:{b0+13+h}]",
                  f"v_pk_add_f32 v[{b0+16+h}:{b0+17+h}], v[{b0+16+h}:{b0+17+h}], v[{b0+20+h}:{b0+21+h}]"]
        for h in (0, 2):
            L += [f"v_pk_add_f32 v[{b0+h}:{b0+h+1}], v[{b0+h}:{b0+h+1}], v[{b0+8+h}:{b0+9+h}]"]
        for h in (0, 2):
            L += [f"v_pk_add_f32 v[{d+h}:{d+h+1}], v[{b0+h}:{b0+h+1}], v[{b0+16+h}:{b0+17+h}]"]
        return L
    for ins in sum6(176, 68): a(ins)
    a("v_permlane32_swap_b32 v68, v70\nv_permlane32_swap_b32 v69, v71")
    stamp(11); cnt_stamp(24)
    if prog:
        def accG(k):
            if k == 0:
                a("s_mov_b64 exec, -1")
                a("v_cndmask_b32 v72, v224, v226, s[42:43]\nv_cndmask_b32 v73, v225, v227, s[42:43]")
                row_allreduce("v_add_f32", [72, 73], steps=(4, 2, 1))
                a(f"v_mul_f32 v72, {float_lit(1/576)}, v72\nv_mul_f32 v73, {float_lit(1/576)}, v73")
            elif k == 2:
                a("v_pk_add_f32 v[64:65], v[200:201], v[204:205]\nv_pk_add_f32 v[66:67], v[202:203], v[206:207]")
            elif k > 2:
                b0 = 200 + 4 * (k - 1)
                a(f"v_pk_add_f32 v[64:65], v[64:65], v[{b0}:{b0+1}]\nv_pk_add_f32 v[66:67], v[66:67], v[{b0+2}:{b0+3}]")
        gG.ploop(acc=accG)
        stamp(12); cnt_stamp(25)
    else:
        a("s_waitcnt vmcnt(0)")
        stamp(20)
        selloop(gG) if sel & 4 else gG.loop()
        stamp(12); cnt_stamp(25)
        sq = sum6(200, 64)
        a("v_cndmask_b32 v72, v224, v226, s[42:43]\nv_cndmask_b32 v73, v225, v227, s[42:43]")
        for i, stp in enumerate((4, 2, 1)):
            a(sq[2*i]); a(sq[2*i+1])
            a(f"v_add_f32_dpp v72, v72, v72 row_ror:{stp} row_mask:0xf bank_mask:0xf\nv_add_f32_dpp v73, v73, v73 row_ror:{stp} row_mask:0xf bank_mask:0xf")
        a(sq[6]); a(sq[7])
        a(f"v_mul_f32 v72, {float_lit(1/576)}, v72\nv_mul_f32 v73, {float_lit(1/576)}, v73")
        a(sq[8]); a(sq[9])
    a("v_fma_f32 v73, -v72, v72, v73\nv_add_f32 v72, v72, v13\nv_max_f32 v73, 0, v73")
    a("v_permlane32_swap_b32 v64, v66\nv_permlane32_swap_b32 v65, v67")
    a("v_cvt_pk_bf16_f32 v74, v73, v72\nv_lshlrev_b32 v73, 16, v74\nv_and_b32 v72, 0xffff0000, v74")
    a(f"v_add_f32 v73, {float_lit(1e-5)}, v73")
    bf16r(73, 73)
    a("v_sqrt_f32 v73, v73")
    for r in range(4):
        a(f"v_fma_f32 v{64+r}, -v72, v{68+r}, v{64+r}")
    bf16r(73, 73)
    a("v_rcp_f32 v73, v73")
    for r in range(4):
        a(f"v_mul_f32 v{64+r}, v{64+r}, v73")
    a("v_cvt_pk_bf16_f32 v68, v64, v65\nv_cvt_pk_bf16_f32 v69, v66, v67")
    a("v_lshlrev_b32 v64, 16, v68\nv_and_b32 v65, 0xffff0000, v68\nv_lshlrev_b32 v66, 16, v69\nv_and_b32 v67, 0xffff0000, v69")
    nl = float_lit(-1.4426950408889634)
    a(f"v_mul_f32 v68, {nl}, v64\nv_mul_f32 v69, {nl}, v65\nv_exp_f32 v68, v68\nv_exp_f32 v69, v69")
    a("v_add_f32 v68, 1.0, v68\nv_add_f32 v69, 1.0, v69\nv_rcp_f32 v68, v68\nv_rcp_f32 v69, v69")
    a("v_mul_f32 v64, v64, v68\nv_mul_f32 v65, v65, v69")
    a("v_cvt_pk_bf16_f32 v68, v64, v65\nv_lshlrev_b32 v64, 16, v68\nv_and_b32 v65, 0xffff0000, v68")
    a("v_mul_f32 v64, v64, v66\nv_mul_f32 v65, v65, v67")
    a("v_cvt_pk_bf16_f32 v102, v64, v64\nv_cvt_pk_bf16_f32 v103, v65, v65")
    for st in range(3):
        a(f"ds_bpermute_b32 v{96+2*st}, v3, v102 offset:{16*st}\nds_bpermute_b32 v{97+2*st}, v3, v103 offset:{16*st}")
    for st in range(3):
        a(f"s_waitcnt lgkmcnt({4-2*st})")
        sel_and(st, 96+2*st, 97+2*st)
    mfma_block(104, 3, ACC)
    reduce8_store("s40")
    stamp(13)
    a("s_branch L_fin")

    a.label("L_F")
    T = Tbr.fork()
    a("s_mul_i32 s10, s5, 11\ns_lshr_b32 s10, s10, 5\ns_cmp_eq_u32 s5, 17\ns_cselect_b32 s10, 5, s10\ns_cmp_eq_u32 s5, 14\ns_cselect_b32 s10, 4, s10")
    a("s_mul_i32 s8, s10, 3\ns_sub_u32 s11, s5, s8")
    a("s_cmp_ge_u32 s3, 2\ns_cselect_b32 s56, s30, s28\ns_cselect_b32 s57, s31, s29\ns_and_b32 s57, s57, 0xffff")
    a(f"s_mov_b32 s58, {576*4608*2}\ns_mov_b32 s59, 0x00020000")
    a("v_lshrrev_b32 v20, 3, v1\nv_lshlrev_b32 v20, 3, v20\nv_lshl_add_u32 v20, v2, 1, v20\nv_mul_u32_u24 v20, 9216, v20\nv_and_b32 v14, 7, v1\nv_lshl_add_u32 v20, v14, 4, v20")
    a("s_mul_i32 s12, s4, 3\ns_add_u32 s12, s12, s11")
    a("s_mul_i32 s8, s10, 96\ns_and_b32 s9, s3, 1\ns_mul_i32 s9, s9, 48\ns_add_u32 s8, s8, s9\ns_mul_i32 s81, s8, 9216\ns_mul_i32 s9, s12, 384\ns_add_u32 s81, s81, s9")
    gl = []
    def gload(t, window):
        st, rr, cb = t // 6, (t % 6) // 3, t % 3
        r = 168 + 24 * st + 8 * cb + 4 * rr
        gl.append(T.issue(f"buffer_load_dwordx4 v[{r}:{r+3}], v20, s[56:59], s81 offen offset:{128*cb} nt", window=window))
        if cb == 2: a(f"s_add_u32 s81, s81, {9216 if rr == 0 else 15*9216}")
    a("v_mul_u32_u24 v21, 1152, v4\nv_lshl_add_u32 v21, v5, 3, v21\ns_mul_i32 s8, s10, 192")
    xres = T.issue("buffer_load_dwordx2 v[26:27], v21, s[68:71], s8 offen")
    a(f"s_lshl_b32 s80, s10, 18\ns_mul_i32 s82, s3, {8*768}\ns_add_u32 s82, s82, s80\ns_add_u32 s82, s82, {WS_Y}\ns_add_u32 s83, s82, 3072")
    a("v_mul_u32_u24 v21, 384, v4\nv_lshl_add_u32 v21, v5, 4, v21")
    red_write_addr()
    a(f"s_lshl_b32 s8, s3, 10\ns_add_u32 s8, s8, {L_RED2}\nv_add_u32 v16, s8, v39")
    a("s_lshr_b32 s8, s3, 1\ns_mul_i32 s8, s8, 6144\ns_and_b32 s9, s3, 1\ns_mul_i32 s9, s9, 768\ns_add_u32 s8, s8, s9\nv_add_u32 v23, s8, v39")
    a(f"s_mul_i32 s84, s3, 768\ns_add_u32 s84, s84, {L_XT}\nv_add_u32 v17, s84, v21")
    a("v_bfe_u32 v14, v1, 2, 1\nv_mul_u32_u24 v24, 384, v14\nv_lshrrev_b32 v14, 3, v1\nv_lshl_add_u32 v24, v14, 5, v24\nv_lshl_add_u32 v24, v2, 3, v24")
    a("s_and_b32 s9, s3, 1\ns_mul_i32 s9, s9, 192\ns_add_u32 s9, s9, s84\nv_add_u32 v24, s9, v24")
    a(f"v_add_u32 v25, {L_H}, v21")
    a("s_mul_i32 s8, s11, 6\ns_add_u32 s8, s8, s10")
    a(f"s_mul_i32 s85, s8, 3072\ns_mul_i32 s9, s3, 768\ns_add_u32 s85, s85, s9\ns_add_u32 s85, s85, s99\ns_add_u32 s85, s85, {WS_G}")
    a(f"s_mul_i32 s87, s8, 1536\ns_lshr_b32 s9, s3, 1\ns_mul_i32 s9, s9, 768\ns_add_u32 s87, s87, s9\ns_add_u32 s87, s87, s99\ns_add_u32 s87, s87, {WS_S}")
    a(f"s_lshl_b32 s86, s11, 10\ns_lshl_b32 s9, s10, 7\ns_add_u32 s86, s86, s9\ns_add_u32 s86, s86, s99\ns_add_u32 s86, s86, {WS_ST}")
    a("v_and_b32 v10, 0x3f803f80, v36\nv_and_b32 v11, 0x3f803f80, v37\nv_mov_b32 v12, v10\nv_mov_b32 v13, v11")
    srd(72, 34, 2304)
    a(f"s_lshl_b32 s9, s12, 5\ns_add_u32 s40, s80, s9\ns_add_u32 s40, s40, {WS_OP}\ns_add_u32 s41, s40, {8*768}\ns_add_u32 s42, s40, {16*768}")
    a("v_lshrrev_b32 v14, 3, v0\nv_mul_u32_u24 v7, 768, v14\nv_and_b32 v14, 7, v0\nv_lshl_add_u32 v7, v14, 2, v7")
    a(f"s_add_u32 s8, s9, {L_H}\nv_lshlrev_b32 v8, 2, v14\nv_add_u32 v8, s8, v8")
    a("s_cmp_ge_u32 s12, 12\ns_cselect_b32 s43, 480, 0\ns_mul_i32 s8, s10, 96\ns_add_u32 s43, s43, s8\ns_lshl_b32 s8, s12, 3\ns_add_u32 s43, s43, s8\ns_lshl_b32 s43, s43, 1")
    a("v_lshlrev_b32 v3, 1, v14")
    ng = [0]
    def betweenF(u):
        if u >= 16 - WFP and ng[0] < 18:
            gload(ng[0], None); ng[0] += 1
    pv_and_publish(T, betweenF, "L_noopF")
    if gate:
        a("s_cmp_eq_u32 s61, 0\ns_cbranch_scc1 L_gate_done")
        if gate == 1:
            a("v_lshlrev_b32 v14, 2, v5\ns_mov_b32 s8, 0")
        else:
            a(f"v_and_b32 v14, 7, v0\nv_lshlrev_b32 v14, 2, v14\ns_mov_b32 s60, {WS_GD}\ns_mov_b32 s61, 0")
        a.label("L_gate")
        a("buffer_load_dword v15, v14, s[64:67], s60 offen sc1\ns_waitcnt vmcnt(0)")
        a("v_cmp_ne_u32 vcc, s78, v15\ns_cbranch_vccz L_gate_done")
        if gate == 1:
            a("s_add_u32 s8, s8, 1\ns_cmp_lt_u32 s8, 256\ns_cbranch_scc1 L_gate")
        else:
            a(f"s_add_u32 s61, s61, 1\ns_cmp_lt_u32 s61, {GMAX}\ns_cbranch_scc1 L_gate")
        a.label("L_gate_done")
    while ng[0] < 18:
        gload(ng[0], WF); ng[0] += 1
    stamp(7)
    M24 = (0xffffff, 0xffffff)
    gY = Gather([(f"buffer_load_dwordx4 v[{104+4*k}:{107+4*k}], v21, s[64:67], {'s82' if k < 4 else 's83'} offen offset:{768*(k%4)} sc1", list(range(104+4*k, 108+4*k))) for k in range(8)],
                base=[M24] * 8, tmp=76)
    T.wait(xres)
    a("v_lshlrev_b32 v100, 16, v26\nv_and_b32 v101, 0xffff0000, v26\nv_lshlrev_b32 v102, 16, v27\nv_and_b32 v103, 0xffff0000, v27")
    SACC = [40, 44, 48, 52, 56, 60]
    for st in range(3):
        for cb in range(3):
            if st == 2 and cb == YCB: gY.issue(T)
            T.wait(gl[6*st + 3 + cb])
            r = 168 + 24 * st + 8 * cb
            a(f"v_swap_b32 v{r+2}, v{r+4}\nv_swap_b32 v{r+3}, v{r+5}")
            for hf in range(2):
                k = 2 * cb + hf
                c = "0" if st == 0 else f"v[{SACC[k]}:{SACC[k]+3}]"
                a(f"v_mfma_f32_16x16x32_bf16 v[{SACC[k]}:{SACC[k]+3}], v[10:13], v[{r+4*hf}:{r+4*hf+3}], {c}")
    if YCB >= 3 and not ygate: gY.issue(T)
    stamp(17)
    for k in range(6):
        a(f"ds_write_b128 v22, v[{SACC[k]}:{SACC[k]+3}] offset:{((k//2)*16 + (k%2))*16}")
    def reduce4(r):
        a("s_mov_b32 exec_lo, -1\ns_mov_b32 exec_hi, 0xffff")
        for p in range(4):
            a(f"ds_read_b128 v[{r+4*p}:{r+4*p+3}], v23 offset:{1536*p}")
        a("s_waitcnt lgkmcnt(2)")
        a(f"v_pk_add_f32 v[{r}:{r+1}], v[{r}:{r+1}], v[{r+4}:{r+5}]\nv_pk_add_f32 v[{r+2}:{r+3}], v[{r+2}:{r+3}], v[{r+6}:{r+7}]")
        a("s_waitcnt lgkmcnt(0)")
        a(f"v_pk_add_f32 v[{r+8}:{r+9}], v[{r+8}:{r+9}], v[{r+12}:{r+13}]\nv_pk_add_f32 v[{r+10}:{r+11}], v[{r+10}:{r+11}], v[{r+14}:{r+15}]")
        a(f"v_pk_add_f32 v[{r}:{r+1}], v[{r}:{r+1}], v[{r+8}:{r+9}]\nv_pk_add_f32 v[{r+2}:{r+3}], v[{r+2}:{r+3}], v[{r+10}:{r+11}]")
        tag([r, r+1, r+2, r+3])
    a("s_waitcnt lgkmcnt(0)\ns_barrier")
    a("s_bitcmp1_b32 s3, 0\ns_cbranch_scc1 L_noS")
    reduce4(136)
    pub("buffer_store_dwordx4 v[136:139], v39, s[64:67], s87 offen")
    a("s_mov_b64 exec, -1")
    a.label("L_noS")
    a.label("L_S1")
    if not prog: a("s_waitcnt vmcnt(0)")
    T.ops = []
    if ygate:
        a("s_cmp_eq_u32 s61, 0\ns_cbranch_scc1 L_yg_done\nv_lshlrev_b32 v14, 2, v0\ns_mov_b32 exec_lo, 0x3ffc0000\ns_mov_b32 exec_hi, 0")
        a.label("L_yg")
        a("buffer_load_dword v15, v14, s[64:67], s60 offen offset:128 sc1\ns_waitcnt vmcnt(0)")
        a("v_cmp_ne_u32 vcc, s78, v15\ns_cbranch_vccz L_yg_done")
        a(f"s_add_u32 s79, s79, 1\ns_cmp_lt_u32 s79, {POLL_MAX}\ns_cbranch_scc1 L_yg")
        a.label("L_yg_done")
        a("s_mov_b64 exec, -1")
        gY.issue()
    if prog:
        def accY(k):
            b0 = 104 + 4 * k
            if k == 1: a("v_pk_add_f32 v[40:41], v[104:105], v[108:109]\nv_pk_add_f32 v[42:43], v[106:107], v[110:111]")
            elif k > 1: a(f"v_pk_add_f32 v[40:41], v[40:41], v[{b0}:{b0+1}]\nv_pk_add_f32 v[42:43], v[42:43], v[{b0+2}:{b0+3}]")
        gY.ploop(acc=accY)
        stamp(8)
    else:
        selloop(gY) if sel & 2 else gY.loop()
        stamp(8)
        for k in range(0, 8, 2):
            a(f"v_pk_add_f32 v[{104+4*k}:{105+4*k}], v[{104+4*k}:{105+4*k}], v[{108+4*k}:{109+4*k}]\nv_pk_add_f32 v[{106+4*k}:{107+4*k}], v[{106+4*k}:{107+4*k}], v[{110+4*k}:{111+4*k}]")
        for k in (0, 4):
            a(f"v_pk_add_f32 v[{104+4*k}:{105+4*k}], v[{104+4*k}:{105+4*k}], v[{112+4*k}:{113+4*k}]\nv_pk_add_f32 v[{106+4*k}:{107+4*k}], v[{106+4*k}:{107+4*k}], v[{114+4*k}:{115+4*k}]")
        a("v_pk_add_f32 v[40:41], v[104:105], v[120:121]\nv_pk_add_f32 v[42:43], v[106:107], v[122:123]")
    a("ds_write_b128 v16, v[40:43]")
    a("s_waitcnt lgkmcnt(0)\ns_barrier")
    stamp(18)
    for k in range(4):
        a(f"ds_read_b128 v[{40+4*k}:{43+4*k}], v19 offset:{1024*k}")
    a("s_waitcnt lgkmcnt(2)")
    a("v_pk_add_f32 v[40:41], v[40:41], v[44:45]\nv_pk_add_f32 v[42:43], v[42:43], v[46:47]")
    a("s_waitcnt lgkmcnt(0)")
    a("v_pk_add_f32 v[48:49], v[48:49], v[52:53]\nv_pk_add_f32 v[50:51], v[50:51], v[54:55]")
    a("v_pk_add_f32 v[40:41], v[40:41], v[48:49]\nv_pk_add_f32 v[42:43], v[42:43], v[50:51]")
    a("v_cvt_pk_bf16_f32 v44, v40, v41\nv_cvt_pk_bf16_f32 v45, v42, v43")
    a("v_lshlrev_b32 v40, 16, v44\nv_and_b32 v41, 0xffff0000, v44\nv_lshlrev_b32 v42, 16, v45\nv_and_b32 v43, 0xffff0000, v45")
    a("v_pk_add_f32 v[40:41], v[40:41], v[100:101]\nv_pk_add_f32 v[42:43], v[42:43], v[102:103]")
    for r in range(4):
        a(f"v_cvt_pk_bf16_f32 v{48+r}, v{40+r}, v{40+r}")
    a("s_mov_b32 exec_lo, 0xffffff\ns_mov_b32 exec_hi, 0xffffff")
    a("ds_write_b128 v17, v[48:51]")
    a("s_mov_b64 exec, -1")
    a("s_waitcnt lgkmcnt(0)")
    for st in range(3):
        a(f"ds_read_b64 v[{96+2*st}:{97+2*st}], v24 offset:{64*st}")
    for r in range(4):
        a(f"v_and_b32 v{60+r}, 0xffff0000, v{48+r}")
    for st in range(3):
        a(f"s_waitcnt lgkmcnt({2-st})")
        sel_and(st, 96+2*st, 97+2*st)
    stamp(19)
    def stats_block():
        a("s_cmp_lg_u32 s3, 3\ns_cbranch_scc1 L_nost")
        for r in range(4):
            a(f"v_sub_f32 v{44+r}, v{60+r}, v29")
        a("v_add_f32 v52, v44, v45\nv_add_f32 v53, v46, v47\nv_mul_f32 v54, v44, v44\nv_mul_f32 v55, v45, v45")
        a("v_fmac_f32 v54, v46, v46\nv_fmac_f32 v55, v47, v47\nv_add_f32 v52, v52, v53\nv_add_f32 v53, v54, v55")
        a("v_cmp_gt_u32 vcc, 24, v5\nv_cndmask_b32 v52, 0, v52, vcc\nv_cndmask_b32 v53, 0, v53, vcc")
        row_allreduce("v_add_f32", [52, 53])
        swap_reduce("v_add_f32", [52, 53], [54, 55], 16)
        a("v_mov_b32 v54, v52\nv_mov_b32 v55, v53")
        a("v_permlane32_swap_b32 v52, v54\nv_permlane32_swap_b32 v53, v55")
        tag([52, 53, 54, 55])
        a("s_mov_b64 exec, 0xff")
        pub("buffer_store_dwordx4 v[52:55], v39, s[64:67], s86 offen")
        a("s_mov_b64 exec, -1")
        a.label("L_nost")
    mfma_block(168, 3, ACC, filler=stat_fill() if stearly == 2 else None)
    if stearly == 1: stats_block()
    if stearly == 2:
        a("s_cmp_lg_u32 s3, 3\ns_cbranch_scc1 L_nost\ns_mov_b64 exec, 0xff")
        pub("buffer_store_dwordx4 v[52:55], v39, s[64:67], s86 offen")
        a("s_mov_b64 exec, -1")
        a.label("L_nost")
    a("s_waitcnt lgkmcnt(0)\ns_barrier")
    reduce4(104)
    pub("buffer_store_dwordx4 v[104:107], v39, s[64:67], s85 offen")
    a("s_mov_b64 exec, -1")
    stamp(9)
    if not stearly: stats_block()
    a("s_cmp_lg_u32 s3, 0\ns_cbranch_scc1 L_fin")
    a("s_mov_b32 exec_lo, 0xffffff\ns_mov_b32 exec_hi, 0xffffff")
    a("ds_write_b128 v25, v[60:63]")
    a("s_mov_b64 exec, -1")
    a("s_waitcnt lgkmcnt(0)\nds_read_b32 v64, v8")
    gR = Gather([(f"buffer_load_dword v{48+i}, v7, s[64:67], s{40+i} offen sc1", [48+i]) for i in range(3)], tmp=76)
    gR.issue()
    a("s_waitcnt vmcnt(0)")
    selloop(gR) if sel & 8 else gR.loop()
    stamp(12)
    a("v_add_f32 v40, v48, v49\nv_add_f32 v40, v40, v50")
    row_allreduce("v_add_f32", [40], steps=(8,))
    swap_reduce("v_add_f32", [40], [41], 16)
    swap_reduce("v_add_f32", [40], [41], 32)
    bf16r(40, 40)
    a("s_waitcnt lgkmcnt(0)")
    a("v_add_f32 v40, v40, v64\nv_cvt_pk_bf16_f32 v40, v40, v40")
    a("s_mov_b64 exec, 0xff")
    a("buffer_store_short v40, v3, s[72:75], s43 offen")
    a("s_cmp_lg_u32 s2, 0\ns_cbranch_scc1 L_fin")
    a("s_mov_b64 exec, 1\nv_mov_b32 v41, s78\nv_mov_b32 v42, 0")
    a("buffer_store_dword v41, v42, s[64:67], 0 offen sc1")
    a.label("L_fin")
    if dbgtime:
        a("s_mov_b64 exec, 1\ns_memrealtime s[16:17]\ns_waitcnt lgkmcnt(0)")
        a("v_mov_b32 v1, 0\nv_mov_b32 v2, s16\nv_not_b32 v3, v31\nv_sub_u32 v4, v2, v31")
        a("global_atomic_umax v1, v2, s[90:91]\nglobal_atomic_umax v1, v3, s[90:91] offset:4\nglobal_atomic_umax v1, v4, s[90:91] offset:8")
        a("global_atomic_umax v1, v31, s[90:91] offset:12")
    if stamps:
        a("s_mov_b64 exec, -1")
        stamp(14)
        a(f"v_writelane_b32 v31, s79, 15")
        a(f"s_lshl_b32 s8, s2, 2\ns_add_u32 s8, s8, s3\ns_lshl_b32 s8, s8, 8\ns_add_u32 s8, s8, {WS_STAMP}")
        a("buffer_store_dword v31, v9, s[64:67], s8 offen")
    a.label("L_end")
    a("s_endpgm")
    L, n = hazard.fix(a.L)
    if locnt: L = [l + (" nt" if locnt == 1 else " sc0") if ("buffer_store" in l and "s101 offen" in l) else l for l in L]
    if ldnt: L = [l.replace(" sc1", " sc1 nt") if "buffer_load" in l else l for l in L]
    if stnt: L = [l.replace(" sc1", " sc1 nt") if "buffer_store" in l else l for l in L]
    body = "\n".join(L) + "\n"
    if codepf:
        body = body.replace("    .CODEPF_GUARD\n",
            "    s_cmp_ge_u32 s8, (L_end - " + NAME + "_kernel)\n    s_cbranch_scc1 L_nopf\n"
            "    v_add_u32 v31, s8, v3\n" if False else
            "    v_add_u32 v4, s8, v3\n"
            "    v_cmp_gt_u32 vcc, (L_end - " + NAME + "_kernel - 64), v4\n"
            "    s_and_saveexec_b64 s[100:101], vcc\n"
            "    s_cbranch_execz L_nopf\n"
            "    global_load_dword v255, v3, s[98:99]\n"
            "L_nopf:\n"
            "    s_mov_b64 exec, -1\n")
    lds = max(L_END, lds_force)
    return wrap(body, 256, 256, lds, 304 if w2early else 256, accum=256)

import struct
def float_lit(x):
    return "0x%08x" % struct.unpack("<I", struct.pack("<f", x))[0]

if __name__ == "__main__":
    out = sys.argv[1] if len(sys.argv) > 1 else "k.s"
    kw = {}
    for arg in sys.argv[2:]:
        k, v = arg.split("=")
        kw[k] = int(v)
    open(out, "w").write(gen(**kw))
    print("wrote", out, "LDS", L_END, "WS_END", hex(WS_END))
```

```python
import sys, copy
from asmlib import *
import hazard

WS_EPOCH = 0
WS0 = 0x40000
XR = 0x40000
WS_QP = WS0
WS_OPART = WS0 + 0x8000
WS_ML = WS0 + 0x10000
WS_Y = WS0 + 0x11000
WS_OP = WS0 + 0x17000
WS_G = WS0 + 0x1E000
WS_S = WS0 + 0x2C000
WS_ST = WS0 + 0x33000
WS_XID = WS0 + 0x3E000
WS_GD = 0x2000
LOCOFF = 0 * XR
WS_END = WS0 + 16 * XR
WS_STAMP = 0x8000000

L_K = 0
L_RED = 0
L_RED2 = 65536
L_XN = L_RED2 + 4096
L_QB = L_XN + 4 * 768
L_PT = L_QB + 512
L_MX = L_PT + 2048
L_XT = L_MX + 128
L_WT = L_XT + 4 * 768
L_H = L_WT + 256
L_YS = L_H + 768
L_END = L_YS + 64

TAGMASK = 0x3FF
POLL_MAX = 4000000

class Tracker:
    def __init__(self, a):
        self.a = a; self.ops = []; self.n = 0
    def issue(self, ins, cond=False, window=None):
        if window is not None:
            cnt = sum(1 for (_, c) in self.ops if not c)
            if cnt >= window:
                self.a(f"s_waitcnt vmcnt({window-1})")
                self._retire_to(window - 1)
        self.a(ins)
        self.n += 1
        self.ops.append((self.n, cond))
        return self.n
    def _retire_to(self, k):
        keep = []; c = 0
        for op in reversed(self.ops):
            if c >= k: break
            keep.append(op)
            if not op[1]: c += 1
        self.ops = list(reversed(keep))
    def wait(self, opid):
        ids = [o for (o, _) in self.ops]
        if opid not in ids: return
        after = sum(1 for (o, c) in self.ops if o > opid and not c)
        self.a(f"s_waitcnt vmcnt({min(after, 63)})")
        self.ops = [(o, c) for (o, c) in self.ops if o > opid]
    def drain(self):
        self.a("s_waitcnt vmcnt(0)"); self.ops = []
    def fork(self):
        t = Tracker(self.a); t.ops = list(self.ops); t.n = self.n; return t

def gen(W=6, WE=12, WF=6, WFP=2, WE2=10, NK0=6, NKQ=0, NV0=6, WVT=10, dual=1, mlearly=0, woearly=1, WOW=2, w2early=0, fearly=0, ack=0, tlb=0, YCB=3, NL=0, stearly=2, dj=3, prog=1, gate=0, USIG=12, GMAX=16, ygate=0, locnt=0, G1=0, MLV=0, sdef=0, AD=0, WT=4, sel=0, db=0, fdelay=0, loc=1, dfr=2, mlat=0, XK=2, XV=2, pretouch=0, psleep=0, dbgtime=0, ldnt=0, stnt=0, stsleep=0, stamps=False, lds_force=0, codepf=True):
    a = Asm()
    T = Tracker(a)
    nst = [0]
    def cnt_stamp(i):
        if stamps: a(f"v_writelane_b32 v31, s79, {i}")
    def stamp(i):
        if stamps:
            a(f"s_memrealtime s[90:91]\ns_waitcnt lgkmcnt(0)\nv_writelane_b32 v31, s90, {i}")
    def srd(d, p, size):
        a(f"s_mov_b32 s{d}, s{p}\ns_and_b32 s{d+1}, s{p+1}, 0xffff\ns_mov_b32 s{d+2}, {size}\ns_mov_b32 s{d+3}, 0x00020000")
    def row_allreduce(op, regs, tmp=None, steps=(8, 4, 2, 1)):
        for st in steps:
            for r in regs:
                a(f"{op}_dpp v{r}, v{r}, v{r} row_ror:{st} row_mask:0xf bank_mask:0xf")
    def swap_reduce(op, regs, tmps, which):
        for r, t in zip(regs, tmps):
            a(f"v_mov_b32 v{t}, v{r}")
        for r, t in zip(regs, tmps):
            a(f"v_permlane{which}_swap_b32 v{r}, v{t}")
        for r, t in zip(regs, tmps):
            a(f"{op} v{r}, v{r}, v{t}")
    def bf16r(dst, src):
        a(f"v_cvt_pk_bf16_f32 v{dst}, v{src}, v{src}\nv_and_b32 v{dst}, 0xffff0000, v{dst}")
    def tag(regs, q=False):
        for r in regs:
            a(f"v_bfi_b32 v{r}, {'63' if q else 's77'}, v30, v{r}")
    def untag(regs, acc, first=True, q=False):
        for r in regs:
            a(f"v_xor_b32 v{r}, {'s75' if q else 'v30'}, v{r}")
        rs = list(regs)
        if first:
            if len(rs) >= 2:
                a(f"v_or_b32 v{acc}, v{rs[0]}, v{rs[1]}"); rs = rs[2:]
            else:
                a(f"v_mov_b32 v{acc}, v{rs[0]}"); rs = rs[1:]
        while len(rs) >= 2:
            a(f"v_or3_b32 v{acc}, v{acc}, v{rs[0]}, v{rs[1]}"); rs = rs[2:]
        if rs:
            a(f"v_or_b32 v{acc}, v{acc}, v{rs[0]}")
    def check_retry(acc, retry_label, code, q=False):
        ok = a.newlabel("L_ok")
        a(f"v_and_b32 v{acc}, {'63' if q else 's77'}, v{acc}\nv_cmp_ne_u32 vcc, 0, v{acc}")
        a(f"s_cbranch_vccz {ok}")
        a(f"s_add_u32 s79, s79, 1\ns_cmp_lt_u32 s79, {POLL_MAX}\ns_cbranch_scc1 {retry_label}")
        a.label(ok)

    def pub(ins):
        l = a.newlabel("L_pub")
        a(ins)
        a(f"s_cmp_lg_u32 s61, 0\ns_cbranch_scc1 {l}")
        a(ins + " sc1")
        a.label(l)
    def publish(Tk, ins, cond=False, local=False, defer=False):
        if local:
            l = a.newlabel("L_pub")
            Tk.issue(ins, cond=cond)
            a(f"s_cmp_lg_u32 s61, 0\ns_cbranch_scc1 {l}")
            Tk.issue(ins + " sc1", cond=True)
            a.label(l)
        else:
            Tk.issue(ins + " sc1", cond=cond)
    class Gather:
        def __init__(g, loads, masks=None, base=None, tmp=None, q=False):
            g.loads = loads; g.tmp = tmp; g.q = q
            g.base = base or [(-1, -1)] * len(loads)
        def issue(g, Tk=None):
            cur = (-1, -1); ids = []
            for (ins, _), b in zip(g.loads, g.base):
                if b != cur:
                    a(f"s_mov_b32 exec_lo, {b[0]}\ns_mov_b32 exec_hi, {b[1]}"); cur = b
                if Tk: ids.append(Tk.issue(ins))
                else: a(ins)
            if cur != (-1, -1): a("s_mov_b64 exec, -1")
            return ids
        def check(g):
            mk = '63' if g.q else 's77'
            groups = []
            for (ins, regs), b in zip(g.loads, g.base):
                if groups and groups[-1][0] == b: groups[-1][1].extend(regs)
                else: groups.append((b, list(regs)))
            first = True
            if groups[0][0] != (-1, -1):
                a(f"v_mov_b32 v{g.tmp}, 0")
            for b, regs in groups:
                if b != (-1, -1): a(f"s_mov_b32 exec_lo, {b[0]}\ns_mov_b32 exec_hi, {b[1]}")
                untag(regs, g.tmp, first=first, q=g.q); first = False
                if b != (-1, -1): a("s_mov_b64 exec, -1")
            a(f"v_and_b32 v{g.tmp}, {mk}, v{g.tmp}\nv_cmp_ne_u32 vcc, 0, v{g.tmp}")
        def ploop(g, acc=None, young=0):
            n = len(g.loads)
            lc = a.newlabel("L_pc"); ld = a.newlabel("L_pd"); lr = a.newlabel("L_pr")
            if young:
                a(f"s_waitcnt vmcnt({young})")
            a(f"s_branch {lc}")
            a.label(lr)
            g.issue()
            a.label(lc)
            if g.base[0] != (-1, -1): a(f"v_mov_b32 v{g.tmp}, 0")
            cur = (-1, -1)
            for k, ((ins, regs), b) in enumerate(zip(g.loads, g.base)):
                if b != cur:
                    a(f"s_mov_b32 exec_lo, {b[0]}\ns_mov_b32 exec_hi, {b[1]}"); cur = b
                a(f"s_waitcnt vmcnt({min(63, n - 1 - k + young)})" if False else f"s_waitcnt vmcnt({n - 1 - k})" if not young else f"s_waitcnt vmcnt({max(n - 1 - k, 0)})")
                untag(regs, g.tmp, first=(k == 0), q=g.q)
                if acc: acc(k)
            if cur != (-1, -1): a("s_mov_b64 exec, -1")
            a(f"v_and_b32 v{g.tmp}, {'63' if g.q else 's77'}, v{g.tmp}\nv_cmp_ne_u32 vcc, 0, v{g.tmp}")
            a(f"s_cbranch_vccz {ld}")
            a(f"s_add_u32 s79, s79, 1\ns_cmp_lt_u32 s79, {POLL_MAX}\ns_cbranch_scc1 {lr}")
            a.label(ld)
        def loop(g, sleep=0):
            lc = a.newlabel("L_gc"); ld = a.newlabel("L_gd"); lr = a.newlabel("L_gr")
            a(f"s_branch {lc}")
            a.label(lr)
            if sleep or psleep: a(f"s_sleep {max(sleep, psleep)}")
            g.issue()
            a("s_waitcnt vmcnt(0)")
            a.label(lc)
            g.check()
            a(f"s_cbranch_vccz {ld}")
            a(f"s_add_u32 s79, s79, 1\ns_cmp_lt_u32 s79, {POLL_MAX}\ns_cbranch_scc1 {lr}")
            a.label(ld)
    def selloop(g, sp="s16"):
        n = len(g.loads)
        lc = a.newlabel("L_sc"); ld = a.newlabel("L_sd")
        a(f"s_mov_b32 {sp}, {(1 << n) - 1}")
        a.label(lc)
        cur = (-1, -1)
        for k, ((ins, regs), b) in enumerate(zip(g.loads, g.base)):
            if b != cur:
                a(f"s_mov_b32 exec_lo, {b[0]}\ns_mov_b32 exec_hi, {b[1]}"); cur = b
            l = a.newlabel("L_sk")
            a(f"s_bitcmp1_b32 {sp}, {k}\ns_cbranch_scc0 {l}")
            untag(regs, g.tmp)
            a(f"v_and_b32 v{g.tmp}, s77, v{g.tmp}\nv_cmp_ne_u32 vcc, 0, v{g.tmp}")
            a(f"s_cbranch_vccnz {l}r")
            a(f"s_bitset0_b32 {sp}, {k}\ns_branch {l}")
            a.label(l + "r")
            a(ins)
            a.label(l)
        a("s_mov_b64 exec, -1")
        a(f"s_cmp_eq_u32 {sp}, 0\ns_cbranch_scc1 {ld}")
        a(f"s_add_u32 s79, s79, 1\ns_cmp_lt_u32 s79, {POLL_MAX}\ns_waitcnt vmcnt(0)\ns_cbranch_scc1 {lc}")
        a.label(ld)
    def poll2(gA, gB, fin, dbbit, young=0):
        n = len(gA.loads)
        if not (db & dbbit):
            a(f"s_waitcnt vmcnt({young})")
            gA.loop(); fin(0); return
        l0 = a.newlabel("L_p2"); la = a.newlabel("L_p2a"); lb = a.newlabel("L_p2b"); le = a.newlabel("L_p2e")
        a.label(l0)
        gB.issue()
        a(f"s_waitcnt vmcnt({n})")
        gA.check()
        a(f"s_cbranch_vccz {la}")
        gA.issue()
        a(f"s_waitcnt vmcnt({n})")
        gB.check()
        a(f"s_cbranch_vccz {lb}")
        a(f"s_add_u32 s79, s79, 1\ns_cmp_lt_u32 s79, {POLL_MAX}\ns_cbranch_scc1 {l0}")
        a.label(lb)
        fin(1)
        a(f"s_branch {le}")
        a.label(la)
        fin(0)
        a.label(le)
    def quarter_publish(Tk, r, vaddr, soff, q=False, defer=False):
        a("s_mov_b64 exec, s[62:63]")
        for k in range(4):
            a(f"ds_read_b128 v[{r+4*k}:{r+4*k+3}], v19 offset:{1024*k}")
        a("s_waitcnt lgkmcnt(2)")
        a(f"v_pk_add_f32 v[{r}:{r+1}], v[{r}:{r+1}], v[{r+4}:{r+5}]\nv_pk_add_f32 v[{r+2}:{r+3}], v[{r+2}:{r+3}], v[{r+6}:{r+7}]")
        a("s_waitcnt lgkmcnt(0)")
        a(f"v_pk_add_f32 v[{r+8}:{r+9}], v[{r+8}:{r+9}], v[{r+12}:{r+13}]\nv_pk_add_f32 v[{r+10}:{r+11}], v[{r+10}:{r+11}], v[{r+14}:{r+15}]")
        a(f"v_pk_add_f32 v[{r}:{r+1}], v[{r}:{r+1}], v[{r+8}:{r+9}]\nv_pk_add_f32 v[{r+2}:{r+3}], v[{r+2}:{r+3}], v[{r+10}:{r+11}]")
        tag([r, r+1, r+2, r+3], q=q)
        d = publish(Tk, f"buffer_store_dwordx4 v[{r}:{r+3}], v{vaddr}, s[64:67], {soff} offen", local=not q, defer=defer)
        a("s_mov_b64 exec, -1")
        return d
    MK = [16, 18, 20, 22, 24, 26, 28, 30]
    MK2 = [32, 34, 36, 38, 44, 46, 92, 94]
    def tile_loads(base, srdn, soff, rc="v"):
        L = []
        for st in range(len(soff)):
            for cb in range(3):
                for rr in range(2):
                    r = base + 24 * st + 8 * cb + 4 * rr
                    L.append(f"buffer_load_dwordx4 {rc}[{r}:{r+3}], v236, s[{srdn}:{srdn+3}], {soff[st]} offen offset:{rr*1152+cb*128} nt")
        return L
    a("s_cmp_ge_u32 s2, 256\ns_cbranch_scc1 L_end")
    a("s_load_dwordx16 s[16:31], s[0:1], 0\ns_load_dwordx8 s[32:39], s[0:1], 64")
    if stamps:
        a("s_memrealtime s[90:91]\nv_mov_b32 v31, 0")
    if dbgtime:
        a("s_memrealtime s[90:91]\ns_memtime s[92:93]\ns_waitcnt lgkmcnt(0)\nv_mov_b32 v31, s90\nv_mov_b32 v253, s92\ns_mov_b32 s90, s36\ns_mov_b32 s91, s37")
    a("v_lshrrev_b32 v1, 6, v0\nv_and_b32 v0, 63, v0")
    a("v_readfirstlane_b32 s3, v1")
    if codepf:
        a("s_getpc_b64 s[98:99]")
        a("v_lshlrev_b32 v3, 7, v0")
        a("s_lshl_b32 s8, s3, 13\ns_add_u32 s98, s98, s8\ns_addc_u32 s99, s99, 0")
        a(".CODEPF_GUARD")
    a("s_and_b32 s4, s2, 7\ns_lshr_b32 s5, s2, 3")
    a("s_lshr_b32 s6, s5, 4\ns_lshl_b32 s7, s4, 1\ns_add_u32 s6, s6, s7")
    a("s_and_b32 s7, s5, 15")
    a(f"s_lshl_b32 s99, s4, 18\ns_mul_i32 s98, s4, {0x40000-0x8000}")
    a("v_and_b32 v1, 15, v0\nv_lshrrev_b32 v2, 4, v0")
    a("v_lshrrev_b32 v4, 5, v0\nv_and_b32 v5, 31, v0")
    a("v_mul_u32_u24 v6, 36, v5\nv_mul_u32_u24 v7, 1152, v4\nv_add_u32 v6, v6, v7")
    a("v_lshl_add_u32 v7, v5, 1, v7")
    a("v_mul_u32_u24 v8, 8192, v2\nv_lshl_add_u32 v8, v1, 4, v8")
    a("s_mov_b32 s77, 0x3ff\ns_mov_b32 s79, 0")
    a("s_waitcnt lgkmcnt(0)")
    if stamps:
        a("v_writelane_b32 v31, s90, 0")
    a("s_load_dword s78, s[38:39], 0")
    if pretouch == 2:
        a(f"s_lshl_b32 s8, s5, 13\ns_lshl_b32 s9, s3, 11\ns_add_u32 s8, s8, s9\ns_add_u32 s8, s8, s99\ns_add_u32 s8, s8, {WS0}")
        a("s_add_u32 s88, s38, s8\ns_addc_u32 s89, s39, 0")
        for k in range(16):
            a(f"s_load_dword s{83 + k % 5}, s[88:89], {128*k}")
    srd(68, 16, 2304)
    srd(48, 22, 576 * 4096 * 2)
    srd(64, 38, 256 << 20)
    x0 = T.issue("buffer_load_dwordx4 v[60:63], v6, s[68:71], 0 offen")
    x1 = T.issue("buffer_load_dwordx4 v[64:67], v6, s[68:71], 0 offen offset:16")
    x2 = T.issue("buffer_load_dword v68, v6, s[68:71], 0 offen offset:32")
    a("s_lshr_b32 s9, s7, 1\ns_mul_i32 s10, s9, 144")
    xr = []
    for k in range(3):
        xr.append(T.issue(f"buffer_load_ushort v{69+k}, v7, s[68:71], s10 offen offset:{64*k}"))
    a("s_and_b32 s8, s7, 1\ns_lshl_b32 s11, s6, 1\ns_add_u32 s11, s8, s11")
    a("s_lshl_b32 s8, s11, 8")
    a("s_mul_i32 s12, s9, 72\ns_lshl_b32 s10, s3, 2\ns_add_u32 s12, s12, s10\ns_lshl_b32 s12, s12, 13\ns_add_u32 s8, s8, s12")
    wq = []
    for i in range(5):
        if i == 4:
            a("s_cmp_ge_u32 s3, 2\ns_cselect_b32 s8, 0x7fffffff, s8")
        wq.append(T.issue(f"buffer_load_dwordx4 v[{40+4*i}:{43+4*i}], v8, s[48:51], s8 offen nt"))
        if i < 4: a(f"s_add_u32 s8, s8, {16*8192}")
    a(f"s_lshl_b32 s13, s11, 3\ns_add_u32 s13, s13, s9\ns_lshl_b32 s13, s13, 10\ns_add_u32 s13, s13, {WS_QP}\ns_add_u32 s13, s13, s98")
    srd(40, 18, 64 << 20); srd(44, 20, 64 << 20)
    if pretouch == 1:
        a("s_cmp_lg_u32 s3, 2\ns_cbranch_scc1 L_nopt")
        a(f"s_lshl_b32 s8, s5, 13\ns_add_u32 s8, s8, s99\ns_add_u32 s8, s8, {WS0}\nv_lshlrev_b32 v14, 7, v0")
        T.issue("buffer_load_dword v254, v14, s[64:67], s8 offen sc1", cond=True)
        a.label("L_nopt")
    a("s_lshr_b32 s8, s7, 3\ns_lshl_b32 s14, s8, 25\ns_lshl_b32 s9, s6, 21\ns_add_u32 s14, s14, s9")
    a("s_and_b32 s9, s7, 7\ns_lshl_b32 s9, s9, 14\ns_add_u32 s14, s14, s9\ns_lshl_b32 s9, s3, 12\ns_add_u32 s14, s14, s9")
    a(f"s_add_u32 s14, s14, {6144*256}\ns_mov_b32 s15, s14")
    for k in range(4):
        a(f"v_add_u32 v{10+k}, {4*k}, v2\nv_xor_b32 v{10+k}, v{10+k}, v1\nv_lshlrev_b32 v{10+k}, 4, v{10+k}\nv_lshl_add_u32 v{10+k}, v2, 8, v{10+k}")
    a("s_lshl_b32 s100, s3, 14")
    kops = []
    def kload(i, window):
        if i % 4 == 0:
            a(f"s_add_u32 s101, s100, {(i//4)*4096}\ns_mov_b32 m0, s101")
        kops.append(T.issue(f"buffer_load_dwordx4 v{10+i%4}, s[40:43], s14 offen offset:{(i%4)*1024} nt lds", window=window))
        if i % 4 == 3:
            a("s_add_u32 s14, s14, 131072")
    for i in range(NK0):
        kload(i, None)
    a("s_sub_u32 s74, s5, 18")
    srd(52, 24, 4096 * 576 * 2)
    a("v_lshrrev_b32 v236, 3, v1\nv_lshlrev_b32 v236, 3, v236\nv_lshl_add_u32 v236, v2, 1, v236\nv_mul_u32_u24 v236, 1152, v236\nv_and_b32 v14, 7, v1\nv_lshl_add_u32 v236, v14, 4, v236")
    a("s_and_b32 s8, s74, 15\ns_mul_i32 s73, s8, 11\ns_lshr_b32 s73, s73, 5")
    a("s_mul_i32 s9, s73, 3\ns_sub_u32 s80, s8, s9")
    a("s_lshl_b32 s8, s4, 2\ns_add_u32 s73, s73, s8")
    a("s_lshl_b32 s8, s73, 7\ns_lshl_b32 s9, s3, 5\ns_add_u32 s8, s8, s9\ns_mul_i32 s8, s8, 1152\ns_mul_i32 s9, s80, 384\ns_add_u32 s81, s8, s9")
    a("s_cmp_ge_u32 s74, 12\ns_cselect_b32 s81, 0x7fff0000, s81")
    a(f"s_add_u32 s82, s81, {16*1152}")
    wol = tile_loads(168, 52, ["s81", "s82"])
    if w2early:
        srd(60, 32, 4608 * 576 * 2)
        a("s_and_b32 s8, s74, 15\ns_mul_i32 s72, s4, 14\ns_add_u32 s72, s72, s8")
        a("s_mul_i32 s8, s72, 171\ns_lshr_b32 s8, s8, 9\ns_mul_i32 s9, s8, 3\ns_sub_u32 s9, s72, s9")
        a("s_lshl_b32 s8, s8, 7\ns_lshl_b32 s12, s3, 5\ns_add_u32 s8, s8, s12\ns_mul_i32 s8, s8, 1152\ns_mul_i32 s9, s9, 384\ns_add_u32 s83, s8, s9")
        a("s_cmp_ge_u32 s74, 14\ns_cselect_b32 s83, 0x7fff0000, s83\ns_cmp_ge_u32 s72, 108\ns_cselect_b32 s83, 0x7fff0000, s83")
        a(f"s_add_u32 s84, s83, {16*1152}")
        wol = wol + tile_loads(0, 60, ["s83", "s84"], rc="a")
    if fearly:
        a("s_mov_b32 s85, 1152\ns_mov_b32 s86, -1024\ns_mov_b32 s87, 17024")
        a("s_cmp_ge_u32 s5, 18\ns_cbranch_scc1 L_xE")
        a("s_cmp_ge_u32 s3, 2\ns_cselect_b32 s52, s30, s28\ns_cselect_b32 s53, s31, s29\ns_and_b32 s53, s53, 0xffff")
        a(f"s_mov_b32 s54, {576*4608*2}")
        a("v_mul_u32_u24 v236, 9216, v2\nv_lshl_add_u32 v236, v1, 4, v236")
        a(f"s_mul_i32 s81, s4, {72*9216}\ns_lshl_b32 s9, s5, 9\ns_add_u32 s81, s81, s9\ns_and_b32 s9, s3, 1\ns_lshl_b32 s9, s9, 8\ns_add_u32 s81, s81, s9")
        a(f"s_mov_b32 s85, {4*9216}\ns_mov_b32 s86, {4*9216}\ns_mov_b32 s87, {4*9216}")
        a.label("L_xE")
        wol = []
        for k in range(12):
            inc = "s87" if k == 5 else ("s85" if k % 2 == 0 else "s86")
            wol.append(f"buffer_load_dwordx4 v[{168+4*k}:{171+4*k}], v236, s[52:55], s81 offen nt\ns_add_u32 s81, s81, {inc}")
    if tlb:
        srd(60, 32, 4608 * 576 * 2)
        a("s_cmp_ge_u32 s3, 2\ns_cselect_b32 s56, s30, s28\ns_cselect_b32 s57, s31, s29\ns_and_b32 s57, s57, 0xffff")
        a(f"s_mov_b32 s58, {576*4608*2}\ns_mov_b32 s59, 0x00020000")
        a("v_lshlrev_b32 v14, 16, v0")
        a(f"s_mul_i32 s8, s4, {72*9216}\ns_lshl_b32 s9, s5, 9\ns_add_u32 s8, s8, s9\ns_cmp_ge_u32 s5, 18\ns_cselect_b32 s8, 0x7fff0000, s8")
        a("s_and_b32 s9, s74, 15\ns_mul_i32 s12, s4, 14\ns_add_u32 s12, s12, s9\ns_mul_i32 s12, s12, 49152\ns_cmp_lt_u32 s5, 18\ns_cselect_b32 s12, 0x7fff0000, s12")
        a("s_mov_b64 exec, 0x7ff")
        T.issue("buffer_load_dword v252, v14, s[56:59], s8 offen nt")
        a("s_mov_b64 exec, 0xf")
        T.issue("buffer_load_dword v253, v14, s[60:63], s12 offen nt")
        a("s_mov_b64 exec, 0xff")
        T.issue("buffer_load_dword v254, v14, s[44:47], s15 offen nt")
        a("s_mov_b64 exec, -1")
    woo = []
    cnt = [0]
    def extra(window, every=2):
        cnt[0] += 1
        left = (16 - NK0 - NKQ) + 16 - cnt[0]
        if woearly and (cnt[0] % every == 0 or left - 2 < 2 * (len(wol) - len(woo)) - 1 and left - 2 < len(wol) - len(woo) + 1) and len(woo) < len(wol):
            woo.append(T.issue(wol[len(woo)], window=window))
    if woearly: W = W + WOW; WVT = WVT + WOW
    a("v_and_b32 v14, 1, v1\nv_cmp_eq_u32 vcc, 1, v14\nv_mov_b32 v15, 0xffff\nv_mov_b32 v16, 0xffff0000\nv_cndmask_b32 v14, v15, v16, vcc")
    a("v_bfe_u32 v15, v1, 1, 2")
    for j in range(4):
        a(f"v_cmp_eq_u32 vcc, {j}, v15\nv_cndmask_b32 v{32+j}, 0, v14, vcc")
    a("v_and_b32 v15, 1, v15")
    a("v_cmp_eq_u32 vcc, 0, v15\nv_cndmask_b32 v36, 0, v14, vcc\nv_cmp_eq_u32 vcc, 1, v15\nv_cndmask_b32 v37, 0, v14, vcc")
    a("v_cmp_eq_u32 s[92:93], 1, v2\nv_cmp_eq_u32 s[94:95], 2, v2\nv_cmp_eq_u32 s[96:97], 3, v2")
    a("v_lshrrev_b32 v14, 1, v2\nv_lshlrev_b32 v38, 9, v14\nv_lshl_add_u32 v38, v1, 5, v38\nv_and_b32 v14, 1, v2\nv_lshl_add_u32 v38, v14, 4, v38")
    a("v_lshlrev_b32 v39, 4, v0")
    a("v_lshlrev_b32 v9, 2, v0")
    T.wait(x2)
    for k in range(9):
        a(f"v_and_b32 v{73+2*k}, 0xffff0000, v{60+k}\nv_lshlrev_b32 v{72+2*k}, 16, v{60+k}")
    a("v_add_f32 v14, v72, v73")
    a("v_add_f32 v15, v74, v75")
    for k in range(4, 18, 2):
        a(f"v_add_f32 v14, v14, v{72+k}\nv_add_f32 v15, v15, v{73+k}")
    a("v_add_f32 v14, v14, v15")
    row_allreduce("v_add_f32", [14])
    swap_reduce("v_add_f32", [14], [15], 16)
    a(f"v_mul_f32 v14, {float_lit(1/576)}, v14")
    a("v_mov_b32 v29, v14")
    a("v_mov_b32 v15, 0\nv_mov_b32 v16, 0")
    for k in range(0, 18, 2):
        a(f"v_sub_f32 v{72+k}, v{72+k}, v14\nv_sub_f32 v{73+k}, v{73+k}, v14")
        a(f"v_fmac_f32 v15, v{72+k}, v{72+k}\nv_fmac_f32 v16, v{73+k}, v{73+k}")
    a("v_add_f32 v15, v15, v16")
    row_allreduce("v_add_f32", [15])
    swap_reduce("v_add_f32", [15], [16], 16)
    a(f"v_mul_f32 v15, {float_lit(1/576)}, v15")
    bf16r(15, 15)
    a(f"v_add_f32 v15, {float_lit(1e-5)}, v15")
    bf16r(15, 15)
    a("v_sqrt_f32 v15, v15")
    bf16r(15, 15)
    a("v_rcp_f32 v15, v15")
    bf16r(14, 14)
    T.wait(xr[2])
    a(f"s_mul_i32 s8, s3, 768\ns_add_u32 s8, s8, {L_XN}")
    a("v_mul_u32_u24 v16, 384, v4\nv_lshl_add_u32 v16, v5, 2, v16\nv_add_u32 v16, s8, v16")
    for k in range(3):
        r = 69 + k
        a(f"v_lshlrev_b32 v{r}, 16, v{r}\nv_sub_f32 v{r}, v{r}, v14")
        bf16r(r, r)
        a(f"v_mul_f32 v{r}, v{r}, v15\nv_cvt_pk_bf16_f32 v{r}, v{r}, v{r}")
        a(f"ds_write_b32 v16, v{r} offset:{128*k}")
    a("v_lshrrev_b32 v17, 3, v1\nv_mul_u32_u24 v17, 384, v17\nv_lshl_add_u32 v17, v2, 2, v17\ns_lshl_b32 s9, s3, 4\ns_add_u32 s8, s8, s9\nv_add_u32 v17, s8, v17")
    a("s_waitcnt lgkmcnt(0)")
    a("s_add_u32 s78, s78, 1\ns_and_b32 s76, s78, 0x3ff\nv_mov_b32 v30, s76\ns_and_b32 s75, s78, 63")
    if loc:
        a("s_getreg_b32 s72, hwreg(HW_REG_XCC_ID)\ns_and_b32 s72, s72, 15\ns_lshl_b32 s8, s78, 4\ns_or_b32 s72, s72, s8")
        a("s_cmp_lg_u32 s3, 0\ns_cbranch_scc1 L_noxid")
        a(f"s_lshl_b32 s8, s5, 2\ns_add_u32 s8, s8, s99\ns_add_u32 s8, s8, {WS_XID}\nv_mov_b32 v65, s72\nv_mov_b32 v66, 0\ns_mov_b64 exec, 1")
        T.issue("buffer_store_dword v65, v66, s[64:67], s8 offen sc1", cond=True)
        a("s_mov_b64 exec, -1")
        a.label("L_noxid")
    for i in range(5):
        a(f"ds_read_b32 v{60+i}, v17 offset:{64*i}")
    a("s_waitcnt lgkmcnt(0)")
    stamp(1)
    for i in range(5):
        for j in range(4):
            a(f"v_and_b32 v{72+4*i+j}, v{60+i}, v{32+j}")
    for i in range(5):
        T.wait(wq[i])
        c = "0" if i == 0 else "v[96:99]"
        a(f"v_mfma_f32_16x16x32_bf16 v[96:99], v[{72+4*i}:{75+4*i}], v[{40+4*i}:{43+4*i}], {c}")
    for i in range(NK0, NK0 + NKQ):
        kload(i, None)
    a(f"s_lshl_b32 s8, s3, 10\ns_add_u32 s8, s8, {L_RED2}\nv_add_u32 v18, s8, v39")
    a(f"v_add_u32 v19, {L_RED2}, v39")
    a("ds_write_b128 v18, v[96:99]")
    a("s_lshr_b32 s8, s3, 1\ns_lshl_b32 s8, s8, 5\ns_and_b32 s9, s3, 1\ns_lshl_b32 s9, s9, 3\ns_add_u32 s8, s8, s9\ns_mov_b64 s[62:63], 0x00ff00ff\ns_lshl_b64 s[62:63], s[62:63], s8")
    a("s_waitcnt lgkmcnt(0)\ns_barrier")
    quarter_publish(T, 72, 38, "s13", q=True)
    stamp(2)
    for i in range(NK0 + NKQ, 16):
        kload(i, W); extra(W, XK)
    a("s_lshr_b32 s8, s3, 1\ns_lshl_b32 s9, s6, 1\ns_add_u32 s8, s8, s9\ns_lshl_b32 s8, s8, 13")
    a("s_lshr_b32 s9, s7, 3\ns_lshl_b32 s9, s9, 9\ns_add_u32 s8, s8, s9\ns_and_b32 s9, s3, 1\ns_lshl_b32 s9, s9, 8\ns_add_u32 s8, s8, s9")
    a(f"s_add_u32 s8, s8, {WS_QP}\ns_add_u32 s8, s8, s98\ns_add_u32 s9, s8, 4096")
    def qgather(Tk, window=None):
        ids = []
        for r in range(8):
            ids.append(Tk.issue(f"buffer_load_dword v{40+r}, v9, s[64:67], {'s8' if r < 4 else 's9'} offen offset:{(r%4)*1024} sc1"))
        return ids
    if loc:
        a(f"s_add_u32 s10, s99, {WS_XID}\nv_lshlrev_b32 v50, 2, v5")
        T.issue("buffer_load_dword v49, v50, s[64:67], s10 offen sc1")
        if AD: T.issue("buffer_load_dword v52, v50, s[64:67], s10 offen offset:512 sc1")
    qg = qgather(T)
    vops = []
    mlop = []
    def vload(i, window):
        if i >= 16: return
        if AD and i >= NV0:
            l = a.newlabel("L_ad")
            a(f"s_cmp_eq_u32 s58, 0\ns_cbranch_scc1 {l}\ns_waitcnt vmcnt({WT-1})")
            a.label(l)
        if MLV and i == MLV:
            mlop.append(T.issue("buffer_load_dwordx4 v[232:235], v237, s[64:67], s87 offen sc1"))
        if G1 and i == G1:
            a("s_cmp_eq_u32 s61, 0\ns_cbranch_scc1 L_g1_done\ns_mov_b32 s12, 0")
            a.label("L_g1")
            a("buffer_load_dword v231, v237, s[64:67], s60 offen offset:256 sc1\ns_waitcnt vmcnt(0)")
            a("v_cmp_ne_u32 vcc, s78, v231\ns_cbranch_vccz L_g1_done")
            a("s_add_u32 s12, s12, 1\ns_cmp_lt_u32 s12, 256\ns_cbranch_scc1 L_g1")
            a.label("L_g1_done")
        vops.append(T.issue(f"buffer_load_dwordx4 v[{104+4*i}:{107+4*i}], v39, s[44:47], s15 offen offset:{(i%4)*1024} nt", window=window))
        if i % 4 == 3:
            a("s_add_u32 s15, s15, 131072")
        extra(window, XV)
    for i in range(NV0):
        vload(i, max(W, NV0) + 8 if i >= W else W + 8)
    T.wait(qg[-1])
    a("s_branch L_qchk")
    a.label("L_qretry")
    a("s_sleep 1")
    a("buffer_load_dword v49, v50, s[64:67], s10 offen sc1")
    Tr = T.fork(); qgather(Tr); a("s_waitcnt vmcnt(0)")
    a.label("L_qchk")
    untag(list(range(40, 48)), 48, q=True)
    a("v_xor_b32 v49, s72, v49\nv_cmp_lt_u32 vcc, 15, v49\nv_cndmask_b32 v51, 0, 1, vcc\nv_or_b32 v48, v48, v51")
    check_retry(48, "L_qretry", 1, q=True)
    cnt_stamp(26)
    if loc:
        a("v_cmp_ne_u32 vcc, 0, v49\ns_cmp_eq_u64 vcc, 0\ns_cselect_b32 s61, 1, 0\ns_mov_b32 s72, 0")
    if gate:
        a(f"s_add_u32 s60, s99, {WS_XID + 0x100 + LOCOFF}\nv_mov_b32 v238, s78\ns_lshl_b32 s8, s5, 2\nv_mov_b32 v239, s8")
    if MLV:
        a(f"s_bfe_u32 s8, s73, 0x10001\ns_lshl_b32 s8, s8, 11\ns_add_u32 s86, s8, {WS_ML}\ns_add_u32 s86, s86, s99")
        a("s_cmp_ge_u32 s74, 12\ns_cselect_b32 s87, 0x7fff0000, s86\ns_cmp_eq_u32 s61, 0\ns_cselect_b32 s87, 0x7fff0000, s87\nv_lshlrev_b32 v237, 7, v1")
    if AD:
        a(f"v_cmp_eq_u32 vcc, s78, v52\ns_bcnt1_i32_b32 s8, vcc_lo\ns_cmp_lt_u32 s8, {AD}\ns_cselect_b32 s58, s61, 0")
        a("s_cmp_lg_u32 s3, 0\ns_cbranch_scc1 L_sig1\ns_mov_b64 exec, 1")
        T.issue("buffer_store_dword v238, v239, s[64:67], s60 offen offset:256", cond=True)
        a("s_mov_b64 exec, -1")
        a.label("L_sig1")
    if G1:
        a("v_mov_b32 v237, v50\ns_cmp_lg_u32 s3, 0\ns_cbranch_scc1 L_sig1\ns_mov_b64 exec, 1")
        T.issue("buffer_store_dword v238, v239, s[64:67], s60 offen offset:256", cond=True)
        a("s_mov_b64 exec, -1")
        a.label("L_sig1")
    for r in range(0, 8, 2):
        a(f"v_add_f32 v{40+r}, v{40+r}, v{41+r}")
    a("v_add_f32 v40, v40, v42\nv_add_f32 v44, v44, v46\nv_add_f32 v40, v40, v44")
    a("v_cvt_pk_bf16_f32 v40, v40, v40")
    a(f"s_lshl_b32 s8, s3, 7\ns_add_u32 s8, s8, {L_QB}\nv_lshlrev_b32 v14, 1, v0\nv_add_u32 v14, s8, v14")
    a("ds_write_b16 v14, v40")
    a(f"v_and_b32 v14, 1, v1\nv_lshlrev_b32 v14, 8, v14\nv_lshl_add_u32 v14, v2, 4, v14\nv_add_u32 v14, {L_QB}, v14")
    for j in range(4):
        a(f"v_add_u32 v{20+j}, {4*j}, v2\nv_xor_b32 v{20+j}, v{20+j}, v1\nv_lshlrev_b32 v{20+j}, 4, v{20+j}\nv_lshl_add_u32 v{20+j}, v1, 8, v{20+j}\nv_add_u32 v{20+j}, s100, v{20+j}")
    a("s_waitcnt lgkmcnt(0)\ns_barrier")
    stamp(3)
    for j in range(4):
        a(f"ds_read_b128 v[{40+4*j}:{43+4*j}], v14 offset:{64*j}")
    def kread(t):
        base = 56 + 16 * (t % 2)
        for j in range(4):
            a(f"ds_read_b128 v[{base+4*j}:{base+4*j+3}], v{20+j} offset:{4096*t}")
    kread(0); kread(1)
    nv = NV0
    for t in range(4):
        base = 56 + 16 * (t % 2)
        a(f"s_waitcnt lgkmcnt({4 if t < 3 else 0})")
        for j in range(4):
            c = "0" if j == 0 else f"v[{88+4*t}:{91+4*t}]"
            a(f"v_mfma_f32_16x16x32_bf16 v[{88+4*t}:{91+4*t}], v[{40+4*j}:{43+4*j}], v[{base+4*j}:{base+4*j+3}], {c}")
        if t + 2 < 4:
            a("s_nop 1")
            kread(t + 2)
        vload(nv, W); nv += 1
    for h in range(2):
        a(f"v_cndmask_b32 v{24+h}, v{88+h}, v{92+h}, s[92:93]")
    for h in range(2):
        a(f"v_cndmask_b32 v{24+h}, v{24+h}, v{96+h}, s[94:95]")
    for h in range(2):
        a(f"v_cndmask_b32 v{24+h}, v{24+h}, v{100+h}, s[96:97]")
    a("v_cvt_pk_bf16_f32 v26, v24, v25\nv_lshlrev_b32 v24, 16, v26\nv_and_b32 v25, 0xffff0000, v26")
    sc = float_lit(128 ** -0.5)
    a(f"v_mul_f32 v24, {sc}, v24\nv_mul_f32 v25, {sc}, v25")
    a("v_cvt_pk_bf16_f32 v26, v24, v25\nv_lshlrev_b32 v24, 16, v26\nv_and_b32 v25, 0xffff0000, v26")
    a("v_mov_b32 v26, v24\nv_mov_b32 v27, v25")
    row_allreduce("v_max_f32", [26, 27])
    swap_reduce("v_max_f32", [26, 27], [14, 15], 16)
    swap_reduce("v_max_f32", [26, 27], [14, 15], 32)
    a(f"s_lshl_b32 s8, s3, 3\ns_add_u32 s8, s8, {L_MX}\nv_mov_b32 v14, s8\nv_mov_b32 v16, {L_MX}")
    a("ds_write_b64 v14, v[26:27]")
    vload(nv, W); nv += 1
    a("s_waitcnt lgkmcnt(0)\ns_barrier")
    a("ds_read_b128 v[40:43], v16\nds_read_b128 v[44:47], v16 offset:16")
    a("s_waitcnt lgkmcnt(0)")
    a("v_max3_f32 v26, v40, v42, v44\nv_max3_f32 v27, v41, v43, v45\nv_max_f32 v26, v26, v46\nv_max_f32 v27, v27, v47")
    l2e = float_lit(1.4426950408889634)
    a("v_sub_f32 v24, v24, v26\nv_sub_f32 v25, v25, v27")
    a(f"v_mul_f32 v24, {l2e}, v24\nv_mul_f32 v25, {l2e}, v25")
    a("v_exp_f32 v24, v24\nv_exp_f32 v25, v25")
    a(f"s_lshl_b32 s8, s3, 9\ns_add_u32 s8, s8, {L_PT}")
    a("v_and_b32 v15, 3, v0\nv_lshlrev_b32 v15, 6, v15\nv_lshrrev_b32 v17, 2, v0\nv_lshl_add_u32 v15, v17, 2, v15\nv_add_u32 v15, s8, v15")
    a("v_cvt_pk_bf16_f32 v40, v24, v24\nv_cvt_pk_bf16_f32 v41, v25, v25")
    a("ds_write_b32 v15, v40\nds_write_b32 v15, v41 offset:256")
    a("v_lshrrev_b32 v17, 3, v1\nv_lshlrev_b32 v17, 8, v17\nv_lshl_add_u32 v17, v2, 6, v17\nv_add_u32 v17, s8, v17")
    row_allreduce("v_add_f32", [24, 25])
    swap_reduce("v_add_f32", [24, 25], [42, 43], 16)
    swap_reduce("v_add_f32", [24, 25], [42, 43], 32)
    a("ds_write_b64 v14, v[24:25] offset:32")
    a("s_waitcnt lgkmcnt(0)")
    for q in range(4):
        a(f"ds_read_b128 v[{240+4*q}:{243+4*q}], v17 offset:{16*q}")
    vload(nv, W); nv += 1
    a("s_waitcnt lgkmcnt(0)")
    for u in range(16):
        for j in range(4):
            a(f"v_and_b32 v{40+4*u+j}, v{240+u}, v{32+j}")
        if u % 4 == 3 and nv < 16:
            vload(nv, W); nv += 1
    a("s_barrier")
    a("s_cmp_lg_u32 s3, 1\ns_cbranch_scc1 L_noml")
    a("ds_read_b128 v[240:243], v16 offset:32\nds_read_b128 v[244:247], v16 offset:48")
    a("s_waitcnt lgkmcnt(0)")
    a("v_add_f32 v240, v240, v242\nv_add_f32 v244, v244, v246\nv_add_f32 v241, v241, v243\nv_add_f32 v245, v245, v247")
    a("v_add_f32 v249, v240, v244\nv_add_f32 v251, v241, v245\nv_mov_b32 v248, v26\nv_mov_b32 v250, v27")
    tag([248, 249, 250, 251])
    a(f"s_and_b32 s8, s6, 1\ns_lshl_b32 s8, s8, 11\ns_lshl_b32 s9, s7, 7\ns_add_u32 s8, s8, s9\ns_add_u32 s8, s8, {WS_ML}\ns_add_u32 s8, s8, s99")
    a("s_mov_b64 exec, 0xff")
    publish(T, "buffer_store_dwordx4 v[248:251], v39, s[64:67], s8 offen", cond=True, local=True)
    a("s_mov_b64 exec, -1")
    a.label("L_noml")
    stamp(4)
    while nv < 16:
        vload(nv, WVT); nv += 1
    a(f"s_lshl_b32 s13, s6, 14\ns_lshl_b32 s9, s7, 9\ns_add_u32 s13, s13, s9\ns_add_u32 s13, s13, {WS_OPART}\ns_add_u32 s13, s13, s98")
    a("v_lshrrev_b32 v14, 1, v2\nv_mul_u32_u24 v14, 7680, v14\nv_add_u32 v28, v14, v38")
    a("s_cmp_lt_u32 s5, 18\ns_cbranch_scc1 L_F")
    Tbr = T.fork()

    def pv_and_publish(Tk, between, lab, defer=False):
        for u in range(16):
            between(u)
            Tk.wait(vops[u])
            if gate and u == USIG:
                l = a.newlabel("L_sig")
                a(f"s_cmp_lg_u32 s3, 0\ns_cbranch_scc1 {l}\ns_mov_b64 exec, 1")
                Tk.issue("buffer_store_dword v238, v239, s[64:67], s60 offen", cond=True)
                a("s_mov_b64 exec, -1")
                a.label(l)
            c = "0" if u == 0 else "v[240:243]"
            a(f"v_mfma_f32_16x16x32_bf16 v[240:243], v[{40+4*u}:{43+4*u}], v[{104+4*u}:{107+4*u}], {c}")
        stamp(5)
        a("ds_write_b128 v18, v[240:243]")
        a("s_waitcnt lgkmcnt(0)\ns_barrier")
        d = quarter_publish(Tk, 240, 28, "s13", defer=defer)
        stamp(6)
        return d

    def tile_swap(base, n=6):
        for k in range(n):
            r = base + 8 * k
            a(f"v_swap_b32 v{r+2}, v{r+4}\nv_swap_b32 v{r+3}, v{r+5}")
    ACC = [240, 244, 248, 252, 76, 80]
    def sel_and(st, x0, x1):
        a(f"v_and_b32 v{84+4*st}, v{x0}, v36\nv_and_b32 v{85+4*st}, v{x0}, v37\nv_and_b32 v{86+4*st}, v{x1}, v36\nv_and_b32 v{87+4*st}, v{x1}, v37")
    def stat_fill():
        L = [f"v_sub_f32 v{44+r}, v{60+r}, v29" for r in range(4)]
        L += ["v_add_f32 v52, v44, v45", "v_add_f32 v53, v46, v47", "v_mul_f32 v54, v44, v44", "v_mul_f32 v55, v45, v45",
              "v_fmac_f32 v54, v46, v46", "v_fmac_f32 v55, v47, v47", "v_add_f32 v52, v52, v53", "v_add_f32 v53, v54, v55",
              "v_cmp_gt_u32 vcc, 24, v5", "s_nop 0", "v_cndmask_b32 v52, 0, v52, vcc", "v_cndmask_b32 v53, 0, v53, vcc"]
        for st in (8, 4, 2, 1):
            L += [f"v_add_f32_dpp v52, v52, v52 row_ror:{st} row_mask:0xf bank_mask:0xf", f"v_add_f32_dpp v53, v53, v53 row_ror:{st} row_mask:0xf bank_mask:0xf"]
        L += ["v_mov_b32 v54, v52", "v_mov_b32 v55, v53", "v_permlane16_swap_b32 v52, v54", "v_permlane16_swap_b32 v53, v55", "v_add_f32 v52, v52, v54", "v_add_f32 v53, v53, v55",
              "v_mov_b32 v54, v52", "v_mov_b32 v55, v53", "v_permlane32_swap_b32 v52, v54", "v_permlane32_swap_b32 v53, v55"]
        L += [f"v_bfi_b32 v{r}, s77, v30, v{r}" for r in (52, 53, 54, 55)]
        return L
    def mfma_block(base, nsets, acc, filler=None, nfill=2):
        for k in range(6):
            for st in range(nsets):
                r = base + 24 * st + 4 * k
                c = "0" if st == 0 else f"v[{acc[k]}:{acc[k]+3}]"
                a(f"v_mfma_f32_16x16x32_bf16 v[{acc[k]}:{acc[k]+3}], v[{84+4*st}:{87+4*st}], v[{r}:{r+3}], {c}")
                if filler:
                    for _ in range(nfill):
                        if filler: a(filler.pop(0))
            if k >= 2:
                kk = k - 2
                a(f"ds_write_b128 v22, v[{acc[kk]}:{acc[kk]+3}] offset:{((kk//2)*16 + (kk%2))*16}")
        while filler: a(filler.pop(0))
        for kk in (4, 5):
            a(f"ds_write_b128 v22, v[{acc[kk]}:{acc[kk]+3}] offset:{((kk//2)*16 + (kk%2))*16}")
    def reduce8_store(sout):
        a("s_mov_b64 exec, 0xffffff")
        a("s_waitcnt lgkmcnt(0)\ns_barrier")
        for p in range(8):
            a(f"ds_read_b128 v[{40+4*p}:{43+4*p}], v23 offset:{1536*p}")
        for p in range(0, 8, 2):
            a(f"s_waitcnt lgkmcnt({6-p})")
            a(f"v_pk_add_f32 v[{40+4*p}:{41+4*p}], v[{40+4*p}:{41+4*p}], v[{44+4*p}:{45+4*p}]\nv_pk_add_f32 v[{42+4*p}:{43+4*p}], v[{42+4*p}:{43+4*p}], v[{46+4*p}:{47+4*p}]")
            if p == 2 or p == 6:
                q = p - 2
                a(f"v_pk_add_f32 v[{40+4*q}:{41+4*q}], v[{40+4*q}:{41+4*q}], v[{48+4*q}:{49+4*q}]\nv_pk_add_f32 v[{42+4*q}:{43+4*q}], v[{42+4*q}:{43+4*q}], v[{50+4*q}:{51+4*q}]")
        a("v_pk_add_f32 v[40:41], v[40:41], v[56:57]\nv_pk_add_f32 v[42:43], v[42:43], v[58:59]")
        tag([40, 41, 42, 43])
        a(f"buffer_store_dwordx4 v[40:43], v39, s[64:67], {sout} offen sc1")
        a("s_mov_b64 exec, -1")
    def red_write_addr():
        a("s_mul_i32 s8, s3, 3072")
        a("v_lshrrev_b32 v14, 3, v1\nv_mul_u32_u24 v22, 1536, v14\nv_and_b32 v14, 1, v2\nv_mul_u32_u24 v14, 768, v14\nv_add_u32 v22, v22, v14\nv_and_b32 v14, 7, v1\nv_lshl_add_u32 v22, v14, 5, v22")
        a("v_add_u32 v22, s8, v22")
        a("v_lshrrev_b32 v14, 3, v1\nv_lshrrev_b32 v15, 1, v2\nv_cmp_eq_u32 vcc, v14, v15\nv_add_u32 v14, 16384, v39\nv_cndmask_b32 v22, v14, v22, vcc")
    def rec_soffset(dst, scol3, sprod, base):
        a(f"s_lshl_b32 s8, {scol3}, 1\ns_and_b32 s9, s3, 1\ns_add_u32 s8, s8, s9\ns_lshl_b32 s8, s8, 18")
        a(f"s_mul_i32 {dst}, {sprod}, 768\ns_add_u32 {dst}, {dst}, s8\ns_lshr_b32 s9, s3, 1\ns_mul_i32 s9, s9, 384\ns_add_u32 {dst}, {dst}, s9\ns_add_u32 {dst}, {dst}, {base}")
    def half8(op, r):
        a(f"{op}_dpp v{r}, v{r}, v{r} quad_perm:[1,0,3,2] row_mask:0xf bank_mask:0xf")
        a(f"{op}_dpp v{r}, v{r}, v{r} quad_perm:[2,3,0,1] row_mask:0xf bank_mask:0xf")
        a(f"{op}_dpp v{r}, v{r}, v{r} row_half_mirror row_mask:0xf bank_mask:0xf")

    def ml_weights(r):
        a("s_bitcmp1_b32 s11, 0\ns_cselect_b64 vcc, -1, 0")
        a(f"v_cndmask_b32 v{r}, v232, v234, vcc\nv_cndmask_b32 v{r+1}, v233, v235, vcc")
        a(f"v_mov_b32 v{r+2}, v{r}")
        half8("v_max_f32", r+2)
        a(f"v_sub_f32 v{r}, v{r}, v{r+2}\nv_mul_f32 v{r}, {l2e}, v{r}\nv_exp_f32 v{r}, v{r}")
        a(f"v_mul_f32 v{r+1}, v{r+1}, v{r}")
        half8("v_add_f32", r+1)
        a(f"v_rcp_f32 v{r+1}, v{r+1}")
        a(f"v_mul_f32 v{r}, v{r}, v{r+1}")
        a(f"ds_write_b32 v6, v{r}")
    T = Tbr.fork()
    a("s_mov_b32 s10, s74\ns_mov_b32 s11, s73")
    a(f"s_bfe_u32 s8, s11, 0x10001\ns_lshl_b32 s8, s8, 11\ns_add_u32 s86, s8, {WS_ML}\ns_add_u32 s86, s86, s99\ns_add_u32 s86, s86, s72")
    a("v_lshlrev_b32 v25, 7, v1")
    if MLV == 16:
        mlop.append(T.issue("buffer_load_dwordx4 v[232:235], v237, s[64:67], s87 offen sc1"))
    nwo = len(woo)
    for k in range(nwo, len(wol)):
        T.issue(wol[k], window=WE + W)
    a("s_sub_u32 s48, s10, 5\ns_and_b32 s8, s48, 15\ns_mul_i32 s87, s8, 11\ns_lshr_b32 s87, s87, 5\ns_mul_i32 s9, s87, 3\ns_sub_u32 s49, s8, s9")
    a("s_mul_i32 s12, s4, 3\ns_add_u32 s12, s12, s87")
    a("s_mul_i32 s8, s12, 192\ns_mul_i32 s9, s3, 48\ns_add_u32 s8, s8, s9\ns_mul_i32 s8, s8, 1152\ns_mul_i32 s9, s49, 384\ns_add_u32 s50, s8, s9")
    a(f"s_add_u32 s51, s50, {16*1152}\ns_add_u32 s84, s50, {32*1152}")
    srd(44, 32, 4608 * 576 * 2)
    a("s_cmp_lt_u32 s10, 5\ns_cselect_b32 s50, 0x7fff0000, s50\ns_cselect_b32 s51, 0x7fff0000, s51\ns_cselect_b32 s84, 0x7fff0000, s84")
    w2l = tile_loads(104, 44, ["s50", "s51", "s84"])
    a(f"s_mul_i32 s100, s3, {NL*2048}\ns_add_u32 s100, s100, 20480")
    for k in range(2 * NL):
        st, cb, rr = k // 6, (k % 6) // 2, k % 2
        imm = rr * 1152 + cb * 128
        a(f"s_add_u32 s101, s100, {1024*k - imm}\ns_mov_b32 m0, s101")
        T.issue(f"buffer_load_dwordx4 v236, s[44:47], {['s50','s51','s84'][st]} offen offset:{imm} nt lds", window=WE + W)
    a("v_bfe_u32 v14, v1, 2, 1\nv_lshrrev_b32 v15, 3, v1")
    a("v_lshlrev_b32 v21, 5, v14\nv_lshl_add_u32 v21, v15, 3, v21\nv_lshl_add_u32 v21, v2, 1, v21\nv_lshlrev_b32 v21, 2, v21")
    a("v_lshlrev_b32 v3, 4, v14\nv_lshl_add_u32 v3, v15, 1, v3\nv_lshrrev_b32 v14, 1, v2\nv_add_u32 v3, v3, v14\nv_and_b32 v14, 1, v2\nv_lshl_add_u32 v3, v14, 5, v3\nv_lshlrev_b32 v3, 2, v3")
    red_write_addr()
    a("s_mul_i32 s8, s3, 384\nv_add_u32 v23, s8, v39")
    rec_soffset("s85", "s80", "s11", WS_Y)
    a(f"s_lshl_b32 s8, s3, 6\ns_add_u32 s8, s8, {L_WT}\nv_lshlrev_b32 v6, 2, v1\nv_add_u32 v6, s8, v6")
    a("v_lshlrev_b32 v7, 5, v4\nv_add_u32 v7, s8, v7")
    a(f"s_lshl_b32 s83, s11, 13\ns_lshl_b32 s8, s3, 7\ns_add_u32 s83, s83, s8\ns_add_u32 s83, s83, {WS_OPART}\ns_add_u32 s83, s83, s98\ns_add_u32 s83, s83, s72")
    a("v_lshlrev_b32 v26, 12, v4\nv_lshl_add_u32 v26, v5, 2, v26")
    rec_soffset("s40", "s49", "s12", WS_OP)
    a("s_add_u32 s12, s99, s72")
    a(f"s_lshl_b32 s41, s87, 10\ns_add_u32 s41, s41, s12\ns_add_u32 s41, s41, {WS_ST}")
    a("v_and_b32 v10, 7, v0\nv_lshlrev_b32 v10, 7, v10")
    a(f"s_mul_i32 s9, s3, 192\ns_add_u32 s12, s12, s9\ns_mul_i32 s56, s87, {6*3072}\ns_add_u32 s56, s56, s12\ns_add_u32 s56, s56, {WS_G}")
    a("s_add_u32 s57, s56, 6144\ns_add_u32 s58, s56, 12288")
    a(f"s_mul_i32 s88, s87, {6*1536}\ns_add_u32 s88, s88, s12\ns_add_u32 s88, s88, {WS_S}\ns_add_u32 s89, s88, 4608")
    a("v_mul_u32_u24 v11, 768, v2\nv_lshl_add_u32 v11, v1, 4, v11")
    a("v_mul_u32_u24 v12, 768, v4\nv_lshl_add_u32 v12, v1, 4, v12")
    a("v_and_b32 v14, 1, v2\nv_cmp_eq_u32 s[42:43], 1, v14")
    a("v_readlane_b32 s8, v29, 0\nv_readlane_b32 s9, v29, 32\nv_mov_b32 v13, s8\nv_mov_b32 v14, s9\nv_cndmask_b32 v13, v13, v14, s[42:43]")
    def betweenE(u):
        if MLV and u == MLV:
            T.wait(mlop[0])
            a("s_mov_b32 s59, 0\ns_cmp_eq_u32 s61, 0\ns_cbranch_scc1 L_mle")
            untag([232, 233, 234, 235], 228)
            a("v_and_b32 v228, s77, v228\nv_cmp_ne_u32 vcc, 0, v228\ns_cbranch_vccnz L_mle")
            ml_weights(228)
            a("s_mov_b32 s59, 1")
            a.label("L_mle")
    pv_and_publish(T, betweenE, "L_noopE")
    a("s_cmp_ge_u32 s10, 12\ns_cbranch_scc1 L_E_D")
    gML = Gather([("buffer_load_dwordx4 v[232:235], v25, s[64:67], s86 offen sc1", [232, 233, 234, 235])], tmp=76)
    gO = Gather([(f"buffer_load_dword v{64+s_}, v26, s[64:67], s83 offen offset:{512*s_} sc1", [64+s_]) for s_ in range(8)], tmp=76)
    if MLV == 16:
        betweenE(16)
    if MLV:
        a("s_cmp_eq_u32 s59, 0\ns_cbranch_scc1 L_mllate")
        gO.issue()
        a("s_waitcnt lgkmcnt(0)")
        tile_swap(168)
        a("s_branch L_mlw_done")
        a.label("L_mllate")
    gML.issue(); gO.issue()
    stamp(16)
    if not woearly: a("s_waitcnt vmcnt(9)")
    tile_swap(168)
    a("s_waitcnt vmcnt(8)")
    stamp(18)
    gML.loop()
    ml_weights(72)
    a("s_waitcnt lgkmcnt(0)")
    a.label("L_mlw_done")
    a("ds_read_b128 v[88:91], v7\nds_read_b128 v[92:95], v7 offset:16")
    stamp(7)
    if prog:
        a("s_waitcnt lgkmcnt(0)")
        gO.ploop(acc=lambda k: a(f"v_mul_f32 v100, v64, v88" if k == 0 else f"v_fmac_f32 v100, v{64+k}, v{88+k}"))
        stamp(8)
        a("v_cvt_pk_bf16_f32 v100, v100, v100")
    else:
        a("s_waitcnt vmcnt(0)")
        gO.loop()
        stamp(8)
        a("s_waitcnt lgkmcnt(0)")
        a("v_mul_f32 v100, v64, v88\nv_mul_f32 v101, v65, v89")
        for s_ in range(2, 8, 2):
            a(f"v_fmac_f32 v100, v{64+s_}, v{88+s_}\nv_fmac_f32 v101, v{65+s_}, v{89+s_}")
        a("v_add_f32 v100, v100, v101\nv_cvt_pk_bf16_f32 v100, v100, v100")
    for k, off in enumerate([0, 4, 64, 68]):
        a(f"ds_bpermute_b32 v{96+k}, v21, v100 offset:{off}")
    for st in range(2):
        a(f"s_waitcnt lgkmcnt({2-2*st})")
        sel_and(st, 96+2*st, 97+2*st)
    mfma_block(168, 2, ACC)
    reduce8_store("s85")
    if ygate:
        a("s_cmp_lg_u32 s3, 0\ns_cbranch_scc1 L_y2\ns_mov_b64 exec, 1")
        a("buffer_store_dword v238, v239, s[64:67], s60 offen offset:128\ns_mov_b64 exec, -1")
        a.label("L_y2")
    stamp(9)
    a("s_cmp_lt_u32 s10, 5\ns_cbranch_scc1 L_fin")
    a("s_branch L_D2")
    a.label("L_E_D")
    if gate == 2:
        a("s_cmp_lg_u32 s10, 13\ns_cbranch_scc1 L_lead_done\ns_cmp_lg_u32 s3, 0\ns_cbranch_scc1 L_lead_done\ns_cmp_eq_u32 s72, 0\ns_cbranch_scc1 L_lead_done")
        a("v_lshlrev_b32 v14, 2, v5")
        a.label("L_lead")
        a("buffer_load_dword v15, v14, s[64:67], s60 offen sc1\ns_waitcnt vmcnt(0)")
        a("v_cmp_ne_u32 vcc, s78, v15\ns_cbranch_vccz L_lead_ok")
        a(f"s_add_u32 s79, s79, 1\ns_cmp_lt_u32 s79, {POLL_MAX}\ns_cbranch_scc1 L_lead")
        a.label("L_lead_ok")
        a(f"s_lshl_b32 s8, s4, 2\ns_add_u32 s8, s8, {WS_GD}\nv_mov_b32 v14, 0\ns_mov_b64 exec, 1")
        a("buffer_store_dword v238, v14, s[64:67], s8 offen sc1\ns_mov_b64 exec, -1")
        a.label("L_lead_done")
    a.label("L_D2")
    T.ops = []
    for ins in w2l[2*NL:]:
        a(ins)
    a(f"s_waitcnt vmcnt({18-2*NL})")
    a("v_add_u32 v14, s100, v39")
    for k in range(NL):
        a(f"ds_read2_b64 v[{104+8*k}:{107+8*k}], v14 offset0:0 offset1:128\nds_read2_b64 v[{108+8*k}:{111+8*k}], v14 offset0:1 offset1:129")
        if k < NL - 1: a("v_add_u32 v14, 2048, v14")
    M12 = (0x0fff0fff, 0x0fff0fff)
    gS = Gather([(f"buffer_load_dwordx4 v[{176+4*rg}:{179+4*rg}], v12, s[64:67], s{88+rg//3} offen offset:{1536*(rg%3)} sc1", list(range(176+4*rg, 180+4*rg))) for rg in range(6)], base=[M12]*6, tmp=76)
    gG = Gather([("buffer_load_dwordx4 v[224:227], v10, s[64:67], s41 offen sc1", [224, 225, 226, 227])] +
                [(f"buffer_load_dwordx4 v[{200+4*rg}:{203+4*rg}], v11, s[64:67], s{56+rg//2} offen offset:{3072*(rg%2)} sc1", list(range(200+4*rg, 204+4*rg))) for rg in range(6)],
                base=[(0x3f3f3f3f, 0x3f3f3f3f)] + [M12]*6, tmp=76)
    a("v_mov_b32 v224, 0\nv_mov_b32 v225, 0\nv_mov_b32 v226, 0\nv_mov_b32 v227, 0")
    if dj:
        a(f"s_waitcnt vmcnt({dj})")
        gS.issue(); gG.issue()
        a("s_barrier")
        a("s_waitcnt vmcnt(13)")
        stamp(10)
        tile_swap(104 + 8*NL, 9 - NL)
        a("s_waitcnt vmcnt(7)")
        gS.loop()
    else:
        a("s_waitcnt vmcnt(0)")
        gS.issue()
        a("s_barrier")
        stamp(10)
        tile_swap(104 + 8*NL, 9 - NL)
        a("s_waitcnt vmcnt(0)")
        gS.loop()
        gG.issue()
    def sum6(b0, d):
        L = []
        for h in (0, 2):
            L += [f"v_pk_add_f32 v[{b0+h}:{b0+h+1}], v[{b0+h}:{b0+h+1}], v[{b0+4+h}:{b0+5+h}]",
                  f"v_pk_add_f32 v[{b0+8+h}:{b0+9+h}], v[{b0+8+h}:{b0+9+h}], v[{b0+12+h}:{b0+13+h}]",
                  f"v_pk_add_f32 v[{b0+16+h}:{b0+17+h}], v[{b0+16+h}:{b0+17+h}], v[{b0+20+h}:{b0+21+h}]"]
        for h in (0, 2):
            L += [f"v_pk_add_f32 v[{b0+h}:{b0+h+1}], v[{b0+h}:{b0+h+1}], v[{b0+8+h}:{b0+9+h}]"]
        for h in (0, 2):
            L += [f"v_pk_add_f32 v[{d+h}:{d+h+1}], v[{b0+h}:{b0+h+1}], v[{b0+16+h}:{b0+17+h}]"]
        return L
    for ins in sum6(176, 68): a(ins)
    a("v_permlane32_swap_b32 v68, v70\nv_permlane32_swap_b32 v69, v71")
    stamp(11); cnt_stamp(24)
    if prog:
        def accG(k):
            if k == 0:
                a("s_mov_b64 exec, -1")
                a("v_cndmask_b32 v72, v224, v226, s[42:43]\nv_cndmask_b32 v73, v225, v227, s[42:43]")
                row_allreduce("v_add_f32", [72, 73], steps=(4, 2, 1))
                a(f"v_mul_f32 v72, {float_lit(1/576)}, v72\nv_mul_f32 v73, {float_lit(1/576)}, v73")
            elif k == 2:
                a("v_pk_add_f32 v[64:65], v[200:201], v[204:205]\nv_pk_add_f32 v[66:67], v[202:203], v[206:207]")
            elif k > 2:
                b0 = 200 + 4 * (k - 1)
                a(f"v_pk_add_f32 v[64:65], v[64:65], v[{b0}:{b0+1}]\nv_pk_add_f32 v[66:67], v[66:67], v[{b0+2}:{b0+3}]")
        gG.ploop(acc=accG)
        stamp(12); cnt_stamp(25)
    else:
        a("s_waitcnt vmcnt(0)")
        stamp(20)
        selloop(gG) if sel & 4 else gG.loop()
        stamp(12); cnt_stamp(25)
        sq = sum6(200, 64)
        a("v_cndmask_b32 v72, v224, v226, s[42:43]\nv_cndmask_b32 v73, v225, v227, s[42:43]")
        for i, stp in enumerate((4, 2, 1)):
            a(sq[2*i]); a(sq[2*i+1])
            a(f"v_add_f32_dpp v72, v72, v72 row_ror:{stp} row_mask:0xf bank_mask:0xf\nv_add_f32_dpp v73, v73, v73 row_ror:{stp} row_mask:0xf bank_mask:0xf")
        a(sq[6]); a(sq[7])
        a(f"v_mul_f32 v72, {float_lit(1/576)}, v72\nv_mul_f32 v73, {float_lit(1/576)}, v73")
        a(sq[8]); a(sq[9])
    a("v_fma_f32 v73, -v72, v72, v73\nv_add_f32 v72, v72, v13\nv_max_f32 v73, 0, v73")
    a("v_permlane32_swap_b32 v64, v66\nv_permlane32_swap_b32 v65, v67")
    a("v_cvt_pk_bf16_f32 v74, v73, v72\nv_lshlrev_b32 v73, 16, v74\nv_and_b32 v72, 0xffff0000, v74")
    a(f"v_add_f32 v73, {float_lit(1e-5)}, v73")
    bf16r(73, 73)
    a("v_sqrt_f32 v73, v73")
    for r in range(4):
        a(f"v_fma_f32 v{64+r}, -v72, v{68+r}, v{64+r}")
    bf16r(73, 73)
    a("v_rcp_f32 v73, v73")
    for r in range(4):
        a(f"v_mul_f32 v{64+r}, v{64+r}, v73")
    a("v_cvt_pk_bf16_f32 v68, v64, v65\nv_cvt_pk_bf16_f32 v69, v66, v67")
    a("v_lshlrev_b32 v64, 16, v68\nv_and_b32 v65, 0xffff0000, v68\nv_lshlrev_b32 v66, 16, v69\nv_and_b32 v67, 0xffff0000, v69")
    nl = float_lit(-1.4426950408889634)
    a(f"v_mul_f32 v68, {nl}, v64\nv_mul_f32 v69, {nl}, v65\nv_exp_f32 v68, v68\nv_exp_f32 v69, v69")
    a("v_add_f32 v68, 1.0, v68\nv_add_f32 v69, 1.0, v69\nv_rcp_f32 v68, v68\nv_rcp_f32 v69, v69")
    a("v_mul_f32 v64, v64, v68\nv_mul_f32 v65, v65, v69")
    a("v_cvt_pk_bf16_f32 v68, v64, v65\nv_lshlrev_b32 v64, 16, v68\nv_and_b32 v65, 0xffff0000, v68")
    a("v_mul_f32 v64, v64, v66\nv_mul_f32 v65, v65, v67")
    a("v_cvt_pk_bf16_f32 v102, v64, v64\nv_cvt_pk_bf16_f32 v103, v65, v65")
    for st in range(3):
        a(f"ds_bpermute_b32 v{96+2*st}, v3, v102 offset:{16*st}\nds_bpermute_b32 v{97+2*st}, v3, v103 offset:{16*st}")
    for st in range(3):
        a(f"s_waitcnt lgkmcnt({4-2*st})")
        sel_and(st, 96+2*st, 97+2*st)
    mfma_block(104, 3, ACC)
    reduce8_store("s40")
    stamp(13)
    a("s_branch L_fin")

    a.label("L_F")
    T = Tbr.fork()
    a("s_mul_i32 s10, s5, 11\ns_lshr_b32 s10, s10, 5\ns_cmp_eq_u32 s5, 17\ns_cselect_b32 s10, 5, s10\ns_cmp_eq_u32 s5, 14\ns_cselect_b32 s10, 4, s10")
    a("s_mul_i32 s8, s10, 3\ns_sub_u32 s11, s5, s8")
    a("s_cmp_ge_u32 s3, 2\ns_cselect_b32 s56, s30, s28\ns_cselect_b32 s57, s31, s29\ns_and_b32 s57, s57, 0xffff")
    a(f"s_mov_b32 s58, {576*4608*2}\ns_mov_b32 s59, 0x00020000")
    a("v_lshrrev_b32 v20, 3, v1\nv_lshlrev_b32 v20, 3, v20\nv_lshl_add_u32 v20, v2, 1, v20\nv_mul_u32_u24 v20, 9216, v20\nv_and_b32 v14, 7, v1\nv_lshl_add_u32 v20, v14, 4, v20")
    a("s_mul_i32 s12, s4, 3\ns_add_u32 s12, s12, s11")
    a("s_mul_i32 s8, s10, 96\ns_and_b32 s9, s3, 1\ns_mul_i32 s9, s9, 48\ns_add_u32 s8, s8, s9\ns_mul_i32 s81, s8, 9216\ns_mul_i32 s9, s12, 384\ns_add_u32 s81, s81, s9")
    gl = []
    def gload(t, window):
        st, rr, cb = t // 6, (t % 6) // 3, t % 3
        r = 168 + 24 * st + 8 * cb + 4 * rr
        gl.append(T.issue(f"buffer_load_dwordx4 v[{r}:{r+3}], v20, s[56:59], s81 offen offset:{128*cb} nt", window=window))
        if cb == 2: a(f"s_add_u32 s81, s81, {9216 if rr == 0 else 15*9216}")
    a("v_mul_u32_u24 v21, 1152, v4\nv_lshl_add_u32 v21, v5, 3, v21\ns_mul_i32 s8, s10, 192")
    xres = T.issue("buffer_load_dwordx2 v[26:27], v21, s[68:71], s8 offen")
    a(f"s_lshl_b32 s80, s10, 18\ns_mul_i32 s82, s3, {8*768}\ns_add_u32 s82, s82, s80\ns_add_u32 s82, s82, {WS_Y}\ns_add_u32 s83, s82, 3072")
    a("v_mul_u32_u24 v21, 384, v4\nv_lshl_add_u32 v21, v5, 4, v21")
    red_write_addr()
    a(f"s_lshl_b32 s8, s3, 10\ns_add_u32 s8, s8, {L_RED2}\nv_add_u32 v16, s8, v39")
    a("s_lshr_b32 s8, s3, 1\ns_mul_i32 s8, s8, 6144\ns_and_b32 s9, s3, 1\ns_mul_i32 s9, s9, 768\ns_add_u32 s8, s8, s9\nv_add_u32 v23, s8, v39")
    a(f"s_mul_i32 s84, s3, 768\ns_add_u32 s84, s84, {L_XT}\nv_add_u32 v17, s84, v21")
    a("v_bfe_u32 v14, v1, 2, 1\nv_mul_u32_u24 v24, 384, v14\nv_lshrrev_b32 v14, 3, v1\nv_lshl_add_u32 v24, v14, 5, v24\nv_lshl_add_u32 v24, v2, 3, v24")
    a("s_and_b32 s9, s3, 1\ns_mul_i32 s9, s9, 192\ns_add_u32 s9, s9, s84\nv_add_u32 v24, s9, v24")
    a(f"v_add_u32 v25, {L_H}, v21")
    a("s_mul_i32 s8, s11, 6\ns_add_u32 s8, s8, s10")
    a(f"s_mul_i32 s85, s8, 3072\ns_mul_i32 s9, s3, 768\ns_add_u32 s85, s85, s9\ns_add_u32 s85, s85, s99\ns_add_u32 s85, s85, {WS_G}")
    a(f"s_mul_i32 s87, s8, 1536\ns_lshr_b32 s9, s3, 1\ns_mul_i32 s9, s9, 768\ns_add_u32 s87, s87, s9\ns_add_u32 s87, s87, s99\ns_add_u32 s87, s87, {WS_S}")
    a(f"s_lshl_b32 s86, s11, 10\ns_lshl_b32 s9, s10, 7\ns_add_u32 s86, s86, s9\ns_add_u32 s86, s86, s99\ns_add_u32 s86, s86, {WS_ST}")
    a("v_and_b32 v10, 0x3f803f80, v36\nv_and_b32 v11, 0x3f803f80, v37\nv_mov_b32 v12, v10\nv_mov_b32 v13, v11")
    srd(72, 34, 2304)
    a(f"s_lshl_b32 s9, s12, 5\ns_add_u32 s40, s80, s9\ns_add_u32 s40, s40, {WS_OP}\ns_add_u32 s41, s40, {8*768}\ns_add_u32 s42, s40, {16*768}")
    a("v_lshrrev_b32 v14, 3, v0\nv_mul_u32_u24 v7, 768, v14\nv_and_b32 v14, 7, v0\nv_lshl_add_u32 v7, v14, 2, v7")
    a(f"s_add_u32 s8, s9, {L_H}\nv_lshlrev_b32 v8, 2, v14\nv_add_u32 v8, s8, v8")
    a("s_cmp_ge_u32 s12, 12\ns_cselect_b32 s43, 480, 0\ns_mul_i32 s8, s10, 96\ns_add_u32 s43, s43, s8\ns_lshl_b32 s8, s12, 3\ns_add_u32 s43, s43, s8\ns_lshl_b32 s43, s43, 1")
    a("v_lshlrev_b32 v3, 1, v14")
    ng = [0]
    def betweenF(u):
        if u >= 16 - WFP and ng[0] < 18:
            gload(ng[0], None); ng[0] += 1
    pv_and_publish(T, betweenF, "L_noopF")
    if gate:
        a("s_cmp_eq_u32 s61, 0\ns_cbranch_scc1 L_gate_done")
        if gate == 1:
            a("v_lshlrev_b32 v14, 2, v5\ns_mov_b32 s8, 0")
        else:
            a(f"v_and_b32 v14, 7, v0\nv_lshlrev_b32 v14, 2, v14\ns_mov_b32 s60, {WS_GD}\ns_mov_b32 s61, 0")
        a.label("L_gate")
        a("buffer_load_dword v15, v14, s[64:67], s60 offen sc1\ns_waitcnt vmcnt(0)")
        a("v_cmp_ne_u32 vcc, s78, v15\ns_cbranch_vccz L_gate_done")
        if gate == 1:
            a("s_add_u32 s8, s8, 1\ns_cmp_lt_u32 s8, 256\ns_cbranch_scc1 L_gate")
        else:
            a(f"s_add_u32 s61, s61, 1\ns_cmp_lt_u32 s61, {GMAX}\ns_cbranch_scc1 L_gate")
        a.label("L_gate_done")
    while ng[0] < 18:
        gload(ng[0], WF); ng[0] += 1
    stamp(7)
    M24 = (0xffffff, 0xffffff)
    gY = Gather([(f"buffer_load_dwordx4 v[{104+4*k}:{107+4*k}], v21, s[64:67], {'s82' if k < 4 else 's83'} offen offset:{768*(k%4)} sc1", list(range(104+4*k, 108+4*k))) for k in range(8)],
                base=[M24] * 8, tmp=76)
    T.wait(xres)
    a("v_lshlrev_b32 v100, 16, v26\nv_and_b32 v101, 0xffff0000, v26\nv_lshlrev_b32 v102, 16, v27\nv_and_b32 v103, 0xffff0000, v27")
    SACC = [40, 44, 48, 52, 56, 60]
    for st in range(3):
        for cb in range(3):
            if st == 2 and cb == YCB: gY.issue(T)
            T.wait(gl[6*st + 3 + cb])
            r = 168 + 24 * st + 8 * cb
            a(f"v_swap_b32 v{r+2}, v{r+4}\nv_swap_b32 v{r+3}, v{r+5}")
            for hf in range(2):
                k = 2 * cb + hf
                c = "0" if st == 0 else f"v[{SACC[k]}:{SACC[k]+3}]"
                a(f"v_mfma_f32_16x16x32_bf16 v[{SACC[k]}:{SACC[k]+3}], v[10:13], v[{r+4*hf}:{r+4*hf+3}], {c}")
    if YCB >= 3 and not ygate: gY.issue(T)
    stamp(17)
    for k in range(6):
        a(f"ds_write_b128 v22, v[{SACC[k]}:{SACC[k]+3}] offset:{((k//2)*16 + (k%2))*16 + (32768 if sdef else 0)}")
    def reduce4(r):
        a("s_mov_b32 exec_lo, -1\ns_mov_b32 exec_hi, 0xffff")
        for p in range(4):
            a(f"ds_read_b128 v[{r+4*p}:{r+4*p+3}], v23 offset:{1536*p}")
        a("s_waitcnt lgkmcnt(2)")
        a(f"v_pk_add_f32 v[{r}:{r+1}], v[{r}:{r+1}], v[{r+4}:{r+5}]\nv_pk_add_f32 v[{r+2}:{r+3}], v[{r+2}:{r+3}], v[{r+6}:{r+7}]")
        a("s_waitcnt lgkmcnt(0)")
        a(f"v_pk_add_f32 v[{r+8}:{r+9}], v[{r+8}:{r+9}], v[{r+12}:{r+13}]\nv_pk_add_f32 v[{r+10}:{r+11}], v[{r+10}:{r+11}], v[{r+14}:{r+15}]")
        a(f"v_pk_add_f32 v[{r}:{r+1}], v[{r}:{r+1}], v[{r+8}:{r+9}]\nv_pk_add_f32 v[{r+2}:{r+3}], v[{r+2}:{r+3}], v[{r+10}:{r+11}]")
        tag([r, r+1, r+2, r+3])
    if not sdef:
        a("s_waitcnt lgkmcnt(0)\ns_barrier")
        a("s_bitcmp1_b32 s3, 0\ns_cbranch_scc1 L_noS")
        reduce4(136)
        pub("buffer_store_dwordx4 v[136:139], v39, s[64:67], s87 offen")
        a("s_mov_b64 exec, -1")
        a.label("L_noS")
    a.label("L_S1")
    if not prog: a("s_waitcnt vmcnt(0)")
    T.ops = []
    if ygate:
        a("s_cmp_eq_u32 s61, 0\ns_cbranch_scc1 L_yg_done\nv_lshlrev_b32 v14, 2, v0\ns_mov_b32 exec_lo, 0x3ffc0000\ns_mov_b32 exec_hi, 0")
        a.label("L_yg")
        a("buffer_load_dword v15, v14, s[64:67], s60 offen offset:128 sc1\ns_waitcnt vmcnt(0)")
        a("v_cmp_ne_u32 vcc, s78, v15\ns_cbranch_vccz L_yg_done")
        a(f"s_add_u32 s79, s79, 1\ns_cmp_lt_u32 s79, {POLL_MAX}\ns_cbranch_scc1 L_yg")
        a.label("L_yg_done")
        a("s_mov_b64 exec, -1")
        gY.issue()
    if prog:
        def accY(k):
            b0 = 104 + 4 * k
            if k == 1: a("v_pk_add_f32 v[40:41], v[104:105], v[108:109]\nv_pk_add_f32 v[42:43], v[106:107], v[110:111]")
            elif k > 1: a(f"v_pk_add_f32 v[40:41], v[40:41], v[{b0}:{b0+1}]\nv_pk_add_f32 v[42:43], v[42:43], v[{b0+2}:{b0+3}]")
        gY.ploop(acc=accY)
        stamp(8)
    else:
        selloop(gY) if sel & 2 else gY.loop()
        stamp(8)
        for k in range(0, 8, 2):
            a(f"v_pk_add_f32 v[{104+4*k}:{105+4*k}], v[{104+4*k}:{105+4*k}], v[{108+4*k}:{109+4*k}]\nv_pk_add_f32 v[{106+4*k}:{107+4*k}], v[{106+4*k}:{107+4*k}], v[{110+4*k}:{111+4*k}]")
        for k in (0, 4):
            a(f"v_pk_add_f32 v[{104+4*k}:{105+4*k}], v[{104+4*k}:{105+4*k}], v[{112+4*k}:{113+4*k}]\nv_pk_add_f32 v[{106+4*k}:{107+4*k}], v[{106+4*k}:{107+4*k}], v[{114+4*k}:{115+4*k}]")
        a("v_pk_add_f32 v[40:41], v[104:105], v[120:121]\nv_pk_add_f32 v[42:43], v[106:107], v[122:123]")
    a("ds_write_b128 v16, v[40:43]")
    a("s_waitcnt lgkmcnt(0)\ns_barrier")
    stamp(18)
    for k in range(4):
        a(f"ds_read_b128 v[{40+4*k}:{43+4*k}], v19 offset:{1024*k}")
    if sdef:
        for p in range(4):
            a(f"ds_read_b128 v[{136+4*p}:{139+4*p}], v23 offset:{1536*p + 32768}")
    a(f"s_waitcnt lgkmcnt({6 if sdef else 2})")
    a("v_pk_add_f32 v[40:41], v[40:41], v[44:45]\nv_pk_add_f32 v[42:43], v[42:43], v[46:47]")
    a(f"s_waitcnt lgkmcnt({4 if sdef else 0})")
    a("v_pk_add_f32 v[48:49], v[48:49], v[52:53]\nv_pk_add_f32 v[50:51], v[50:51], v[54:55]")
    a("v_pk_add_f32 v[40:41], v[40:41], v[48:49]\nv_pk_add_f32 v[42:43], v[42:43], v[50:51]")
    a("v_cvt_pk_bf16_f32 v44, v40, v41\nv_cvt_pk_bf16_f32 v45, v42, v43")
    a("v_lshlrev_b32 v40, 16, v44\nv_and_b32 v41, 0xffff0000, v44\nv_lshlrev_b32 v42, 16, v45\nv_and_b32 v43, 0xffff0000, v45")
    a("v_pk_add_f32 v[40:41], v[40:41], v[100:101]\nv_pk_add_f32 v[42:43], v[42:43], v[102:103]")
    for r in range(4):
        a(f"v_cvt_pk_bf16_f32 v{48+r}, v{40+r}, v{40+r}")
    a("s_mov_b32 exec_lo, 0xffffff\ns_mov_b32 exec_hi, 0xffffff")
    a("ds_write_b128 v17, v[48:51]")
    a("s_mov_b64 exec, -1")
    a("s_waitcnt lgkmcnt(0)")
    for st in range(3):
        a(f"ds_read_b64 v[{96+2*st}:{97+2*st}], v24 offset:{64*st}")
    for r in range(4):
        a(f"v_and_b32 v{60+r}, 0xffff0000, v{48+r}")
    for st in range(3):
        a(f"s_waitcnt lgkmcnt({2-st})")
        sel_and(st, 96+2*st, 97+2*st)
    stamp(19)
    def stats_block():
        a("s_cmp_lg_u32 s3, 3\ns_cbranch_scc1 L_nost")
        for r in range(4):
            a(f"v_sub_f32 v{44+r}, v{60+r}, v29")
        a("v_add_f32 v52, v44, v45\nv_add_f32 v53, v46, v47\nv_mul_f32 v54, v44, v44\nv_mul_f32 v55, v45, v45")
        a("v_fmac_f32 v54, v46, v46\nv_fmac_f32 v55, v47, v47\nv_add_f32 v52, v52, v53\nv_add_f32 v53, v54, v55")
        a("v_cmp_gt_u32 vcc, 24, v5\nv_cndmask_b32 v52, 0, v52, vcc\nv_cndmask_b32 v53, 0, v53, vcc")
        row_allreduce("v_add_f32", [52, 53])
        swap_reduce("v_add_f32", [52, 53], [54, 55], 16)
        a("v_mov_b32 v54, v52\nv_mov_b32 v55, v53")
        a("v_permlane32_swap_b32 v52, v54\nv_permlane32_swap_b32 v53, v55")
        tag([52, 53, 54, 55])
        a("s_mov_b64 exec, 0xff")
        pub("buffer_store_dwordx4 v[52:55], v39, s[64:67], s86 offen")
        a("s_mov_b64 exec, -1")
        a.label("L_nost")
    fl_ = stat_fill() if stearly == 2 else []
    if sdef:
        r = 136
        fl_ = [f"v_pk_add_f32 v[{r}:{r+1}], v[{r}:{r+1}], v[{r+4}:{r+5}]", f"v_pk_add_f32 v[{r+2}:{r+3}], v[{r+2}:{r+3}], v[{r+6}:{r+7}]",
               f"v_pk_add_f32 v[{r+8}:{r+9}], v[{r+8}:{r+9}], v[{r+12}:{r+13}]", f"v_pk_add_f32 v[{r+10}:{r+11}], v[{r+10}:{r+11}], v[{r+14}:{r+15}]",
               f"v_pk_add_f32 v[{r}:{r+1}], v[{r}:{r+1}], v[{r+8}:{r+9}]", f"v_pk_add_f32 v[{r+2}:{r+3}], v[{r+2}:{r+3}], v[{r+10}:{r+11}]"] + \
              [f"v_bfi_b32 v{q}, s77, v30, v{q}" for q in range(r, r+4)] + fl_
    mfma_block(168, 3, ACC, filler=fl_, nfill=3 if sdef else 2)
    if sdef:
        a("s_bitcmp1_b32 s3, 0\ns_cbranch_scc1 L_noS\ns_mov_b32 exec_hi, 0xffff")
        pub("buffer_store_dwordx4 v[136:139], v39, s[64:67], s87 offen")
        a("s_mov_b64 exec, -1")
        a.label("L_noS")
    if stearly == 1: stats_block()
    if stearly == 2:
        a("s_cmp_lg_u32 s3, 3\ns_cbranch_scc1 L_nost\ns_mov_b64 exec, 0xff")
        pub("buffer_store_dwordx4 v[52:55], v39, s[64:67], s86 offen")
        a("s_mov_b64 exec, -1")
        a.label("L_nost")
    a("s_waitcnt lgkmcnt(0)\ns_barrier")
    reduce4(104)
    pub("buffer_store_dwordx4 v[104:107], v39, s[64:67], s85 offen")
    a("s_mov_b64 exec, -1")
    stamp(9)
    if not stearly: stats_block()
    a("s_cmp_lg_u32 s3, 0\ns_cbranch_scc1 L_fin")
    a("s_mov_b32 exec_lo, 0xffffff\ns_mov_b32 exec_hi, 0xffffff")
    a("ds_write_b128 v25, v[60:63]")
    a("s_mov_b64 exec, -1")
    a("s_waitcnt lgkmcnt(0)\nds_read_b32 v64, v8")
    gR = Gather([(f"buffer_load_dword v{48+i}, v7, s[64:67], s{40+i} offen sc1", [48+i]) for i in range(3)], tmp=76)
    gR.issue()
    a("s_waitcnt vmcnt(0)")
    selloop(gR) if sel & 8 else gR.loop()
    stamp(12)
    a("v_add_f32 v40, v48, v49\nv_add_f32 v40, v40, v50")
    row_allreduce("v_add_f32", [40], steps=(8,))
    swap_reduce("v_add_f32", [40], [41], 16)
    swap_reduce("v_add_f32", [40], [41], 32)
    bf16r(40, 40)
    a("s_waitcnt lgkmcnt(0)")
    a("v_add_f32 v40, v40, v64\nv_cvt_pk_bf16_f32 v40, v40, v40")
    a("s_mov_b64 exec, 0xff")
    a("buffer_store_short v40, v3, s[72:75], s43 offen")
    a("s_cmp_lg_u32 s2, 0\ns_cbranch_scc1 L_fin")
    a("s_mov_b64 exec, 1\nv_mov_b32 v41, s78\nv_mov_b32 v42, 0")
    a("buffer_store_dword v41, v42, s[64:67], 0 offen sc1")
    a.label("L_fin")
    if dbgtime:
        a("s_mov_b64 exec, 1\ns_memrealtime s[16:17]\ns_waitcnt lgkmcnt(0)")
        a("v_mov_b32 v1, 0\nv_mov_b32 v2, s16\nv_not_b32 v3, v31\nv_sub_u32 v4, v2, v31")
        a("global_atomic_umax v1, v2, s[90:91]\nglobal_atomic_umax v1, v3, s[90:91] offset:4\nglobal_atomic_umax v1, v4, s[90:91] offset:8")
        a("global_atomic_umax v1, v31, s[90:91] offset:12")
    if stamps:
        a("s_mov_b64 exec, -1")
        stamp(14)
        a(f"v_writelane_b32 v31, s79, 15")
        a(f"s_lshl_b32 s8, s2, 2\ns_add_u32 s8, s8, s3\ns_lshl_b32 s8, s8, 8\ns_add_u32 s8, s8, {WS_STAMP}")
        a("buffer_store_dword v31, v9, s[64:67], s8 offen")
    a.label("L_end")
    a("s_endpgm")
    L, n = hazard.fix(a.L)
    if locnt: L = [l + (" nt" if locnt == 1 else " sc0") if ("buffer_store" in l and "s101 offen" in l) else l for l in L]
    if ldnt: L = [l.replace(" sc1", " sc1 nt") if "buffer_load" in l else l for l in L]
    if stnt: L = [l.replace(" sc1", " sc1 nt") if "buffer_store" in l else l for l in L]
    body = "\n".join(L) + "\n"
    if codepf:
        body = body.replace("    .CODEPF_GUARD\n",
            "    s_cmp_ge_u32 s8, (L_end - " + NAME + "_kernel)\n    s_cbranch_scc1 L_nopf\n"
            "    v_add_u32 v31, s8, v3\n" if False else
            "    v_add_u32 v4, s8, v3\n"
            "    v_cmp_gt_u32 vcc, (L_end - " + NAME + "_kernel - 64), v4\n"
            "    s_and_saveexec_b64 s[100:101], vcc\n"
            "    s_cbranch_execz L_nopf\n"
            "    global_load_dword v255, v3, s[98:99]\n"
            "L_nopf:\n"
            "    s_mov_b64 exec, -1\n")
    lds = max(L_END, lds_force)
    return wrap(body, 256, 256, lds, 304 if w2early else 256, accum=256)

import struct
def float_lit(x):
    return "0x%08x" % struct.unpack("<I", struct.pack("<f", x))[0]

if __name__ == "__main__":
    out = sys.argv[1] if len(sys.argv) > 1 else "k.s"
    kw = {}
    for arg in sys.argv[2:]:
        k, v = arg.split("=")
        kw[k] = int(v)
    open(out, "w").write(gen(**kw))
    print("wrote", out, "LDS", L_END, "WS_END", hex(WS_END))
```
